```python
import torch

def _softmax(x, axis=-1):
    return torch.softmax(x, dim=axis)
def _gelu(x):
    return torch.nn.functional.gelu(x, approximate="tanh")
def _silu(x):
    return torch.nn.functional.silu(x)
def _sigmoid(x):
    return torch.sigmoid(x)
def _layernorm(x, axis=-1, eps=1e-5):
    m = x.mean(dim=axis, keepdim=True)
    v = x.var(dim=axis, keepdim=True, unbiased=False)
    return (x - m) / torch.sqrt(v + eps)
def _scatter_add(tgt, idx, src, axis=0):
    return tgt.clone().index_add_(axis, idx, src)
def _segment_sum(src, seg, n):
    out = torch.zeros((n,) + src.shape[1:], dtype=src.dtype)
    return out.index_add_(0, seg, src)
def _pad(x, pw):
    flat = tuple(v for pair in reversed(pw) for v in pair)
    return torch.nn.functional.pad(x, flat)

kernel_name = 'concat_heads__sliding_block__spectral_fnet__prompt'

def setup_inputs():

    _w = (lambda a: (lambda t: t.to(torch.bfloat16) if t.is_floating_point() else t)(torch.as_tensor(a)))
    def _A_setup():
        B, S, D = 1, 2048, 448
        return {
            "x": _w((lambda *s: torch.randn(*s, dtype=torch.bfloat16) * 0.2)(B, S, D)),
            "wqkv": _w((lambda *s: torch.randn(*s, dtype=torch.bfloat16) * 0.8)(D, 3 * D)),
            "wo": _w((lambda *s: torch.randn(*s, dtype=torch.bfloat16) * 0.2)(D, D)),
        }
    _A_in = _A_setup()

    def _B_setup():
        B, S, D = 1, 2048, 448
        ns = torch.arange(S)[:, None] * torch.arange(S)[None, :]
        nd = torch.arange(D)[:, None] * torch.arange(D)[None, :]
        Ws_re = torch.cos(-2.0 * torch.pi * ns / S).to(float)
        Ws_im = torch.sin(-2.0 * torch.pi * ns / S).to(float)
        Wd_re = torch.cos(-2.0 * torch.pi * nd / D).to(float)
        Wd_im = torch.sin(-2.0 * torch.pi * nd / D).to(float)
        return {
            "x": _w((lambda *s: torch.randn(*s, dtype=torch.bfloat16) * 0.05)(B, S, D)),
            "dft_seq_re": _w(Ws_re),
            "dft_seq_im": _w(Ws_im),
            "dft_hid_re": _w(Wd_re),
            "dft_hid_im": _w(Wd_im),
        }
    _B_in = _B_setup()

    return {
        "A_x": _A_in["x"],
        "A_wqkv": _A_in["wqkv"],
        "A_wo": _A_in["wo"],
        "B_x": _B_in["x"],
        "B_dft_seq_re": _B_in["dft_seq_re"],
        "B_dft_seq_im": _B_in["dft_seq_im"],
        "B_dft_hid_re": _B_in["dft_hid_re"],
        "B_dft_hid_im": _B_in["dft_hid_im"],
    }

def reference(A_x, A_wqkv, A_wo, B_x, B_dft_seq_re, B_dft_seq_im, B_dft_hid_re, B_dft_hid_im):
    def _A_ref(x, wqkv, wo):
        B, S, D = x.shape
        H = 16; Dh = D // H; W = 256
        qkv = (lambda x, *d: x.permute(*d))((x @ wqkv).reshape(B, S, 3, H, Dh), 2, 0, 3, 1, 4)
        q, k, v = qkv[0], qkv[1], qkv[2]
        scores = torch.einsum("bhqd,bhkd->bhqk", q, k) * (Dh ** -0.5)
        idx = torch.arange(S)
        mask = (idx[:, None] - idx[None, :] >= 0) & (idx[:, None] - idx[None, :] < W)
        scores = torch.where(mask[None, None], scores, -1e9)
        p = _softmax(scores, axis=-1)
        o = torch.einsum("bhqk,bhkd->bhqd", p, v)
        return (lambda x, *d: x.permute(*d))(o, 0, 2, 1, 3).reshape(B, S, D) @ wo

    def _B_ref(x, dft_seq_re, dft_seq_im, dft_hid_re, dft_hid_im):
        a = torch.einsum("bsd,ed->bse", x, dft_hid_re)
        b = torch.einsum("bsd,ed->bse", x, dft_hid_im)
        y = torch.einsum("ts,bse->bte", dft_seq_re, a) - torch.einsum("ts,bse->bte", dft_seq_im, b)
        return y

    a = _A_ref(A_x, A_wqkv, A_wo)
    b = _B_ref(B_x, B_dft_seq_re, B_dft_seq_im, B_dft_hid_re, B_dft_hid_im)
    return torch.concatenate([a, b], axis=-1)
```

```python
HEADER_DOC = """; Kernarg layout (88 bytes, ptrs only, base s[0:1]):
"""
class Asm:
    def __init__(self):
        self.lines = []
        self._lbl = 0
    def __call__(self, s):
        for l in s.strip("\n").split("\n"):
            l = l.strip()
            if not l: continue
            if l.endswith(":") or l.startswith("."):
                self.lines.append(l)
            else:
                self.lines.append("    " + l)
    def c(self, s):
        self.lines.append("    ; " + s)
    def newlabel(self, p="L"):
        self._lbl += 1
        return f"{p}_{self._lbl}"
    def text(self):
        return "\n".join(self.lines) + "\n"

def kernel_begin(a, name):
    a(f".globl {name}\n.p2align 8\n.type {name},@function\n{name}:")

def descriptor(name, vgpr, sgpr=102, accum=None, agprs=0):
    if accum is None:
        accum = (vgpr + 3) // 4 * 4
    nfv = accum + agprs if agprs else vgpr
    return f""".p2align 6
.amdhsa_kernel {name}
  .amdhsa_next_free_vgpr {nfv}
  .amdhsa_next_free_sgpr {sgpr}
  .amdhsa_accum_offset {accum}
  .amdhsa_group_segment_fixed_size 0
  .amdhsa_kernarg_size 88
  .amdhsa_user_sgpr_count 2
  .amdhsa_user_sgpr_kernarg_segment_ptr 1
  .amdhsa_system_sgpr_workgroup_id_x 1
.end_amdhsa_kernel
"""

def file_text(launches, body, descs):
    h = HEADER_DOC
    for k, g, b, lds in launches:
        h += f"; @launch kernel={k} grid=({g},1,1) block=({b},1,1) lds={lds}\n"
    return h + '.amdgcn_target "amdgcn-amd-amdhsa--gfx950"\n.text\n' + body + '.section .rodata,"a"\n' + "".join(descs)
```

```python
import sys, math, struct
from asmlib import *

NAME = "concat_heads__sliding_block__spectral_fnet__prompt"
K = NAME + "_kernel"

WS_F1, WS_F2, WS_F3, WS_EPOCH = 0x0, 0x20000, 0x40000, 0x60000
WS_QKV = 0x100000
WS_AT = 0x800000
AT_NB = 64 * 7168
WS_O = 0xC00000
WS_PQ = 0xE00000
WS_STAMP = 0x1700000
WS_SIZE = 0x1800000

C2 = (28 ** -0.5) * math.log2(math.e)
def f32bits(x):
    return struct.unpack("<I", struct.pack("<f", x))[0]
NEGBIG = f32bits(-1e30)

S_WAVE, S_XCD, S_LOC = 3, 4, 5
P_AX, P_WQKV, P_WO, P_BX, P_CR, P_CI, P_DR, P_DI, P_OUT, P_DBG, P_WS = 16, 18, 20, 22, 24, 26, 28, 30, 32, 34, 36
S_TAG = 38
SRD_X, SRD_W, SRD_WS, SRD_OUT = 40, 44, 48, 52
S_ST = 64
V_LANE = 1
SC = " sc1"
POLL_LIMIT = 20000

LDS_K, LDS_V, LDS_WO = 0, 24576, 0
RING = 65536
BST = 30720
LDS_TOTAL = RING + 3 * BST

class Cfg:
    stamps = False
    NA = 6
    KV_POLL = 1
    O_POLL = 13

def srd(a, d, p, nbytes):
    a(f"s_mov_b32 s{d}, s{p}\ns_and_b32 s{d+1}, s{p+1}, 0xffff\ns_mov_b32 s{d+2}, {nbytes}\ns_mov_b32 s{d+3}, 0x20000")
def srd_sel(a, d, p0, p1, nbytes):
    a(f"""s_cselect_b32 s{d}, s{p0}, s{p1}
    s_cselect_b32 s{d+1}, s{p0+1}, s{p1+1}
    s_and_b32 s{d+1}, s{d+1}, 0xffff
    s_mov_b32 s{d+2}, {nbytes}
    s_mov_b32 s{d+3}, 0x20000""")
def R(b, n=4):
    return f"v[{b}:{b+n-1}]"
def S4(d):
    return f"s[{d}:{d+3}]"

def interleave(a, mfmas, fillers):
    n, m = len(mfmas), len(fillers)
    k = 0
    for i, mf in enumerate(mfmas):
        a(mf)
        want = min(m, ((i + 1) * m + n - 1) // n)
        while k < want:
            a(fillers[k]); k += 1
    while k < m:
        a(fillers[k]); k += 1

def stamp(a, i, cyc=False):
    if Cfg.stamps:
        a(f"{'s_memtime' if cyc else 's_memrealtime'} s[{S_ST+2*i}:{S_ST+2*i+1}]")
def dump_stamps(a, grp, n=16):
    if not Cfg.stamps: return
    a(f"""
    s_waitcnt lgkmcnt(0)
    s_lshl_b32 s14, s2, 3
    s_add_u32 s14, s14, s{S_WAVE}
    s_add_u32 s14, s14, {4*grp}
    s_lshl_b32 s14, s14, 6
    s_add_u32 s14, s14, {WS_STAMP}
    v_mov_b32 v2, 0
    """)
    for i in range(n):
        a(f"v_mov_b32 v3, s{S_ST+2*i}\nbuffer_store_dword v3, v2, {S4(SRD_WS)}, s14 offen offset:{4*i}")

class VM:
    def __init__(self, a): self.a = a; self.q = []
    def op(self, tag, text): self.a(text); self.q.append(tag)
    def wait(self, tag, extra=""):
        idx = max(i for i, t in enumerate(self.q) if t == tag) if tag in self.q else -1
        n = len(self.q) - 1 - idx
        assert n <= 63, n
        self.a(f"s_waitcnt vmcnt({n}){extra}")
        self.q = self.q[idx + 1:]
    def drained(self): self.q = []

def poll_blocking(a, vaddr, soff, vt, name):
    l = a.newlabel(name)
    a(f"""
    s_mov_b32 s39, 0
    {l}:
    buffer_load_dword v{vt}, v{vaddr}, {S4(SRD_WS)}, s{soff} offen sc1
    s_add_u32 s39, s39, 1
    s_waitcnt vmcnt(0)
    v_cmp_ne_u32 vcc, s{S_TAG}, v{vt}
    s_cmp_ge_u32 s39, {POLL_LIMIT}
    s_cbranch_scc1 {l}_x
    s_cbranch_vccnz {l}
    {l}_x:
    """)

def flag_store(a, sidx, base, vt0, vt1):
    a(f"""
    s_lshl_b32 s14, s{sidx}, 7
    s_add_u32 s14, s14, {base}
    v_mov_b32 v{vt0}, 0
    v_mov_b32 v{vt1}, s{S_TAG}
    s_mov_b64 exec, 1
    buffer_store_dword v{vt1}, v{vt0}, {S4(SRD_WS)}, s14 offen sc1
    s_mov_b64 exec, -1
    """)

def xfrag_addrs(a, vX0, vX1, t0, t1, sbase):
    a(f"""
    v_and_b32 v{t0}, 15, v{V_LANE}
    v_lshrrev_b32 v{t1}, 1, v{t0}
    v_lshrrev_b32 v{vX0}, 4, v{V_LANE}
    v_xor_b32 v{vX0}, v{vX0}, v{t1}
    v_lshlrev_b32 v{vX0}, 4, v{vX0}
    v_lshl_add_u32 v{vX0}, v{t0}, 7, v{vX0}
    v_add_u32 v{vX0}, s{sbase}, v{vX0}
    v_xor_b32 v{vX1}, 64, v{vX0}
    """)

def gemm_loop(a, name, n_iter, STAGE, reads, mfmas, addr_regs, sSlot, sCnt, sD):
    l = a.newlabel(name)
    a(f"s_mov_b32 s{sCnt}, {n_iter}\n{l}:")
    a("s_waitcnt lgkmcnt(0)")
    pre = [f"s_add_u32 s{sSlot}, s{sSlot}, 1\ns_cmp_eq_u32 s{sSlot}, 3",
           f"s_cselect_b32 s{sD}, -2, 1\ns_cselect_b32 s{sSlot}, 0, s{sSlot}\ns_mul_i32 s{sD}, s{sD}, {STAGE}"]
    interleave(a, mfmas(0), reads(1, 1) + pre)
    a("s_waitcnt lgkmcnt(0)\ns_barrier")
    for r in addr_regs:
        a(f"v_add_u32 v{r}, s{sD}, v{r}")
    interleave(a, mfmas(1), reads(0, 0) + [f"s_sub_u32 s{sCnt}, s{sCnt}, 1\ns_cmp_lg_u32 s{sCnt}, 0"])
    a(f"s_cbranch_scc1 {l}")

def g0_a1(a):
    STAGE = 37888
    vX0, vX1, vWa = 14, 15, 16
    t0, t1 = 17, 18
    FR, ACC = 24, 104
    a(f"s_lshr_b32 s14, s{S_WAVE}, 1\ns_lshl_b32 s14, s14, 13")
    xfrag_addrs(a, vX0, vX1, t0, t1, 14)
    a(f"""
    s_and_b32 s14, s{S_WAVE}, 1
    s_mul_i32 s14, s14, 168
    s_add_u32 s14, s14, 16384
    v_lshrrev_b32 v{t0}, 2, v{V_LANE}
    v_mul_u32_u24 v{t0}, 672, v{t0}
    v_and_b32 v{t1}, 3, v{V_LANE}
    v_lshl_add_u32 v{t0}, v{t1}, 3, v{t0}
    v_add_u32 v{vWa}, s14, v{t0}
    """)
    for i in range(96):
        a(f"v_mov_b32 v{ACC+i}, 0")
    def reads(ks, buf):
        b = FR + 40 * buf
        x = [f"ds_read_b128 {R(b + 4*T)}, v{vX1 if ks else vX0} offset:{2048*T}" for T in range(4)]
        w = []
        for ct in range(6):
            sg, pi = ct // 2, ct % 2
            for j in range(2):
                w.append(f"ds_read_b64_tr_b16 {R(b + 16 + 4*ct + 2*j, 2)}, v{vWa} offset:{(32*ks + j)*336 + (7*sg + 4*pi)*8}")
        return w[:2] + x + w[2:]
    def mfmas(buf):
        b = FR + 40 * buf
        return [f"v_mfma_f32_16x16x32_bf16 {R(ACC + (ct*4+T)*4)}, {R(b + 16 + 4*ct)}, {R(b + 4*T)}, {R(ACC + (ct*4+T)*4)}"
                for ct in range(6) for T in range(4)]
    a("s_mov_b32 s9, 0\ns_barrier")
    stamp(a, 1)
    for f in reads(0, 0): a(f)
    gemm_loop(a, "a1", 7, STAGE, reads, mfmas, [vX0, vX1, vWa], 9, 10, 11)
    stamp(a, 2)
    a(f"""
    s_waitcnt lgkmcnt(0)
    s_mul_i32 s9, s7, 6
    s_and_b32 s14, s{S_WAVE}, 1
    s_mul_i32 s14, s14, 3
    s_add_u32 s9, s9, s14
    s_lshl_b32 s10, s6, 3
    s_lshr_b32 s14, s{S_WAVE}, 1
    s_lshl_b32 s14, s14, 2
    s_add_u32 s10, s10, s14
    s_lshl_b32 s10, s10, 10
    s_add_u32 s10, s10, {WS_QKV}
    v_lshlrev_b32 v{t0}, 4, v{V_LANE}
    s_mov_b32 s56, 0
    s_mov_b32 s57, 0xffff0000
    """)
    for sg in range(3):
        a(f"""
        s_add_u32 s11, s9, {sg}
        s_lshl_b32 s12, s11, 17
        s_add_u32 s12, s12, s10
        s_cmp_lt_u32 s11, 16
        s_cselect_b32 s60, {f32bits(C2)}, 1.0
        s_cselect_b32 s61, {f32bits(C2)}, 1.0
        s_sub_u32 s14, s11, 16
        s_cmp_lt_u32 s14, 16
        s_cselect_b32 s14, 0, 0x3f80
        v_mov_b32 v{t1}, s14
        """)
        for T in range(4):
            d0 = ACC + ((2*sg)*4 + T)*4
            d1 = ACC + ((2*sg+1)*4 + T)*4
            o = FR + 4*((sg*4 + T) % 8)
            for d in (d0, d0+2, d1, d1+2):
                a(f"v_pk_mul_f32 {R(d,2)}, {R(d,2)}, s[60:61]")
            a(f"""
            v_cvt_pk_bf16_f32 v{o}, v{d0}, v{d0+1}
            v_cvt_pk_bf16_f32 v{o+1}, v{d0+2}, v{d0+3}
            v_cvt_pk_bf16_f32 v{o+2}, v{d1}, v{d1+1}
            v_cvt_pk_bf16_f32 v{o+3}, v{d1+2}, v{d1+3}
            v_cndmask_b32 v{o+2}, v{o+2}, v{t1}, s[56:57]
            v_cndmask_b32 v{o+3}, v{o+3}, 0, s[56:57]
            buffer_store_dwordx4 {R(o)}, v{t0}, {S4(SRD_WS)}, s12 offen offset:{1024*T}{SC}
            """)
    a(f"""
    s_lshl_b32 s9, s7, 4
    s_add_u32 s9, s9, s6
    s_lshl_b32 s9, s9, 2
    s_add_u32 s9, s9, s{S_WAVE}
    """)

B_X0, B_X1, B_E0, B_E1 = 14, 15, 16, 21
B_FR, B_ACC = 24, 104

def g0_bs(a):
    STAGE = 30720
    t0, t1 = 17, 18
    FR, ACC = B_FR, B_ACC
    a(f"s_lshl_b32 s14, s{S_WAVE}, 12")
    xfrag_addrs(a, B_X0, B_X1, t0, t1, 14)
    a(f"""
    v_subrev_u32 v{B_E0}, s14, v{B_X0}
    v_add_u32 v{B_E0}, 16384, v{B_E0}
    v_xor_b32 v{B_E1}, 64, v{B_E0}
    """)
    for i in range(56):
        a(f"v_mov_b32 v{ACC+i}, 0")
    def reads(ks, buf):
        b = FR + 36 * buf
        f = [f"ds_read_b128 {R(b + 4*T)}, v{B_X1 if ks else B_X0} offset:{2048*T}" for T in range(2)]
        f += [f"ds_read_b128 {R(b + 8 + 4*t)}, v{B_E1 if ks else B_E0} offset:{2048*t}" for t in range(7)]
        return f
    def mfmas(buf):
        b = FR + 36 * buf
        return [f"v_mfma_f32_16x16x32_bf16 {R(ACC + (t*2+T)*4)}, {R(b + 4*T)}, {R(b + 8 + 4*t)}, {R(ACC + (t*2+T)*4)}"
                for t in range(7) for T in range(2)]
    a("s_mov_b32 s9, 0\ns_barrier")
    stamp(a, 1)
    for f in reads(0, 0): a(f)
    gemm_loop(a, "bs", 7, STAGE, reads, mfmas, [B_X0, B_X1, B_E0, B_E1], 9, 10, 11)
    stamp(a, 2)
    a(f"""
    s_waitcnt lgkmcnt(0)
    s_mul_i32 s9, s7, {AT_NB}
    s_lshl_b32 s10, s6, 2
    s_add_u32 s10, s10, s{S_WAVE}
    s_mul_i32 s10, s10, 7168
    s_add_u32 s9, s9, s10
    s_add_u32 s9, s9, {WS_AT}
    s_add_u32 s10, s9, 4096
    v_lshlrev_b32 v{t0}, 4, v{V_LANE}
    """)
    for t in range(7):
        d0 = ACC + (t*2)*4
        d1 = d0 + 4
        o = FR + 4*t
        a(f"""
        v_cvt_pk_bf16_f32 v{o}, v{d0}, v{d0+1}
        v_cvt_pk_bf16_f32 v{o+1}, v{d0+2}, v{d0+3}
        v_cvt_pk_bf16_f32 v{o+2}, v{d1}, v{d1+1}
        v_cvt_pk_bf16_f32 v{o+3}, v{d1+2}, v{d1+3}
        buffer_store_dwordx4 {R(o)}, v{t0}, {S4(SRD_WS)}, s{9 if t < 4 else 10} offen offset:{1024*(t%4)}{SC}
        """)
    a(f"""
    s_lshl_b32 s9, s7, 4
    s_add_u32 s9, s9, s6
    s_add_u32 s9, s9, 128
    s_lshl_b32 s9, s9, 2
    s_add_u32 s9, s9, s{S_WAVE}
    """)

S_MB, S_NB, S_KQ, S_H, S_J, S_RB64, S_CT = 96, 97, 98, 99, 100, 101, 63

def jobs2(a):
    a(f"""
    s_lshr_b32 s{S_KQ}, s{S_XCD}, 1
    s_and_b32 s{S_MB}, s{S_XCD}, 1
    s_lshl_b32 s{S_MB}, s{S_MB}, 3
    s_and_b32 s14, s{S_LOC}, 7
    s_add_u32 s{S_MB}, s{S_MB}, s14
    s_lshr_b32 s{S_NB}, s{S_LOC}, 3
    s_lshl_b32 s{S_H}, s{S_XCD}, 1
    s_lshr_b32 s14, s{S_LOC}, 4
    s_add_u32 s{S_H}, s{S_H}, s14
    s_and_b32 s{S_J}, s{S_LOC}, 15
    s_mul_i32 s14, s{S_LOC}, 37
    s_lshr_b32 s14, s14, 8
    s_mul_i32 s15, s14, 7
    s_sub_u32 s{S_CT}, s{S_LOC}, s15
    s_min_u32 s14, s14, 3
    s_lshl_b32 s{S_RB64}, s{S_XCD}, 2
    s_add_u32 s{S_RB64}, s{S_RB64}, s14
    """)

A_Q = 160
A_CM0, A_CM8 = 168, 184
A_NM = 200
A_O = 216
A_S0, A_S1 = 232, 60
A_KF = 76
A_P = 248
A_VF = 96
A_VF2 = 4
A_KA, A_VA0, A_VA1, A_M0, A_M1, A_QA = 12, 13, 19, 20, 22, 23

def g0_attn_setup(a):
    t0, t1 = 17, 18
    a(f"""
    v_and_b32 v{t0}, 31, v{V_LANE}
    v_lshrrev_b32 v{t1}, 5, v{V_LANE}
    v_lshlrev_b32 v{t1}, 2, v{t1}
    v_sub_u32 v{t0}, v{t0}, v{t1}
    v_mov_b32 v{t1}, {NEGBIG}
    """)
    for i in range(16):
        kk = 8*(i//4) + i % 4
        a(f"""
        v_cmp_gt_i32 vcc, {kk}, v{t0}
        s_nop 1
        v_cndmask_b32 v{A_CM0+i}, v{t1}, 0, vcc
        v_cndmask_b32 v{A_CM8+i}, 0, v{t1}, vcc
        """)
    a(f"""
    v_bfe_u32 v{t0}, v{V_LANE}, 4, 1
    v_lshrrev_b32 v{t1}, 5, v{V_LANE}
    v_lshlrev_b32 v{t0}, 10, v{t0}
    v_lshl_add_u32 v{t0}, v{t1}, 8, v{t0}
    v_and_b32 v{t1}, 15, v{V_LANE}
    v_lshl_add_u32 v{A_QA}, v{t1}, 4, v{t0}
    s_lshl_b32 s14, s{S_WAVE}, 11
    s_add_u32 s15, s14, {LDS_K}
    v_add_u32 v{A_KA}, s15, v{A_QA}
    """)
    a(f"""
    v_bfe_u32 v{t0}, v{V_LANE}, 4, 1
    v_bfe_u32 v{t1}, v{V_LANE}, 1, 1
    v_lshl_add_u32 v{t0}, v{t0}, 1, v{t1}
    v_lshrrev_b32 v{t1}, 5, v{V_LANE}
    v_add_u32 v{t1}, v{t1}, v{t0}
    v_and_b32 v{t1}, 3, v{t1}
    v_lshlrev_b32 v{t1}, 6, v{t1}
    v_lshl_add_u32 v{t0}, v{t0}, 8, v{t1}
    v_bfe_u32 v{t1}, v{V_LANE}, 2, 2
    v_lshl_add_u32 v{t0}, v{t1}, 4, v{t0}
    v_and_b32 v{t1}, 1, v{V_LANE}
    v_lshl_add_u32 v{t0}, v{t1}, 3, v{t0}
    s_add_u32 s15, s14, {LDS_V}
    v_add_u32 v{A_VA0}, s15, v{t0}
    v_xor_b32 v{A_VA1}, 128, v{A_VA0}
    """)

def g0_qload(a):
    a(f"""
    s_lshl_b32 s14, s{S_H}, 17
    s_lshl_b32 s15, s{S_J}, 13
    s_add_u32 s14, s14, s15
    s_lshl_b32 s15, s{S_WAVE}, 11
    s_add_u32 s14, s14, s15
    s_add_u32 s62, s14, {WS_O}
    s_add_u32 s14, s14, {WS_QKV}
    buffer_load_dwordx4 {R(A_Q)}, v{A_QA}, {S4(SRD_WS)}, s14 offen{SC}
    buffer_load_dwordx4 {R(A_Q+4)}, v{A_QA}, {S4(SRD_WS)}, s14 offen offset:512{SC}
    """)

def g0_attention(a):
    S = [A_S0, A_S1]
    def kread(t):
        b = A_KF + 8 * (t % 2)
        return [f"ds_read_b128 {R(b + 4*m)}, v{A_KA} offset:{2048*t + 512*m}" for m in range(2)]
    def vread(t):
        b = A_VF if t % 2 == 0 else A_VF2
        return [f"ds_read_b64_tr_b16 {R(b + 4*m + 2*jj, 2)}, v{A_VA1 if jj else A_VA0} offset:{2048*t + 1024*m}" for m in range(2) for jj in range(2)]
    def qk(t, c):
        b = A_KF + 8 * (t % 2)
        s = R(S[t % 2], 16)
        return [f"v_mfma_f32_32x32x16_bf16 {s}, {R(b)}, {R(A_Q)}, {c}",
                f"v_mfma_f32_32x32x16_bf16 {s}, {R(b+4)}, {R(A_Q+4)}, {s}"]
    a("s_waitcnt lgkmcnt(0)")
    for f in kread(0) + kread(1): a(f)
    a(f"v_mov_b32 v{A_M0}, {NEGBIG}\nv_mov_b32 v{A_M1}, {NEGBIG}")
    a("s_waitcnt vmcnt(0) lgkmcnt(2)")
    def c1(t): return R(A_CM0, 16) if t == 0 else (R(A_CM8, 16) if t == 8 else "0")
    for f in qk(0, c1(0)): a(f)
    for t in range(9):
        if t + 1 <= 8:
            a("s_waitcnt lgkmcnt(0)")
            for f in qk(t + 1, c1(t + 1)): a(f)
        if t + 2 <= 8:
            for f in kread(t + 2): a(f)
        if t == 0: a("s_nop 7")
        if t == 8: a("s_nop 3")
        s = S[t % 2]
        for i in range(8):
            m = A_M0 if i % 2 == 0 else A_M1
            a(f"v_max3_f32 v{m}, v{s+2*i}, v{s+2*i+1}, v{m}")
    for f in kread(0) + kread(1) + vread(0): a(f)
    a(f"""
    v_max_f32 v{A_M0}, v{A_M0}, v{A_M1}
    v_mov_b32 v{A_M1}, v{A_M0}
    s_nop 1
    v_permlane32_swap_b32 v{A_M0}, v{A_M1}
    v_max_f32 v{A_M0}, v{A_M0}, v{A_M1}
    """)
    for i in range(16):
        a(f"v_sub_f32 v{A_CM0+i}, v{A_CM0+i}, v{A_M0}")
    for i in range(16):
        a(f"v_sub_f32 v{A_NM+i}, 0, v{A_M0}")
    def c2(t): return R(A_CM0, 16) if t == 0 else (R(A_CM8, 16) if t == 8 else R(A_NM, 16))
    a("s_waitcnt lgkmcnt(0)")
    for f in qk(0, c2(0)): a(f)
    for i in range(16):
        a(f"v_sub_f32 v{A_CM8+i}, v{A_CM8+i}, v{A_M0}")
    O = R(A_O, 16)
    for t in range(9):
        s = S[t % 2]
        vb = A_VF if t % 2 == 0 else A_VF2
        if t + 1 <= 8:
            if t > 0: a("s_waitcnt lgkmcnt(0)")
            for f in qk(t + 1, c2(t + 1)): a(f)
        else:
            a("s_waitcnt lgkmcnt(0)")
        rd = (kread(t + 2) if t + 2 <= 8 else []) + (vread(t + 1) if t + 1 <= 8 else [])
        for m in range(2):
            for i in range(8):
                a(f"v_exp_f32 v{s+8*m+i}, v{s+8*m+i}")
                if m == 1 and i < len(rd): a(rd[i])
            a("s_nop 0")
            for i in range(4):
                a(f"v_cvt_pk_bf16_f32 v{A_P+4*m+i}, v{s+8*m+2*i}, v{s+8*m+2*i+1}")
            a("s_nop 1")
            c = "0" if (t == 0 and m == 0) else O
            a(f"v_mfma_f32_32x32x16_bf16 {O}, {R(vb+4*m)}, {R(A_P+4*m)}, {c}")
    t0, t1 = 17, 18
    a(f"""
    v_lshrrev_b32 v{t0}, 5, v{V_LANE}
    v_lshl_add_u32 v{t0}, v{t0}, 8, v{A_QA}
    s_mov_b32 s56, 0
    s_mov_b32 s57, -1
    s_lshl_b32 s9, s{S_H}, 4
    s_add_u32 s9, s9, s{S_J}
    s_lshl_b32 s9, s9, 2
    s_add_u32 s9, s9, s{S_WAVE}
    s_nop 5
    v_mov_b32 v{A_M0}, v{A_O+12}
    v_mov_b32 v{A_M1}, v{A_O+12}
    s_nop 1
    v_permlane32_swap_b32 v{A_M0}, v{A_M1}
    v_rcp_f32 v{A_M1}, v{A_M1}
    s_nop 0
    """)
    for i in range(16):
        a(f"v_mul_f32 v{A_O+i}, v{A_O+i}, v{A_M1}")
    for i in range(8):
        a(f"v_cvt_pk_bf16_f32 v{A_P+i}, v{A_O+2*i}, v{A_O+2*i+1}")
    a(f"""
    v_cndmask_b32 v{A_P+6}, v{A_P+6}, 0, s[56:57]
    v_cndmask_b32 v{A_P+7}, v{A_P+7}, 0, s[56:57]
    buffer_store_dwordx4 {R(A_P)}, v{t0}, {S4(SRD_WS)}, s62 offen{SC}
    buffer_store_dwordx4 {R(A_P+4)}, v{t0}, {S4(SRD_WS)}, s62 offen offset:256{SC}
    """)

def g0_program(a):
    FR, ACC = B_FR, B_ACC
    t0, t1 = 17, 18
    a(f"s_cmp_ge_u32 s{S_LOC}, 16\ns_cbranch_scc1 g0_p1b")
    g0_a1(a)
    a("s_branch g0_p1done\ng0_p1b:")
    g0_bs(a)
    a("g0_p1done:")
    stamp(a, 3)
    a(f"s_lshl_b32 s14, s{S_WAVE}, 12\ns_add_u32 s14, s14, {RING}")
    xfrag_addrs(a, B_X0, B_X1, t0, t1, 14)
    a(f"""
    v_lshlrev_b32 v{B_E0}, 4, v{V_LANE}
    v_add_u32 v{B_E0}, {RING + 16384}, v{B_E0}
    """)
    for i in range(56):
        a(f"v_mov_b32 v{ACC+i}, 0")
    a("s_waitcnt vmcnt(0)")
    flag_store(a, 9, WS_F1, t0, t1)
    stamp(a, 4)
    g0_attn_setup(a)
    def reads(ks, buf):
        b = FR + 36 * buf
        f = [f"ds_read_b128 {R(b + 4*T)}, v{B_X1 if ks else B_X0} offset:{2048*T}" for T in range(2)]
        f += [f"ds_read_b128 {R(b + 8 + 4*t)}, v{B_E0} offset:{7168*ks + 1024*t}" for t in range(7)]
        return f
    def mfmas(buf):
        b = FR + 36 * buf
        return [f"v_mfma_f32_16x16x32_bf16 {R(ACC + (t*2+T)*4)}, {R(b + 8 + 4*t)}, {R(b + 4*T)}, {R(ACC + (t*2+T)*4)}"
                for t in range(7) for T in range(2)]
    a("s_mov_b32 s8, 0\ns_barrier")
    stamp(a, 5)
    for f in reads(0, 0): a(f)
    gemm_loop(a, "bb1", Cfg.NA - 1, BST, reads, mfmas, [B_X0, B_X1, B_E0], 8, 10, 11)
    g0_qload(a)
    gemm_loop(a, "bb1b", 1, BST, reads, mfmas, [B_X0, B_X1, B_E0], 8, 10, 11)
    stamp(a, 6)
    g0_attention(a)
    stamp(a, 7)
    gemm_loop(a, "bb2", 1, BST, reads, mfmas, [B_X0, B_X1, B_E0], 8, 10, 11)
    a("s_waitcnt vmcnt(0)")
    flag_store(a, 9, WS_F2, t0, t1)
    gemm_loop(a, "bb3", 16 - Cfg.NA - 1, BST, reads, mfmas, [B_X0, B_X1, B_E0], 8, 10, 11)
    stamp(a, 8)
    a(f"""
    s_waitcnt lgkmcnt(0)
    s_lshl_b32 s9, s{S_MB}, 2
    s_add_u32 s9, s9, s{S_NB}
    s_lshl_b32 s9, s9, 2
    s_add_u32 s9, s9, s{S_KQ}
    s_lshl_b32 s9, s9, 2
    s_add_u32 s9, s9, s{S_WAVE}
    s_lshl_b32 s10, s9, 13
    s_add_u32 s10, s10, {WS_PQ}
    s_add_u32 s11, s10, 4096
    v_lshlrev_b32 v{t0}, 4, v{V_LANE}
    """)
    PK = 24
    def dw(T, i):
        if i < 12: return PK + 4 * (3 * T + i // 4) + i % 4
        return PK + 24 + 2 * T + (i - 12)
    for T in range(2):
        for t in range(7):
            d = ACC + (t*2 + T)*4
            a(f"v_cvt_pk_bf16_f32 v{dw(T, 2*t)}, v{d}, v{d+1}\nv_cvt_pk_bf16_f32 v{dw(T, 2*t+1)}, v{d+2}, v{d+3}")
            if t % 2 == 1:
                u = 3 * T + t // 2
                a(f"buffer_store_dwordx4 {R(PK + 4*u)}, v{t0}, {S4(SRD_WS)}, s{10 if u < 4 else 11} offen offset:{1024*(u%4)}{SC}")
    a(f"buffer_store_dwordx4 {R(PK + 24)}, v{t0}, {S4(SRD_WS)}, s11 offen offset:2048{SC}")
    OF = 160
    WF = 60
    DA = 104
    WA = 4
    a(f"""
    s_cmp_ge_u32 s{S_LOC}, 28
    s_cbranch_scc1 g0_noa3
    s_lshl_b32 s14, s{S_RB64}, 2
    s_add_u32 s14, s14, s{S_WAVE}
    s_lshl_b32 s14, s14, 10
    s_add_u32 s14, s14, {WS_O}
    """)
    for h in range(16):
        a(f"buffer_load_dwordx4 {R(OF + 4*h)}, v{t0}, {S4(SRD_WS)}, s14 offen{SC}\ns_add_u32 s14, s14, 131072")
    a(f"""
    v_lshrrev_b32 v{WA}, 4, v{V_LANE}
    v_lshlrev_b32 v{WA}, 3, v{WA}
    v_bfe_u32 v{t1}, v{V_LANE}, 2, 2
    v_add_u32 v{WA}, v{WA}, v{t1}
    v_lshlrev_b32 v{WA}, 7, v{WA}
    v_bfe_u32 v{t1}, v{V_LANE}, 3, 2
    v_lshl_add_u32 v{WA}, v{t1}, 5, v{WA}
    v_and_b32 v{t1}, 3, v{V_LANE}
    v_lshl_add_u32 v{WA}, v{t1}, 3, v{WA}
    v_xor_b32 v{WA+1}, 32, v{WA}
    v_xor_b32 v{WA+2}, 64, v{WA}
    v_xor_b32 v{WA+3}, 96, v{WA}
    """)
    def wread(h):
        b = WF + 16 * (h % 2)
        return [f"ds_read_b64_tr_b16 {R(b + 4*tau + 2*jj, 2)}, v{WA+tau} offset:{LDS_WO + 4096*h + 512*jj}" for tau in range(4) for jj in range(2)]
    for f in wread(0): a(f)
    a("s_waitcnt vmcnt(16)")
    flag_store(a, 9, WS_F3, 2, 3)
    stamp(a, 9)
    for h in range(16):
        b = WF + 16 * (h % 2)
        a(f"s_waitcnt vmcnt({min(16 - h, 16)}) lgkmcnt(0)" if h > 0 else "s_waitcnt vmcnt(16) lgkmcnt(0)")
        mf = [f"v_mfma_f32_16x16x32_bf16 {R(DA + 4*tau)}, {R(b + 4*tau)}, {R(OF + 4*h)}, {'0' if h == 0 else R(DA + 4*tau)}" for tau in range(4)]
        interleave(a, mf, wread(h + 1) if h < 15 else [])
    a(f"""
    s_lshl_b32 s14, s{S_RB64}, 6
    s_lshl_b32 s15, s{S_WAVE}, 4
    s_add_u32 s14, s14, s15
    s_mul_i32 s14, s14, 1792
    s_lshl_b32 s15, s{S_CT}, 7
    s_add_u32 s14, s14, s15
    v_and_b32 v{t0}, 15, v{V_LANE}
    v_mul_u32_u24 v{t0}, 1792, v{t0}
    v_lshrrev_b32 v{t1}, 4, v{V_LANE}
    v_lshl_add_u32 v{t0}, v{t1}, 3, v{t0}
    """)
    for tau in range(4):
        d = DA + 4*tau
        a(f"""
        v_cvt_pk_bf16_f32 v{PK+2*tau}, v{d}, v{d+1}
        v_cvt_pk_bf16_f32 v{PK+2*tau+1}, v{d+2}, v{d+3}
        buffer_store_dwordx2 {R(PK+2*tau, 2)}, v{t0}, {S4(SRD_OUT)}, s14 offen offset:{32*tau}
        """)
    a("s_branch g0_done\ng0_noa3:\ns_waitcnt vmcnt(0)")
    flag_store(a, 9, WS_F3, 2, 3)
    a("g0_done:")
    stamp(a, 10)
    if Cfg.stamps: a("s_waitcnt vmcnt(0)")
    stamp(a, 11)
    stamp(a, 15, True)
    dump_stamps(a, 0)
    a("s_endpgm")

def dma(vm, tag, m0base, m0imm, vaddr, srd_, soff, lanes=64, sc=""):
    pre, post = "s_nop 0", ""
    if lanes == 16: pre, post = "s_mov_b64 exec, 0xffff", "\ns_mov_b64 exec, -1"
    if lanes == 32: pre, post = "s_mov_b32 exec_hi, 0", "\ns_mov_b32 exec_hi, -1"
    vm.op(tag, f"s_add_u32 m0, s{m0base}, {m0imm}\n{pre}\nbuffer_load_dwordx4 v{vaddr}, {S4(srd_)}, s{soff} offen{sc} lds{post}")

def x_dma_addrs(a, vXd, srow, rowbytes, permute, t0, t1, t2):
    if not permute:
        a(f"v_lshrrev_b32 v{t0}, 3, v{V_LANE}")
        o1, o2 = 8, 16
    else:
        a(f"""v_lshrrev_b32 v{t0}, 5, v{V_LANE}
        v_bfe_u32 v{t1}, v{V_LANE}, 3, 2
        v_lshl_add_u32 v{t0}, v{t0}, 3, v{t1}""")
        o1, o2 = 16, 4
    a(f"""
    v_add_u32 v{t0}, s{srow}, v{t0}
    v_mul_u32_u24 v{t0}, {rowbytes}, v{t0}
    v_and_b32 v{t1}, 7, v{V_LANE}
    v_lshrrev_b32 v{t2}, 4, v{V_LANE}
    v_xor_b32 v{t1}, v{t1}, v{t2}
    v_lshl_add_u32 v{vXd}, v{t1}, 4, v{t0}
    v_xor_b32 v{t1}, 4, v{t1}
    v_lshl_add_u32 v{vXd+1}, v{t1}, 4, v{t0}
    v_add_u32 v{vXd+1}, {o1*rowbytes}, v{vXd+1}
    v_add_u32 v{vXd+2}, {o2*rowbytes}, v{vXd}
    v_add_u32 v{vXd+3}, {o2*rowbytes}, v{vXd+1}
    """)

def g1_p1(a, typ):
    vXd, vWd = 4, 8
    t0, t1, t2, t3 = 17, 18, 19, 20
    sX, sW, sC, sT, sM0x, sM0w = 9, 10, 8, 11, 12, 13
    STAGE = 37888 if typ == 0 else 30720
    stepW = 64*2688 if typ == 0 else 128
    a(f"""
    s_lshl_b32 s{sT}, s6, 7
    s_lshl_b32 s14, s{S_WAVE}, 5
    s_add_u32 s{sT}, s{sT}, s14
    """)
    x_dma_addrs(a, vXd, sT, 896, typ == 1, t0, t1, t2)
    if typ == 0:
        a(f"""
        s_mul_i32 s{sT}, s{S_WAVE}, {16*2688}
        s_mul_i32 s14, s7, 336
        s_add_u32 s{sT}, s{sT}, s14
        """)
        for i in range(6):
            a(f"""
            v_add_u32 v{t0}, {64*i}, v{V_LANE}
            v_mul_u32_u24 v{t1}, 3121, v{t0}
            v_lshrrev_b32 v{t1}, 16, v{t1}
            v_mul_u32_u24 v{t2}, 21, v{t1}
            v_sub_u32 v{t0}, v{t0}, v{t2}
            v_and_b32 v{t2}, 8, v{t1}
            v_and_b32 v{t3}, 1, v{t1}
            v_lshl_add_u32 v{t2}, v{t3}, 2, v{t2}
            v_bfe_u32 v{t3}, v{t1}, 1, 2
            v_add_u32 v{t2}, v{t2}, v{t3}
            v_mul_u32_u24 v{t2}, 2688, v{t2}
            v_lshl_add_u32 v{t2}, v{t0}, 4, v{t2}
            v_add_u32 v{vWd+i}, s{sT}, v{t2}
            """)
        wbytes = 5376
    else:
        a(f"""
        s_and_b32 s{sT}, s7, 3
        s_mul_i32 s{sT}, s{sT}, 112
        s_mul_i32 s14, s{S_WAVE}, 28
        """)
        for i in range(4):
            a(f"""
            v_lshrrev_b32 v{t0}, 3, v{V_LANE}
            v_add3_u32 v{t0}, v{t0}, s14, {8*i}
            v_bfe_u32 v{t1}, v{t0}, 2, 2
            v_mul_u32_u24 v{t1}, 28, v{t1}
            v_lshrrev_b32 v{t2}, 4, v{t0}
            v_lshl_add_u32 v{t1}, v{t2}, 2, v{t1}
            v_and_b32 v{t2}, 3, v{t0}
            v_add3_u32 v{t1}, v{t1}, v{t2}, s{sT}
            v_mul_u32_u24 v{t1}, 896, v{t1}
            v_bfe_u32 v{t2}, v{t0}, 1, 3
            v_and_b32 v{t3}, 7, v{V_LANE}
            v_xor_b32 v{t2}, v{t2}, v{t3}
            v_lshl_add_u32 v{vWd+i}, v{t2}, 4, v{t1}
            """)
        wbytes = 3584
    a(f"""
    s_lshl_b32 s{sM0x}, s{S_WAVE}, 12
    s_mul_i32 s{sM0w}, s{S_WAVE}, {wbytes}
    s_add_u32 s{sM0w}, s{sM0w}, 16384
    s_waitcnt lgkmcnt(0)
    """)
    if typ == 0:
        srd(a, SRD_X, P_AX, 2048 * 896)
        srd(a, SRD_W, P_WQKV, 448 * 2688)
    else:
        srd(a, SRD_X, P_BX, 2048 * 896)
        a("s_cmp_lt_u32 s7, 4")
        srd_sel(a, SRD_W, P_DR, P_DI, 448 * 896)
    vm = VM(a)
    def issue(st):
        slot = st % 3
        a(f"s_lshl_b32 s{sX}, s{sC}, 7\ns_mul_i32 s{sW}, s{sC}, {stepW}")
        for i in range(4):
            dma(vm, st, sM0x, slot*STAGE + i*1024, vXd+i, SRD_X, sX)
        nw = 6 if typ == 0 else 4
        for i in range(nw):
            last = i == nw - 1
            dma(vm, st, sM0w, slot*STAGE + i*1024, vWd+i, SRD_W, sW, lanes=(64 if not last else (16 if typ == 0 else 32)))
        a(f"s_add_u32 s{sC}, s{sC}, 1\ns_cmp_eq_u32 s{sC}, 7\ns_cselect_b32 s{sC}, 0, s{sC}")
    stamp(a, 1)
    issue(0)
    epoch_load(a)
    issue(1)
    stamp(a, 2)
    for i in range(7):
        vm.wait(i)
        a("s_barrier")
        if i + 2 <= 6: issue(i + 2)

def epoch_load(a):
    a(f"""
    s_add_u32 s58, s{P_WS}, {WS_EPOCH}
    s_addc_u32 s59, s{P_WS+1}, 0
    s_load_dword s{S_TAG}, s[58:59], 0
    """)
def make_tag(a):
    a(f"s_mul_i32 s{S_TAG}, s{S_TAG}, 0x19660d\ns_add_u32 s{S_TAG}, s{S_TAG}, 0x3c6ef35f")

def g1_program(a):
    t0, t1, t2, t3 = 17, 18, 19, 20
    a(f"s_cmp_ge_u32 s{S_LOC}, 16\ns_cbranch_scc1 g1_p1b")
    g1_p1(a, 0)
    a("s_branch g1_p1done\ng1_p1b:")
    g1_p1(a, 1)
    a("g1_p1done:")
    stamp(a, 3)
    vXd, vL16, vPa, vPk, vPo, vPt, vVd, vWo = 4, 8, 9, 10, 11, 12, 13, 14
    sX, sE, sC, sM0x, sM0e, sEb, sXb = 9, 10, 8, 12, 13, 6, 7
    a(f"""
    s_waitcnt lgkmcnt(0)
    s_lshl_b32 s11, s{S_MB}, 7
    s_lshl_b32 s14, s{S_WAVE}, 5
    s_add_u32 s11, s11, s14
    """)
    make_tag(a)
    x_dma_addrs(a, vXd, 11, 4096, False, t0, t1, t2)
    a(f"s_cmp_lt_u32 s{S_KQ}, 2")
    srd_sel(a, SRD_X, P_CR, P_CI, 2048 * 4096)
    a(f"""
    v_lshlrev_b32 v{vL16}, 4, v{V_LANE}
    s_and_b32 s14, s{S_KQ}, 1
    s_lshl_b32 s{sXb}, s14, 11
    s_mul_i32 s{sEb}, s14, {32*7168}
    s_lshr_b32 s15, s{S_KQ}, 1
    s_lshl_b32 s15, s15, 2
    s_add_u32 s15, s15, s{S_NB}
    s_mul_i32 s11, s15, {AT_NB}
    s_add_u32 s{sEb}, s{sEb}, s11
    s_mul_i32 s11, s{S_WAVE}, 3584
    s_add_u32 s{sEb}, s{sEb}, s11
    s_add_u32 s{sEb}, s{sEb}, {WS_AT}
    s_add_u32 s{sM0e}, s11, {RING + 16384}
    s_lshl_b32 s{sM0x}, s{S_WAVE}, 12
    s_add_u32 s{sM0x}, s{sM0x}, {RING}
    s_lshl_b32 s15, s15, 4
    s_lshl_b32 s14, s14, 3
    s_add_u32 s15, s15, s14
    s_add_u32 s15, s15, 128
    s_lshl_b32 s56, s15, 9
    v_and_b32 v{vPa}, 31, v{V_LANE}
    v_lshlrev_b32 v{vPa}, 7, v{vPa}
    s_and_b32 s{sC}, s{S_LOC}, 7
    s_lshl_b32 s{sC}, s{sC}, 1
    s_lshl_b32 s14, s{S_NB}, 2
    s_add_u32 s{sC}, s{sC}, s14
    """)
    vm = VM(a)
    def issueX(st):
        a(f"s_add_u32 s14, s{sC}, {st}\ns_and_b32 s14, s14, 15\ns_lshl_b32 s{sX}, s14, 7\ns_add_u32 s{sX}, s{sX}, s{sXb}")
        for i in range(4):
            dma(vm, st, sM0x, (st % 3)*BST + i*1024, vXd+i, SRD_X, sX)
    def issueE(st):
        a(f"s_add_u32 s14, s{sC}, {st}\ns_and_b32 s14, s14, 15\ns_mul_i32 s{sE}, s14, 14336\ns_add_u32 s{sE}, s{sE}, s{sEb}")
        a(f"s_add_u32 m0, s{sM0e}, {(st % 3)*BST}\ns_nop 0")
        for i in range(3):
            vm.op(st, f"buffer_load_dwordx4 v{vL16}, {S4(SRD_WS)}, s{sE} offen offset:{1024*i}{SC} lds")
        vm.op(st, f"s_mov_b32 exec_hi, 0\nbuffer_load_dwordx4 v{vL16}, {S4(SRD_WS)}, s{sE} offen offset:3072{SC} lds\ns_mov_b32 exec_hi, -1")
    for st in range(3): issueX(st)
    for kind in range(3):
        a(f"""
        s_add_u32 s14, s{S_H}, {16*kind}
        s_mul_i32 s15, s14, 43
        s_lshr_b32 s15, s15, 8
        s_mul_i32 s11, s15, 6
        s_sub_u32 s14, s14, s11
        s_cmp_ge_u32 s14, 3
        s_cselect_b32 s14, 1, 0
        s_lshl_b32 s15, s15, 6
        s_add_u32 s{58+kind}, s15, s14
        """)
    a(f"""
    v_mov_b32 v{t0}, s60
    v_mov_b32 v{t1}, s59
    v_cmp_gt_u32 vcc, 16, v{V_LANE}
    v_mov_b32 v{t2}, s58
    s_nop 0
    v_cndmask_b32 v{t0}, v{t0}, v{t1}, vcc
    v_cmp_gt_u32 vcc, 8, v{V_LANE}
    v_bfe_u32 v{t1}, v{V_LANE}, 1, 2
    v_min_u32 v{t1}, 2, v{t1}
    v_cndmask_b32 v{t0}, v{t0}, v{t2}, vcc
    v_sub_u32 v{t1}, s{S_J}, v{t1}
    v_max_i32 v{t1}, 0, v{t1}
    v_lshl_add_u32 v{t0}, v{t1}, 2, v{t0}
    v_and_b32 v{t1}, 1, v{V_LANE}
    v_lshl_add_u32 v{t0}, v{t1}, 1, v{t0}
    v_lshlrev_b32 v{vPk}, 7, v{t0}
    v_bfe_u32 v{t0}, v{V_LANE}, 1, 4
    v_lshl_add_u32 v{t0}, v{t0}, 6, v{t1}
    v_lshlrev_b32 v{vPo}, 7, v{t0}
    s_lshl_b32 s57, s{S_RB64}, 8
    s_add_u32 s57, s57, {WS_F2}
    v_lshrrev_b32 v{t0}, 4, v{V_LANE}
    v_lshlrev_b32 v{t1}, 2, v{t0}
    v_sub_u32 v{t1}, v{V_LANE}, v{t1}
    v_and_b32 v{t1}, 15, v{t1}
    v_lshlrev_b32 v{t1}, 4, v{t1}
    v_lshl_add_u32 v{vVd}, v{t0}, 8, v{t1}
    """)
    a("s_barrier")
    stamp(a, 4)
    poll_blocking(a, vPa, 56, vPt, "pab")
    vm.drained()
    stamp(a, 5)
    for st in range(3): issueE(st)
    vm.wait(0)
    a("s_barrier")
    stamp(a, 6)
    a("s_mov_b32 s61, 0")
    srd(a, SRD_W, P_WO, 448 * 896)
    def kv_loads():
        a(f"""
        s_lshl_b32 s58, s{S_H}, 17
        s_add_u32 s58, s58, {WS_QKV + 16*131072}
        s_lshl_b32 s59, s{S_J}, 3
        s_add_u32 s59, s59, s{S_WAVE}
        s_sub_u32 s59, s59, 16
        s_lshl_b32 s60, s{S_WAVE}, 10
        """)
        for i in range(6):
            a(f"""s_add_u32 s14, s59, {4*i}
            s_max_i32 s14, s14, 0
            s_lshl_b32 s14, s14, 10
            s_add_u32 s14, s14, s58
            s_add_u32 s15, s14, {16*131072}""")
            dma(vm, "kv", 60, LDS_K + 4096*i, vL16, SRD_WS, 14, sc=SC)
            dma(vm, "kv", 60, LDS_V + 4096*i, vVd, SRD_WS, 15, sc=SC)
    def kv_patch():
        l = a.newlabel("nopatch")
        a(f"""
        s_cmp_ge_u32 s{S_J}, 2
        s_cbranch_scc1 {l}
        v_lshrrev_b32 v{t0}, 4, v{V_LANE}
        v_lshlrev_b32 v{t0}, 12, v{t0}
        v_and_b32 v{t1}, 15, v{V_LANE}
        v_lshl_add_u32 v{t0}, v{t1}, 4, v{t0}
        v_add_u32 v{t0}, s60, v{t0}
        v_mov_b32 v{t1}, 0xf14a
        s_cmp_eq_u32 s{S_J}, 0
        s_cselect_b32 exec_hi, -1, 0
        ds_write_b16 v{t0}, v{t1} offset:{LDS_K + 3*256 + 8}
        s_mov_b32 exec_hi, -1
        s_waitcnt lgkmcnt(0)
        {l}:
        """)
    def wo_loads():
        a(f"""
        v_lshrrev_b32 v{t0}, 3, v{V_LANE}
        v_mul_u32_u24 v{t0}, 896, v{t0}
        v_and_b32 v{t1}, 7, v{V_LANE}
        v_bfe_u32 v{t2}, v{V_LANE}, 4, 1
        v_lshlrev_b32 v{t2}, 1, v{t2}
        v_xor_b32 v{t1}, v{t1}, v{t2}
        v_lshl_add_u32 v{vWo}, v{t1}, 4, v{t0}
        v_xor_b32 v{t1}, 4, v{t1}
        v_lshl_add_u32 v{vWo+1}, v{t1}, 4, v{t0}
        v_mov_b32 v{t2}, 0x7ffffff0
        v_cmp_gt_u32 vcc, 32, v{V_LANE}
        s_mul_i32 s58, s{S_WAVE}, {28*896}
        s_lshl_b32 s14, s{S_CT}, 7
        v_cndmask_b32 v{vWo+2}, v{t2}, v{vWo+1}, vcc
        s_add_u32 s58, s58, s14
        s_lshl_b32 s60, s{S_WAVE}, 12
        """)
        for i in range(4):
            for qd in range(4):
                a(f"s_add_u32 s14, s58, {(4*i*28 + 8*qd)*896}")
                va = vWo + (2 if qd == 3 else qd % 2)
                dma(vm, "wo", 60, LDS_WO + 16384*i + 1024*qd, va, SRD_W, 14)
    def async_check(vaddr, soff, name):
        l = a.newlabel(name)
        a(f"v_cmp_ne_u32 vcc, s{S_TAG}, v{vPt}\ns_cbranch_vccz {l}")
        poll_blocking(a, vaddr, soff, vPt, name + "b")
        a(f"{l}:")
    for s in range(1, 17):
        if s == Cfg.KV_POLL + 1:
            vm.wait("pk")
            async_check(vPk, 61, "pk")
            kv_loads()
        if s == Cfg.O_POLL + 1:
            vm.wait("po")
            async_check(vPo, 57, "po")
        if s == Cfg.NA:
            vm.wait("kv")
            kv_patch()
        if s == 16:
            vm.wait("wo")
        if s <= 15: vm.wait(s)
        a("s_barrier")
        if s == Cfg.KV_POLL:
            vm.op("pk", f"buffer_load_dword v{vPt}, v{vPk}, {S4(SRD_WS)}, s61 offen sc1")
        if s == Cfg.O_POLL:
            vm.op("po", f"buffer_load_dword v{vPt}, v{vPo}, {S4(SRD_WS)}, s57 offen sc1")
        if s + 2 <= 15:
            issueX(s + 2); issueE(s + 2)
        if s == Cfg.NA + 1:
            wo_loads()
        if s == Cfg.NA: stamp(a, 7)
    stamp(a, 8)
    a(f"""
    s_lshl_b32 s9, s{S_MB}, 2
    s_add_u32 s9, s9, s{S_NB}
    s_lshl_b32 s9, s9, 4
    s_add_u32 s9, s9, s{S_KQ}
    s_lshl_b32 s56, s9, 7
    s_add_u32 s56, s56, {WS_F3}
    v_and_b32 v{vPa}, 3, v{V_LANE}
    v_lshlrev_b32 v{vPa}, 9, v{vPa}
    s_lshl_b32 s10, s9, 13
    s_add_u32 s10, s10, {WS_PQ}
    s_lshl_b32 s14, s{S_WAVE}, 10
    s_cmp_eq_u32 s{S_WAVE}, 3
    s_cselect_b32 s14, 6144, s14
    s_cselect_b32 s15, 0, 3072
    s_add_u32 s10, s10, s14
    s_add_u32 s11, s10, s15
    s_lshl_b32 s12, s{S_MB}, 7
    s_lshl_b32 s14, s{S_KQ}, 5
    s_add_u32 s12, s12, s14
    s_mul_i32 s12, s12, 1792
    s_mul_i32 s14, s{S_NB}, 224
    s_add_u32 s12, s12, s14
    s_lshl_b32 s14, s{S_WAVE}, 4
    s_add_u32 s12, s12, s14
    s_add_u32 s12, s12, 896
    s_add_u32 s13, s12, {16*1792}
    v_and_b32 v{t0}, 15, v{V_LANE}
    v_mul_u32_u24 v{t0}, 1792, v{t0}
    v_lshrrev_b32 v{t1}, 4, v{V_LANE}
    v_mul_u32_u24 v{t1}, 56, v{t1}
    v_add_u32 v{vWo}, v{t0}, v{t1}
    s_mov_b32 s58, 0xffff0000
    """)
    poll_blocking(a, vPa, 56, vPt, "pp")
    stamp(a, 9)
    D = 24
    for u in range(2):
        for q in range(4):
            a(f"buffer_load_dwordx4 {R(D + 16*u + 4*q)}, v{vL16}, {S4(SRD_WS)}, s{10+u} offen{SC}\ns_add_u32 s{10+u}, s{10+u}, 32768")
    for u in range(2):
        a(f"s_waitcnt vmcnt({4 if u == 0 else 1})")
        for i in range(4):
            r = [D + 16*u + 4*q + i for q in range(4)]
            lo, hi = 60, 64
            for q in range(4):
                a(f"v_lshlrev_b32 v{lo+q}, 16, v{r[q]}\nv_and_b32 v{hi+q}, s58, v{r[q]}")
            for b in (lo, hi):
                a(f"v_add_f32 v{b}, v{b}, v{b+1}\nv_add_f32 v{b+2}, v{b+2}, v{b+3}")
            a(f"v_sub_f32 v{lo}, v{lo}, v{lo+2}\nv_sub_f32 v{hi}, v{hi}, v{hi+2}")
            a(f"v_cvt_pk_bf16_f32 v{68+4*u+i}, v{lo}, v{hi}")
        if u == 0:
            a(f"""
            s_cmp_eq_u32 s{S_WAVE}, 3
            s_cbranch_scc1 g1_tail
            buffer_store_dwordx4 {R(68)}, v{vWo}, {S4(SRD_OUT)}, s12 offen
            """)
        else:
            a(f"buffer_store_dwordx4 {R(72)}, v{vWo}, {S4(SRD_OUT)}, s13 offen\ns_branch g1_done")
    a(f"""
    g1_tail:
    buffer_store_dwordx2 {R(68,2)}, v{vWo}, {S4(SRD_OUT)}, s12 offen
    buffer_store_dwordx2 {R(70,2)}, v{vWo}, {S4(SRD_OUT)}, s13 offen
    s_cmp_lg_u32 s2, 0
    s_cbranch_scc1 g1_done
    v_lshlrev_b32 v{vPa}, 9, v{V_LANE}
    """)
    for i in range(4):
        a(f"s_mov_b32 s56, {WS_F1 + 32768*i}")
        poll_blocking(a, vPa, 56, vPt, "pe")
    a(f"""
    s_mov_b32 s14, {WS_EPOCH}
    v_mov_b32 v{t0}, 0
    v_mov_b32 v{t1}, s{S_TAG}
    s_mov_b64 exec, 1
    buffer_store_dword v{t1}, v{t0}, {S4(SRD_WS)}, s14 offen sc1
    s_mov_b64 exec, -1
    g1_done:
    """)
    stamp(a, 10)
    if Cfg.stamps: a("s_waitcnt vmcnt(0)")
    stamp(a, 11)
    stamp(a, 15, True)
    dump_stamps(a, 1)
    a("s_endpgm")

def build():
    a = Asm()
    kernel_begin(a, K)
    a(f"""
    s_cmp_ge_u32 s2, 256
    s_cbranch_scc1 k_end
    s_load_dwordx16 s[16:31], s[0:1], 0
    s_load_dwordx4 s[32:35], s[0:1], 64
    s_load_dwordx2 s[36:37], s[0:1], 80
    v_and_b32 v{V_LANE}, 63, v0
    v_lshrrev_b32 v2, 6, v0
    s_and_b32 s{S_XCD}, s2, 7
    v_readfirstlane_b32 s15, v2
    s_lshr_b32 s{S_LOC}, s2, 3
    """)
    stamp(a, 0); stamp(a, 14, True)
    a(f"""
    s_and_b32 s6, s{S_XCD}, 3
    s_lshl_b32 s6, s6, 2
    s_and_b32 s14, s{S_LOC}, 3
    s_add_u32 s6, s6, s14
    s_lshr_b32 s7, s{S_XCD}, 2
    s_lshl_b32 s7, s7, 2
    s_bfe_u32 s13, s{S_LOC}, 0x20002
    s_add_u32 s7, s7, s13
    s_add_u32 s8, s14, s13
    s_lshl_b32 s8, s8, 1
    s_cmp_ge_u32 s8, 7
    s_cselect_b32 s14, 7, 0
    s_sub_u32 s8, s8, s14
    s_and_b32 s{S_WAVE}, s15, 3
    s_cmp_ge_u32 s15, 4
    s_cbranch_scc1 g1_entry
    """)
    jobs2(a)
    a("s_waitcnt lgkmcnt(0)")
    epoch_load(a)
    srd(a, SRD_WS, P_WS, WS_SIZE)
    srd(a, SRD_OUT, P_OUT, 2048 * 1792)
    a("s_waitcnt lgkmcnt(0)")
    make_tag(a)
    g0_program(a)
    a("g1_entry:")
    g1_pre = Asm()
    g1_program_wrapped(a)
    a("k_end:\ns_endpgm")
    return file_text_single(a.text())

def g1_program_wrapped(a):
    jobs2(a)
    a("s_waitcnt lgkmcnt(0)")
    srd(a, SRD_WS, P_WS, WS_SIZE)
    srd(a, SRD_OUT, P_OUT, 2048 * 1792)
    g1_program(a)

def file_text_single(body):
    h = HEADER_DOC + f"; @launch grid=(256,1,1) block=(512,1,1) lds={LDS_TOTAL}\n"
    return h + '.amdgcn_target "amdgcn-amd-amdhsa--gfx950"\n.text\n' + body + '.section .rodata,"a"\n' + descriptor(K, 256)

if __name__ == "__main__":
    out = sys.argv[1] if len(sys.argv) > 1 else "k2.s"
    Cfg.stamps = "stamps" in sys.argv
    for arg in sys.argv[2:]:
        if "=" in arg:
            k, v = arg.split("="); setattr(Cfg, k, int(v))
    open(out, "w").write(build())
```

```python
import sys, math, struct
from asmlib import *

NAME = "concat_heads__sliding_block__spectral_fnet__prompt"
K = NAME + "_kernel"

WS_F1, WS_F2, WS_F3, WS_EPOCH = 0x0, 0x20000, 0x40000, 0x60000
WS_QKV = 0x100000
WS_AT = 0x800000
AT_NB = 64 * 7168
WS_O = 0xC00000
WS_PQ = 0xE00000
WS_STAMP = 0x1700000
WS_SIZE = 0x1800000

C2 = (28 ** -0.5) * math.log2(math.e)
def f32bits(x):
    return struct.unpack("<I", struct.pack("<f", x))[0]
NEGBIG = f32bits(-1e30)

S_WAVE, S_XCD, S_LOC = 3, 4, 5
P_AX, P_WQKV, P_WO, P_BX, P_CR, P_CI, P_DR, P_DI, P_OUT, P_DBG, P_WS = 16, 18, 20, 22, 24, 26, 28, 30, 32, 34, 36
S_TAG = 38
SRD_X, SRD_W, SRD_WS, SRD_OUT = 40, 44, 48, 52
S_ST = 64
V_LANE = 1
SC = " sc1"
POLL_LIMIT = 20000

SLOT = 32768
LDS_TOTAL = 5 * SLOT
def item_base(n): return ((n + 4) % 5) * SLOT
FS = 4
SRD_C = 56

class Cfg:
    stamps = False
    NA = 6
    LA = 12
    LA1 = 12
    LA0 = 2
    LAQ = 6
    NXPRE = 3
    KV_POLL = 1
    O_POLL = 11
    SLEEP = 4
    NOCOMP = 0
    NOLOAD = 0

def srd(a, d, p, nbytes):
    a(f"s_mov_b32 s{d}, s{p}\ns_and_b32 s{d+1}, s{p+1}, 0xffff\ns_mov_b32 s{d+2}, {nbytes}\ns_mov_b32 s{d+3}, 0x20000")
def srd_sel(a, d, p0, p1, nbytes):
    a(f"""s_cselect_b32 s{d}, s{p0}, s{p1}
    s_cselect_b32 s{d+1}, s{p0+1}, s{p1+1}
    s_and_b32 s{d+1}, s{d+1}, 0xffff
    s_mov_b32 s{d+2}, {nbytes}
    s_mov_b32 s{d+3}, 0x20000""")
def R(b, n=4):
    return f"v[{b}:{b+n-1}]"
def S4(d):
    return f"s[{d}:{d+3}]"

def interleave(a, mfmas, fillers):
    n, m = len(mfmas), len(fillers)
    k = 0
    for i, mf in enumerate(mfmas):
        a(mf)
        want = min(m, ((i + 1) * m + n - 1) // n)
        while k < want:
            a(fillers[k]); k += 1
    while k < m:
        a(fillers[k]); k += 1

def stamp(a, i, cyc=False):
    if Cfg.stamps:
        a(f"{'s_memtime' if cyc else 's_memrealtime'} s[{S_ST+2*i}:{S_ST+2*i+1}]")
def dump_stamps(a, grp, n=16):
    if not Cfg.stamps: return
    a(f"""
    s_waitcnt lgkmcnt(0)
    s_lshl_b32 s14, s2, 3
    s_add_u32 s14, s14, s{S_WAVE}
    s_add_u32 s14, s14, {4*grp}
    s_lshl_b32 s14, s14, 6
    s_add_u32 s14, s14, {WS_STAMP}
    v_mov_b32 v2, 0
    """)
    for i in range(n):
        a(f"v_mov_b32 v3, s{S_ST+2*i}\nbuffer_store_dword v3, v2, {S4(SRD_WS)}, s14 offen offset:{4*i}")

class VM:
    def __init__(self, a): self.a = a; self.q = []
    def op(self, tag, text):
        if Cfg.NOLOAD and " lds" in text:
            text = "\n".join(l for l in text.split("\n") if " lds" not in l)
            if tag in ("pk", "po"): raise Exception
            self.a(text); return
        self.a(text); self.q.append(tag)
    def wait(self, tag, extra=""):
        idx = max(i for i, t in enumerate(self.q) if t == tag) if tag in self.q else -1
        n = len(self.q) - 1 - idx
        assert n <= 63, n
        self.a(f"s_waitcnt vmcnt({n}){extra}")
        self.q = self.q[idx + 1:]
    def drained(self): self.q = []

def poll_blocking(a, vaddr, soff, vt, name):
    l = a.newlabel(name)
    a(f"""
    s_mov_b32 s39, 0
    {l}:
    buffer_load_dword v{vt}, v{vaddr}, {S4(SRD_WS)}, s{soff} offen sc1
    s_add_u32 s39, s39, 1
    s_waitcnt vmcnt(0)
    v_cmp_ne_u32 vcc, s{S_TAG}, v{vt}
    s_cmp_ge_u32 s39, {POLL_LIMIT}
    s_cbranch_scc1 {l}_x
    s_cbranch_vccz {l}_x
    s_sleep {Cfg.SLEEP}
    s_branch {l}
    {l}_x:
    """)

def flag_store(a, sidx, base, vt0, vt1):
    a(f"""
    s_lshl_b32 s14, s{sidx}, {FS}
    s_add_u32 s14, s14, {base}
    v_mov_b32 v{vt0}, 0
    v_mov_b32 v{vt1}, s{S_TAG}
    s_mov_b64 exec, 1
    buffer_store_dword v{vt1}, v{vt0}, {S4(SRD_WS)}, s14 offen sc1
    s_mov_b64 exec, -1
    """)

def xfrag_addrs(a, vX0, vX1, t0, t1, sbase):
    a(f"""
    v_and_b32 v{t0}, 15, v{V_LANE}
    v_lshrrev_b32 v{t1}, 1, v{t0}
    v_lshrrev_b32 v{vX0}, 4, v{V_LANE}
    v_xor_b32 v{vX0}, v{vX0}, v{t1}
    v_lshlrev_b32 v{vX0}, 4, v{vX0}
    v_lshl_add_u32 v{vX0}, v{t0}, 7, v{vX0}
    v_add_u32 v{vX0}, s{sbase}, v{vX0}
    v_xor_b32 v{vX1}, 64, v{vX0}
    """)

def frontload(a, mfmas, fillers):
    k = 0
    for mf in mfmas:
        a(mf)
        if k < len(fillers):
            a(fillers[k]); k += 1
    while k < len(fillers):
        a(fillers[k]); k += 1

def gemm_loop(a, name, n_iter, STAGE, NSLOT, reads, mfmas, addr_regs, sSlot, sCnt, sD):
    l = a.newlabel(name)
    if Cfg.NOCOMP:
        reads = lambda ks, buf: []
        mfmas = lambda buf: ["s_nop 0"]
    a(f"s_mov_b32 s{sCnt}, {n_iter}\n{l}:")
    a("s_waitcnt lgkmcnt(0)")
    pre = [f"s_add_u32 s{sSlot}, s{sSlot}, 1\ns_cmp_eq_u32 s{sSlot}, {NSLOT}",
           f"s_cselect_b32 s{sD}, {-(NSLOT-1)}, 1\ns_cselect_b32 s{sSlot}, 0, s{sSlot}\ns_mul_i32 s{sD}, s{sD}, {STAGE}"]
    pre += [f"v_add_u32 v{r}, s{sD}, v{r}" for r in addr_regs]
    frontload(a, mfmas(0), reads(1, 1) + pre)
    a("s_waitcnt lgkmcnt(0)\ns_barrier")
    frontload(a, mfmas(1), reads(0, 0) + [f"s_sub_u32 s{sCnt}, s{sCnt}, 1\ns_cmp_lg_u32 s{sCnt}, 0"])
    a(f"s_cbranch_scc1 {l}")

def g0_a1(a):
    STAGE = 37888
    vX0, vX1, vWa = 14, 15, 16
    t0, t1 = 17, 18
    FR, ACC = 24, 104
    a(f"s_lshr_b32 s14, s{S_WAVE}, 1\ns_lshl_b32 s14, s14, 13")
    xfrag_addrs(a, vX0, vX1, t0, t1, 14)
    a(f"""
    s_and_b32 s14, s{S_WAVE}, 1
    s_mul_i32 s14, s14, 168
    s_add_u32 s14, s14, 16384
    v_lshrrev_b32 v{t0}, 2, v{V_LANE}
    v_mul_u32_u24 v{t0}, 672, v{t0}
    v_and_b32 v{t1}, 3, v{V_LANE}
    v_lshl_add_u32 v{t0}, v{t1}, 3, v{t0}
    v_add_u32 v{vWa}, s14, v{t0}
    """)
    for i in range(96):
        a(f"v_mov_b32 v{ACC+i}, 0")
    def reads(ks, buf):
        b = FR + 40 * buf
        x = [f"ds_read_b128 {R(b + 4*T)}, v{vX1 if ks else vX0} offset:{2048*T}" for T in range(4)]
        w = []
        for ct in range(6):
            sg, pi = ct // 2, ct % 2
            for j in range(2):
                w.append(f"ds_read_b64_tr_b16 {R(b + 16 + 4*ct + 2*j, 2)}, v{vWa} offset:{(32*ks + j)*336 + (7*sg + 4*pi)*8}")
        return w[:2] + x + w[2:]
    def mfmas(buf):
        b = FR + 40 * buf
        return [f"v_mfma_f32_16x16x32_bf16 {R(ACC + (ct*4+T)*4)}, {R(b + 16 + 4*ct)}, {R(b + 4*T)}, {R(ACC + (ct*4+T)*4)}"
                for ct in range(6) for T in range(4)]
    a("s_mov_b32 s9, 0\ns_barrier")
    stamp(a, 1)
    for f in reads(0, 0): a(f)
    gemm_loop(a, "a1", 7, STAGE, 4, reads, mfmas, [vX0, vX1, vWa], 9, 10, 11)
    stamp(a, 2)
    a(f"""
    s_waitcnt lgkmcnt(0)
    s_mul_i32 s9, s7, 6
    s_and_b32 s14, s{S_WAVE}, 1
    s_mul_i32 s14, s14, 3
    s_add_u32 s9, s9, s14
    s_lshl_b32 s10, s6, 3
    s_lshr_b32 s14, s{S_WAVE}, 1
    s_lshl_b32 s14, s14, 2
    s_add_u32 s10, s10, s14
    s_lshl_b32 s10, s10, 10
    s_add_u32 s10, s10, {WS_QKV}
    v_lshlrev_b32 v{t0}, 4, v{V_LANE}
    s_mov_b32 s56, 0
    s_mov_b32 s57, 0xffff0000
    """)
    for sg in range(3):
        a(f"""
        s_add_u32 s11, s9, {sg}
        s_lshl_b32 s12, s11, 17
        s_add_u32 s12, s12, s10
        s_cmp_lt_u32 s11, 16
        s_cselect_b32 s60, {f32bits(C2)}, 1.0
        s_cselect_b32 s61, {f32bits(C2)}, 1.0
        s_sub_u32 s14, s11, 16
        s_cmp_lt_u32 s14, 16
        s_cselect_b32 s14, 0, 0x3f80
        v_mov_b32 v{t1}, s14
        """)
        for T in range(4):
            d0 = ACC + ((2*sg)*4 + T)*4
            d1 = ACC + ((2*sg+1)*4 + T)*4
            o = FR + 4*((sg*4 + T) % 8)
            for d in (d0, d0+2, d1, d1+2):
                a(f"v_pk_mul_f32 {R(d,2)}, {R(d,2)}, s[60:61]")
            a(f"""
            v_cvt_pk_bf16_f32 v{o}, v{d0}, v{d0+1}
            v_cvt_pk_bf16_f32 v{o+1}, v{d0+2}, v{d0+3}
            v_cvt_pk_bf16_f32 v{o+2}, v{d1}, v{d1+1}
            v_cvt_pk_bf16_f32 v{o+3}, v{d1+2}, v{d1+3}
            v_cndmask_b32 v{o+2}, v{o+2}, v{t1}, s[56:57]
            v_cndmask_b32 v{o+3}, v{o+3}, 0, s[56:57]
            buffer_store_dwordx4 {R(o)}, v{t0}, {S4(SRD_WS)}, s12 offen offset:{1024*T}{SC}
            """)
    a(f"""
    s_lshl_b32 s9, s7, 4
    s_add_u32 s9, s9, s6
    s_lshl_b32 s9, s9, 2
    s_add_u32 s9, s9, s{S_WAVE}
    """)

B_X0, B_X1, B_E0, B_E1 = 14, 15, 16, 21
B_FR, B_ACC = 24, 104

def g0_bs(a):
    STAGE = SLOT
    t0, t1 = 17, 18
    FR, ACC = B_FR, B_ACC
    a(f"s_lshl_b32 s14, s{S_WAVE}, 12\ns_add_u32 s14, s14, {2*SLOT}")
    xfrag_addrs(a, B_X0, B_X1, t0, t1, 14)
    a(f"""
    v_subrev_u32 v{B_E0}, s14, v{B_X0}
    v_add_u32 v{B_E0}, {2*SLOT + 16384}, v{B_E0}
    v_xor_b32 v{B_E1}, 64, v{B_E0}
    """)
    for i in range(56):
        a(f"v_mov_b32 v{ACC+i}, 0")
    def reads(ks, buf):
        b = FR + 36 * buf
        f = [f"ds_read_b128 {R(b + 4*T)}, v{B_X1 if ks else B_X0} offset:{2048*T}" for T in range(2)]
        f += [f"ds_read_b128 {R(b + 8 + 4*t)}, v{B_E1 if ks else B_E0} offset:{2048*t}" for t in range(7)]
        return f
    def mfmas(buf):
        b = FR + 36 * buf
        return [f"v_mfma_f32_16x16x32_bf16 {R(ACC + (t*2+T)*4)}, {R(b + 4*T)}, {R(b + 8 + 4*t)}, {R(ACC + (t*2+T)*4)}"
                for t in range(7) for T in range(2)]
    a("s_mov_b32 s9, 2\ns_barrier")
    stamp(a, 1)
    for f in reads(0, 0): a(f)
    gemm_loop(a, "bs", 7, STAGE, 5, reads, mfmas, [B_X0, B_X1, B_E0, B_E1], 9, 10, 11)
    stamp(a, 2)
    a(f"""
    s_waitcnt lgkmcnt(0)
    s_mul_i32 s9, s7, {AT_NB}
    s_lshl_b32 s10, s6, 2
    s_add_u32 s10, s10, s{S_WAVE}
    s_mul_i32 s10, s10, 7168
    s_add_u32 s9, s9, s10
    s_add_u32 s9, s9, {WS_AT}
    s_add_u32 s10, s9, 4096
    v_lshlrev_b32 v{t0}, 4, v{V_LANE}
    """)
    for t in range(7):
        d0 = ACC + (t*2)*4
        d1 = d0 + 4
        o = FR + 4*t
        a(f"""
        v_cvt_pk_bf16_f32 v{o}, v{d0}, v{d0+1}
        v_cvt_pk_bf16_f32 v{o+1}, v{d0+2}, v{d0+3}
        v_cvt_pk_bf16_f32 v{o+2}, v{d1}, v{d1+1}
        v_cvt_pk_bf16_f32 v{o+3}, v{d1+2}, v{d1+3}
        buffer_store_dwordx4 {R(o)}, v{t0}, {S4(SRD_WS)}, s{9 if t < 4 else 10} offen offset:{1024*(t%4)}{SC}
        """)
    a(f"""
    s_lshl_b32 s9, s7, 4
    s_add_u32 s9, s9, s6
    s_add_u32 s9, s9, 128
    s_lshl_b32 s9, s9, 2
    s_add_u32 s9, s9, s{S_WAVE}
    """)

S_MB, S_NB, S_KQ, S_H, S_J, S_RB64, S_CT = 96, 97, 98, 99, 100, 101, 63

def jobs2(a):
    a(f"""
    s_lshr_b32 s{S_KQ}, s{S_XCD}, 1
    s_and_b32 s{S_MB}, s{S_XCD}, 1
    s_lshl_b32 s{S_MB}, s{S_MB}, 3
    s_and_b32 s14, s{S_LOC}, 7
    s_add_u32 s{S_MB}, s{S_MB}, s14
    s_lshr_b32 s{S_NB}, s{S_LOC}, 3
    s_lshl_b32 s{S_H}, s{S_XCD}, 1
    s_lshr_b32 s14, s{S_LOC}, 4
    s_add_u32 s{S_H}, s{S_H}, s14
    s_and_b32 s{S_J}, s{S_LOC}, 15
    s_mul_i32 s14, s{S_LOC}, 37
    s_lshr_b32 s14, s14, 8
    s_mul_i32 s15, s14, 7
    s_sub_u32 s{S_CT}, s{S_LOC}, s15
    s_min_u32 s14, s14, 3
    s_lshl_b32 s{S_RB64}, s{S_XCD}, 2
    s_add_u32 s{S_RB64}, s{S_RB64}, s14
    """)

A_Q = 160
A_CM0, A_CM8 = 168, 184
A_NM = 200
A_O = 216
A_S0, A_S1 = 232, 60
A_KF = 76
A_P = 248
A_VF = 96
A_VF2 = 4
A_KA, A_VA0, A_VA1, A_M0, A_M1, A_QA = 12, 13, 19, 20, 22, 23

def g0_attn_setup(a):
    t0, t1 = 17, 18
    a(f"""
    v_and_b32 v{t0}, 31, v{V_LANE}
    v_lshrrev_b32 v{t1}, 5, v{V_LANE}
    v_lshlrev_b32 v{t1}, 2, v{t1}
    v_sub_u32 v{t0}, v{t0}, v{t1}
    v_mov_b32 v{t1}, {NEGBIG}
    """)
    for i in range(16):
        kk = 8*(i//4) + i % 4
        a(f"""
        v_cmp_gt_i32 vcc, {kk}, v{t0}
        s_nop 1
        v_cndmask_b32 v{A_CM0+i}, v{t1}, 0, vcc
        v_cndmask_b32 v{A_CM8+i}, 0, v{t1}, vcc
        """)
    a(f"""
    v_bfe_u32 v{t0}, v{V_LANE}, 4, 1
    v_lshrrev_b32 v{t1}, 5, v{V_LANE}
    v_lshlrev_b32 v{t0}, 10, v{t0}
    v_lshl_add_u32 v{t0}, v{t1}, 8, v{t0}
    v_and_b32 v{t1}, 15, v{V_LANE}
    v_lshl_add_u32 v{A_QA}, v{t1}, 4, v{t0}
    s_lshl_b32 s14, s{S_WAVE}, 11
    s_add_u32 s15, s14, {item_base(Cfg.NA)}
    v_add_u32 v{A_KA}, s15, v{A_QA}
    """)
    a(f"""
    v_bfe_u32 v{t0}, v{V_LANE}, 4, 1
    v_bfe_u32 v{t1}, v{V_LANE}, 1, 1
    v_lshl_add_u32 v{t0}, v{t0}, 1, v{t1}
    v_lshrrev_b32 v{t1}, 5, v{V_LANE}
    v_add_u32 v{t1}, v{t1}, v{t0}
    v_and_b32 v{t1}, 3, v{t1}
    v_lshlrev_b32 v{t1}, 6, v{t1}
    v_lshl_add_u32 v{t0}, v{t0}, 8, v{t1}
    v_bfe_u32 v{t1}, v{V_LANE}, 2, 2
    v_lshl_add_u32 v{t0}, v{t1}, 4, v{t0}
    v_and_b32 v{t1}, 1, v{V_LANE}
    v_lshl_add_u32 v{t0}, v{t1}, 3, v{t0}
    s_add_u32 s15, s14, {item_base(Cfg.NA + 1)}
    v_add_u32 v{A_VA0}, s15, v{t0}
    v_xor_b32 v{A_VA1}, 128, v{A_VA0}
    """)

def g0_qload(a):
    a(f"""
    s_lshl_b32 s14, s{S_H}, 17
    s_lshl_b32 s15, s{S_J}, 13
    s_add_u32 s14, s14, s15
    s_lshl_b32 s15, s{S_WAVE}, 11
    s_add_u32 s14, s14, s15
    s_add_u32 s62, s14, {WS_O}
    s_add_u32 s14, s14, {WS_QKV}
    buffer_load_dwordx4 {R(A_Q)}, v{A_QA}, {S4(SRD_WS)}, s14 offen{SC}
    buffer_load_dwordx4 {R(A_Q+4)}, v{A_QA}, {S4(SRD_WS)}, s14 offen offset:512{SC}
    """)

def g0_attention(a):
    S = [A_S0, A_S1]
    def kread(t):
        b = A_KF + 8 * (t % 2)
        return [f"ds_read_b128 {R(b + 4*m)}, v{A_KA} offset:{2048*t + 512*m}" for m in range(2)]
    def vread(t):
        b = A_VF if t % 2 == 0 else A_VF2
        return [f"ds_read_b64_tr_b16 {R(b + 4*m + 2*jj, 2)}, v{A_VA1 if jj else A_VA0} offset:{2048*t + 1024*m}" for m in range(2) for jj in range(2)]
    def qk(t, c):
        b = A_KF + 8 * (t % 2)
        s = R(S[t % 2], 16)
        return [f"v_mfma_f32_32x32x16_bf16 {s}, {R(b)}, {R(A_Q)}, {c}",
                f"v_mfma_f32_32x32x16_bf16 {s}, {R(b+4)}, {R(A_Q+4)}, {s}"]
    for f in kread(0) + kread(1): a(f)
    a(f"v_mov_b32 v{A_M0}, {NEGBIG}\nv_mov_b32 v{A_M1}, {NEGBIG}")
    a("s_waitcnt vmcnt(0) lgkmcnt(2)")
    def c1(t): return R(A_CM0, 16) if t == 0 else (R(A_CM8, 16) if t == 8 else "0")
    def maxes(t):
        s = S[t % 2]
        return [f"v_max3_f32 v{A_M0 if i % 2 == 0 else A_M1}, v{s+2*i}, v{s+2*i+1}, v{A_M0 if i % 2 == 0 else A_M1}" for i in range(8)]
    for f in qk(0, c1(0)): a(f)
    for t in range(9):
        if t + 1 <= 8:
            a("s_waitcnt lgkmcnt(0)")
            for f in qk(t + 1, c1(t + 1)): a(f)
        if t + 2 <= 8:
            for f in kread(t + 2): a(f)
        if t == 0: a("s_nop 7")
        if t == 8:
            for f in kread(0) + kread(1): a(f)
        for f in maxes(t): a(f)
    for f in vread(0): a(f)
    a(f"""
    v_max_f32 v{A_M0}, v{A_M0}, v{A_M1}
    v_mov_b32 v{A_M1}, v{A_M0}
    s_nop 1
    v_permlane32_swap_b32 v{A_M0}, v{A_M1}
    v_max_f32 v{A_M0}, v{A_M0}, v{A_M1}
    """)
    for i in range(16):
        a(f"v_sub_f32 v{A_CM0+i}, v{A_CM0+i}, v{A_M0}")
    def c2(t): return R(A_CM0, 16) if t == 0 else (R(A_CM8, 16) if t == 8 else R(A_NM, 16))
    a("s_waitcnt lgkmcnt(0)\ns_nop 0")
    q0 = qk(0, c2(0))
    a(q0[0])
    for i in range(8):
        a(f"v_sub_f32 v{A_NM+i}, 0, v{A_M0}")
    a(q0[1])
    for i in range(8, 16):
        a(f"v_sub_f32 v{A_NM+i}, 0, v{A_M0}")
    for i in range(16):
        a(f"v_sub_f32 v{A_CM8+i}, v{A_CM8+i}, v{A_M0}")
    O = R(A_O, 16)
    def pv(t, m):
        vb = A_VF if t % 2 == 0 else A_VF2
        c = "0" if (t == 0 and m == 0) else O
        return f"v_mfma_f32_32x32x16_bf16 {O}, {R(vb+4*m)}, {R(A_P+4*m)}, {c}"
    for t in range(9):
        s = S[t % 2]
        ex = [f"v_exp_f32 v{s+i}, v{s+i}" for i in range(16)]
        cv = [f"v_cvt_pk_bf16_f32 v{A_P+i}, v{s+2*i}, v{s+2*i+1}" for i in range(8)]
        nq = qk(t + 1, c2(t + 1)) if t + 1 <= 8 else [None, None]
        kr = kread(t + 2) if t + 2 <= 8 else []
        vr = vread(t + 1) if t + 1 <= 8 else []
        a(ex[0]); a(ex[1])
        if t > 0: a(pv(t - 1, 1))
        a(ex[2]); a(ex[3]); a(ex[4]); a(ex[5])
        a("s_waitcnt lgkmcnt(0)")
        if nq[0]: a(nq[0])
        a(ex[6]); a(ex[7]); a(ex[8])
        for f in cv[0:4]: a(f)
        if nq[1]: a(nq[1])
        for f in vr: a(f)
        a(ex[9]); a(ex[10]); a(ex[11])
        a(pv(t, 0))
        for f in kr: a(f)
        a(ex[12]); a(ex[13]); a(ex[14]); a(ex[15])
        a(cv[4]); a(cv[5]); a(cv[6]); a(cv[7])
    t0, t1 = 17, 18
    a(f"""
    v_lshrrev_b32 v{t0}, 5, v{V_LANE}
    v_lshl_add_u32 v{t0}, v{t0}, 8, v{A_QA}
    """)
    a(pv(8, 1))
    a(f"""
    s_mov_b32 s56, 0
    s_mov_b32 s57, -1
    s_lshl_b32 s9, s{S_J}, 1
    s_lshr_b32 s14, s{S_WAVE}, 1
    s_add_u32 s9, s9, s14
    s_lshl_b32 s9, s9, 4
    s_add_u32 s9, s9, s{S_H}
    s_lshl_b32 s9, s9, 1
    s_and_b32 s14, s{S_WAVE}, 1
    s_add_u32 s9, s9, s14
    s_nop 2
    v_mov_b32 v{A_M0}, v{A_O+12}
    v_mov_b32 v{A_M1}, v{A_O+12}
    s_nop 1
    v_permlane32_swap_b32 v{A_M0}, v{A_M1}
    v_rcp_f32 v{A_M1}, v{A_M1}
    s_nop 0
    """)
    for i in range(16):
        a(f"v_mul_f32 v{A_O+i}, v{A_O+i}, v{A_M1}")
    for i in range(8):
        a(f"v_cvt_pk_bf16_f32 v{A_P+i}, v{A_O+2*i}, v{A_O+2*i+1}")
    a(f"""
    v_cndmask_b32 v{A_P+6}, v{A_P+6}, 0, s[56:57]
    v_cndmask_b32 v{A_P+7}, v{A_P+7}, 0, s[56:57]
    buffer_store_dwordx4 {R(A_P)}, v{t0}, {S4(SRD_WS)}, s62 offen{SC}
    buffer_store_dwordx4 {R(A_P+4)}, v{t0}, {S4(SRD_WS)}, s62 offen offset:256{SC}
    """)

def g0_program(a):
    FR, ACC = B_FR, B_ACC
    NA = Cfg.NA
    t0, t1 = 17, 18
    a(f"s_cmp_ge_u32 s{S_LOC}, 16\ns_cbranch_scc1 g0_p1b")
    g0_a1(a)
    a("s_branch g0_p1done\ng0_p1b:")
    g0_bs(a)
    a("g0_p1done:")
    stamp(a, 3)
    a(f"s_lshl_b32 s14, s{S_WAVE}, 12\ns_add_u32 s14, s14, {item_base(0)}")
    xfrag_addrs(a, B_X0, B_X1, t0, t1, 14)
    a(f"""
    v_lshlrev_b32 v{B_E0}, 4, v{V_LANE}
    v_add_u32 v{B_E0}, {item_base(0) + 16384}, v{B_E0}
    """)
    for i in range(56):
        a(f"v_mov_b32 v{ACC+i}, 0")
    a("s_waitcnt vmcnt(0)")
    flag_store(a, 9, WS_F1, t0, t1)
    stamp(a, 4)
    g0_attn_setup(a)
    a(f"""
    s_cmp_lg_u32 s{S_WAVE}, 0
    s_cbranch_scc1 g0_nopoll
    s_lshr_b32 s15, s{S_KQ}, 1
    s_lshl_b32 s15, s15, 2
    s_add_u32 s15, s15, s{S_NB}
    s_lshl_b32 s15, s15, 4
    s_and_b32 s14, s{S_KQ}, 1
    s_lshl_b32 s14, s14, 3
    s_add_u32 s15, s15, s14
    s_add_u32 s15, s15, 128
    s_lshl_b32 s56, s15, {FS + 2}
    v_and_b32 v{t0}, 31, v{V_LANE}
    v_lshlrev_b32 v{t0}, {FS}, v{t0}
    """)
    poll_blocking(a, t0, 56, t1, "pab")
    a("g0_nopoll:\ns_barrier")
    def reads(ks, buf):
        b = FR + 36 * buf
        f = [f"ds_read_b128 {R(b + 4*T)}, v{B_X1 if ks else B_X0} offset:{2048*T}" for T in range(2)]
        f += [f"ds_read_b128 {R(b + 8 + 4*t)}, v{B_E0} offset:{7168*ks + 1024*t}" for t in range(7)]
        return f
    def mfmas(buf):
        b = FR + 36 * buf
        return [f"v_mfma_f32_16x16x32_bf16 {R(ACC + (t*2+T)*4)}, {R(b + 8 + 4*t)}, {R(b + 4*T)}, {R(ACC + (t*2+T)*4)}"
                for t in range(7) for T in range(2)]
    AR = [B_X0, B_X1, B_E0]
    a("s_mov_b32 s8, 4\ns_barrier")
    stamp(a, 5)
    for f in reads(0, 0): a(f)
    gemm_loop(a, "bb1", NA - 1, SLOT, 5, reads, mfmas, AR, 8, 10, 11)
    g0_qload(a)
    gemm_loop(a, "bb1b", 1, SLOT, 5, reads, mfmas, AR, 8, 10, 11)
    stamp(a, 6)
    d = item_base(NA + 2) - item_base(NA)
    for r in AR:
        a(f"v_add_u32 v{r}, {d & 0xffffffff}, v{r}")
    a(f"s_mov_b32 s8, {(NA + 2 + 4) % 5}")
    g0_attention(a)
    stamp(a, 7)
    a("s_barrier")
    for f in reads(0, 0): a(f)
    gemm_loop(a, "bb2", 1, SLOT, 5, reads, mfmas, AR, 8, 10, 11)
    a("s_waitcnt vmcnt(0)")
    flag_store(a, 9, WS_F2, t0, t1)
    gemm_loop(a, "bb3", 16 - NA - 1, SLOT, 5, reads, mfmas, AR, 8, 10, 11)
    stamp(a, 8)
    a(f"""
    s_waitcnt lgkmcnt(0)
    s_lshl_b32 s9, s{S_MB}, 2
    s_add_u32 s9, s9, s{S_NB}
    s_lshl_b32 s9, s9, 4
    s_lshl_b32 s10, s{S_KQ}, 2
    s_add_u32 s10, s10, s9
    s_add_u32 s10, s10, s{S_WAVE}
    s_lshl_b32 s10, s10, 13
    s_add_u32 s10, s10, {WS_PQ}
    s_add_u32 s11, s10, 4096
    s_lshl_b32 s14, s{S_WAVE}, 2
    s_add_u32 s9, s9, s14
    s_add_u32 s9, s9, s{S_KQ}
    v_lshlrev_b32 v{t0}, 4, v{V_LANE}
    """)
    PK = 24
    def dw(T, i):
        if i < 12: return PK + 4 * (3 * T + i // 4) + i % 4
        return PK + 24 + 2 * T + (i - 12)
    for T in range(2):
        for t in range(7):
            d = ACC + (t*2 + T)*4
            a(f"v_cvt_pk_bf16_f32 v{dw(T, 2*t)}, v{d}, v{d+1}\nv_cvt_pk_bf16_f32 v{dw(T, 2*t+1)}, v{d+2}, v{d+3}")
            if t % 2 == 1:
                u = 3 * T + t // 2
                a(f"buffer_store_dwordx4 {R(PK + 4*u)}, v{t0}, {S4(SRD_WS)}, s{10 if u < 4 else 11} offen offset:{1024*(u%4)}{SC}")
    a(f"buffer_store_dwordx4 {R(PK + 24)}, v{t0}, {S4(SRD_WS)}, s11 offen offset:2048{SC}")
    WF = 60
    DA = 104
    WA = 4
    OA = 12
    a(f"""
    v_lshrrev_b32 v{WA}, 4, v{V_LANE}
    v_lshlrev_b32 v{WA}, 3, v{WA}
    v_bfe_u32 v{t1}, v{V_LANE}, 2, 2
    v_add_u32 v{WA}, v{WA}, v{t1}
    v_lshlrev_b32 v{WA}, 7, v{WA}
    v_bfe_u32 v{t1}, v{V_LANE}, 3, 2
    v_lshl_add_u32 v{WA}, v{t1}, 5, v{WA}
    v_and_b32 v{t1}, 3, v{V_LANE}
    v_lshl_add_u32 v{WA}, v{t1}, 3, v{WA}
    v_add_u32 v{WA+4}, {item_base(19)}, v{WA}
    v_add_u32 v{WA}, {item_base(18)}, v{WA}
    v_xor_b32 v{WA+1}, 32, v{WA}
    v_xor_b32 v{WA+2}, 64, v{WA}
    v_xor_b32 v{WA+3}, 96, v{WA}
    v_xor_b32 v{WA+5}, 32, v{WA+4}
    v_xor_b32 v{WA+6}, 64, v{WA+4}
    v_xor_b32 v{WA+7}, 96, v{WA+4}
    s_lshl_b32 s14, s{S_WAVE}, 10
    v_add_u32 v{OA}, s14, v{t0}
    v_add_u32 v{OA+1}, {item_base(21)}, v{OA}
    v_add_u32 v{OA}, {item_base(20)}, v{OA}
    s_lshl_b32 s12, s{S_RB64}, 6
    s_lshl_b32 s15, s{S_WAVE}, 4
    s_add_u32 s12, s12, s15
    s_mul_i32 s12, s12, 1792
    s_lshl_b32 s15, s{S_CT}, 7
    s_add_u32 s12, s12, s15
    v_and_b32 v{t0}, 15, v{V_LANE}
    v_mul_u32_u24 v{t0}, 1792, v{t0}
    v_lshrrev_b32 v{t1}, 4, v{V_LANE}
    v_lshl_add_u32 v{t0}, v{t1}, 3, v{t0}
    s_waitcnt vmcnt(0)
    """)
    flag_store(a, 9, WS_F3, 2, 3)
    stamp(a, 9)
    a(f"""
    s_barrier
    s_cmp_ge_u32 s{S_LOC}, 28
    s_cbranch_scc1 g0_done
    """)
    def wread(h):
        b = WF + 20 * (h % 2)
        f = [f"ds_read_b128 {R(b + 16)}, v{OA + h // 8} offset:{4096*(h % 8)}"]
        f += [f"ds_read_b64_tr_b16 {R(b + 4*tau + 2*jj, 2)}, v{WA + 4*(h//8) + tau} offset:{4096*(h % 8) + 512*jj}" for tau in range(4) for jj in range(2)]
        return f
    for f in wread(0): a(f)
    for h in range(16):
        b = WF + 20 * (h % 2)
        nxt = wread(h + 1) if h < 15 else []
        for f in nxt: a(f)
        a(f"s_waitcnt lgkmcnt({len(nxt)})")
        for tau in range(4):
            a(f"v_mfma_f32_16x16x32_bf16 {R(DA + 4*tau)}, {R(b + 4*tau)}, {R(b + 16)}, {'0' if h == 0 else R(DA + 4*tau)}")
    a("s_nop 4")
    for tau in range(4):
        d = DA + 4*tau
        a(f"""
        v_cvt_pk_bf16_f32 v{PK+2*tau}, v{d}, v{d+1}
        v_cvt_pk_bf16_f32 v{PK+2*tau+1}, v{d+2}, v{d+3}
        buffer_store_dwordx2 {R(PK+2*tau, 2)}, v{t0}, {S4(SRD_OUT)}, s12 offen offset:{32*tau}
        """)
    a("g0_done:")
    stamp(a, 10)
    if Cfg.stamps: a("s_waitcnt vmcnt(0)")
    stamp(a, 11)
    stamp(a, 15, True)
    dump_stamps(a, 0)
    a("s_endpgm")

def dma(vm, tag, m0base, m0imm, vaddr, srd_, soff, lanes=64, sc=""):
    pre, post = "s_nop 0", ""
    if lanes == 16: pre, post = "s_mov_b64 exec, 0xffff", "\ns_mov_b64 exec, -1"
    if lanes == 32: pre, post = "s_mov_b32 exec_hi, 0", "\ns_mov_b32 exec_hi, -1"
    vm.op(tag, f"s_add_u32 m0, s{m0base}, {m0imm}\n{pre}\nbuffer_load_dwordx4 v{vaddr}, {S4(srd_)}, s{soff} offen{sc} lds{post}")

def x_dma_addrs(a, vXd, srow, rowbytes, permute, t0, t1, t2):
    if not permute:
        a(f"v_lshrrev_b32 v{t0}, 3, v{V_LANE}")
        o1, o2 = 8, 16
    else:
        a(f"""v_lshrrev_b32 v{t0}, 5, v{V_LANE}
        v_bfe_u32 v{t1}, v{V_LANE}, 3, 2
        v_lshl_add_u32 v{t0}, v{t0}, 3, v{t1}""")
        o1, o2 = 16, 4
    a(f"""
    v_add_u32 v{t0}, s{srow}, v{t0}
    v_mul_u32_u24 v{t0}, {rowbytes}, v{t0}
    v_and_b32 v{t1}, 7, v{V_LANE}
    v_lshrrev_b32 v{t2}, 4, v{V_LANE}
    v_xor_b32 v{t1}, v{t1}, v{t2}
    v_lshl_add_u32 v{vXd}, v{t1}, 4, v{t0}
    v_xor_b32 v{t1}, 4, v{t1}
    v_lshl_add_u32 v{vXd+1}, v{t1}, 4, v{t0}
    v_add_u32 v{vXd+1}, {o1*rowbytes}, v{vXd+1}
    v_add_u32 v{vXd+2}, {o2*rowbytes}, v{vXd}
    v_add_u32 v{vXd+3}, {o2*rowbytes}, v{vXd+1}
    """)

class Stream:
    def __init__(self, a, vm):
        self.a, self.vm, self.ops, self.pos = a, vm, [], 0
    def add(self, tag, need, avail, emits):
        for e in emits: self.ops.append((tag, need, avail, e))
    def run_to(self, b, la, stop_tag=None):
        last_needed = max([i for i, o in enumerate(self.ops) if o[1] <= b] + [-1])
        while self.pos < len(self.ops):
            tag, need, avail, e = self.ops[self.pos]
            if avail >= b:
                assert self.pos > last_needed, (b, tag)
                break
            if self.pos > last_needed + la: break
            e(); self.pos += 1
        tags = [o[0] for o in self.ops[:last_needed + 1]]
        pend = [t for t in self.vm.q if t in set(tags)]
        if pend: self.vm.wait(pend[-1])

G_XD, G_WD, G_CD, G_L16, G_PK, G_PO, G_PT, G_VD, G_WO = 4, 8, 24, 28, 29, 30, 31, 32, 33
def g1_bbig_setup(a):
    t0, t1, t2 = 17, 18, 19
    a(f"""
    s_lshl_b32 s15, s{S_MB}, 7
    s_lshl_b32 s14, s{S_WAVE}, 5
    s_add_u32 s15, s15, s14
    """)
    x_dma_addrs(a, G_CD, 15, 4096, False, t0, t1, t2)
    a(f"s_cmp_lt_u32 s{S_KQ}, 2")
    srd_sel(a, SRD_C, P_CR, P_CI, 2048 * 4096)
    a(f"""
    v_lshlrev_b32 v{G_L16}, 4, v{V_LANE}
    s_and_b32 s14, s{S_KQ}, 1
    s_lshl_b32 s7, s14, 11
    s_mul_i32 s6, s14, {32*7168}
    s_lshr_b32 s15, s{S_KQ}, 1
    s_lshl_b32 s15, s15, 2
    s_add_u32 s15, s15, s{S_NB}
    s_mul_i32 s15, s15, {AT_NB}
    s_add_u32 s6, s6, s15
    s_mul_i32 s15, s{S_WAVE}, 3584
    s_add_u32 s6, s6, s15
    s_add_u32 s6, s6, {WS_AT}
    s_add_u32 s61, s15, 16384
    s_lshl_b32 s60, s{S_WAVE}, 12
    s_lshl_b32 s62, s{S_WAVE}, 10
    s_and_b32 s11, s{S_LOC}, 7
    s_lshl_b32 s11, s11, 1
    s_lshl_b32 s14, s{S_NB}, 2
    s_add_u32 s11, s11, s14
    """)

def stage_item(s): return s if s < Cfg.NA else s + 2
def x_ops(a, vm, s):
    base = item_base(stage_item(s))
    def mk(i):
        def e():
            if i == 0:
                a(f"s_add_u32 s14, s11, {s}\ns_and_b32 s14, s14, 15\ns_lshl_b32 s0, s14, 7\ns_add_u32 s0, s0, s7")
            dma(vm, ("x", s), 60, base + i*1024, G_CD + i, SRD_C, 0)
        return e
    return [mk(i) for i in range(4)]
def e_ops(a, vm, s):
    base = item_base(stage_item(s))
    def mk(i):
        def e():
            if i == 0:
                a(f"s_add_u32 s14, s11, {s}\ns_and_b32 s14, s14, 15\ns_mul_i32 s1, s14, 14336\ns_add_u32 s1, s1, s6")
            pre, post = ("s_nop 0", "") if i < 3 else ("s_mov_b32 exec_hi, 0", "\ns_mov_b32 exec_hi, -1")
            vm.op(("e", s), f"s_add_u32 m0, s61, {base}\n{pre}\nbuffer_load_dwordx4 v{G_L16}, {S4(SRD_WS)}, s1 offen offset:{1024*i}{SC} lds{post}")
        return e
    return [mk(i) for i in range(4)]

X_AVAIL = [4, 5, 6, 7, 7]

def g1_p1(a, typ):
    vXd, vWd = G_XD, G_WD
    t0, t1, t2, t3 = 17, 18, 19, 20
    sX, sW, sC, sT, sM0x, sM0w = 9, 10, 8, 11, 12, 13
    stepW = 64*2688 if typ == 0 else 128
    def sbase(c): return (c % 4) * 37888 if typ == 0 else ((c + 2) % 5) * SLOT
    nslot = 4 if typ == 0 else 5
    a(f"""
    s_lshl_b32 s{sT}, s6, 7
    s_lshl_b32 s14, s{S_WAVE}, 5
    s_add_u32 s{sT}, s{sT}, s14
    """)
    x_dma_addrs(a, vXd, sT, 896, typ == 1, t0, t1, t2)
    a(f"s_lshl_b32 s{sM0x}, s{S_WAVE}, 12\ns_lshl_b32 s{sX}, s{sC}, 7\ns_waitcnt lgkmcnt(0)")
    srd(a, SRD_X, P_AX if typ == 0 else P_BX, 2048 * 896)
    vm = VM(a)
    stamp(a, 1)
    for i in range(4):
        dma(vm, ("p", 0), sM0x, sbase(0) + i*1024, vXd+i, SRD_X, sX)
    if typ == 0:
        srd(a, SRD_W, P_WQKV, 448 * 2688)
        a(f"""
        s_mul_i32 s{sT}, s{S_WAVE}, {16*2688}
        s_mul_i32 s14, s7, 336
        s_add_u32 s{sT}, s{sT}, s14
        """)
        nw, wbytes = 6, 5376
        def waddr(i):
            a(f"""
            v_add_u32 v{t0}, {64*i}, v{V_LANE}
            v_mul_u32_u24 v{t1}, 3121, v{t0}
            v_lshrrev_b32 v{t1}, 16, v{t1}
            v_mul_u32_u24 v{t2}, 21, v{t1}
            v_sub_u32 v{t0}, v{t0}, v{t2}
            v_and_b32 v{t2}, 8, v{t1}
            v_and_b32 v{t3}, 1, v{t1}
            v_lshl_add_u32 v{t2}, v{t3}, 2, v{t2}
            v_bfe_u32 v{t3}, v{t1}, 1, 2
            v_add_u32 v{t2}, v{t2}, v{t3}
            v_mul_u32_u24 v{t2}, 2688, v{t2}
            v_lshl_add_u32 v{t2}, v{t0}, 4, v{t2}
            v_add_u32 v{vWd+i}, s{sT}, v{t2}
            """)
    else:
        a("s_cmp_lt_u32 s7, 4")
        srd_sel(a, SRD_W, P_DR, P_DI, 448 * 896)
        a(f"""
        s_and_b32 s{sT}, s7, 3
        s_mul_i32 s{sT}, s{sT}, 112
        s_mul_i32 s15, s{S_WAVE}, 28
        """)
        nw, wbytes = 4, 3584
        def waddr(i):
            a(f"""
            v_lshrrev_b32 v{t0}, 3, v{V_LANE}
            v_add3_u32 v{t0}, v{t0}, s15, {8*i}
            v_bfe_u32 v{t1}, v{t0}, 2, 2
            v_mul_u32_u24 v{t1}, 28, v{t1}
            v_lshrrev_b32 v{t2}, 4, v{t0}
            v_lshl_add_u32 v{t1}, v{t2}, 2, v{t1}
            v_and_b32 v{t2}, 3, v{t0}
            v_add3_u32 v{t1}, v{t1}, v{t2}, s{sT}
            v_mul_u32_u24 v{t1}, 896, v{t1}
            v_bfe_u32 v{t2}, v{t0}, 1, 3
            v_and_b32 v{t3}, 7, v{V_LANE}
            v_xor_b32 v{t2}, v{t2}, v{t3}
            v_lshl_add_u32 v{vWd+i}, v{t2}, 4, v{t1}
            """)
    a(f"""
    s_mul_i32 s{sM0w}, s{S_WAVE}, {wbytes}
    s_add_u32 s{sM0w}, s{sM0w}, 16384
    s_mul_i32 s{sW}, s{sC}, {stepW}
    """)
    def wl(i): return 64 if i < nw - 1 else (16 if typ == 0 else 32)
    for i in range(nw):
        waddr(i)
        dma(vm, ("p", 0), sM0w, sbase(0) + i*1024, vWd+i, SRD_W, sW, lanes=wl(i))
    st = Stream(a, vm)
    st.add(("p", 0), 0, -1, [])
    def pops(c):
        ops = []
        def mkx(i):
            def e():
                if i == 0:
                    a(f"s_add_u32 s{sC}, s{sC}, 1\ns_cmp_eq_u32 s{sC}, 7\ns_cselect_b32 s{sC}, 0, s{sC}\ns_lshl_b32 s{sX}, s{sC}, 7\ns_mul_i32 s{sW}, s{sC}, {stepW}")
                dma(vm, ("p", c), sM0x, sbase(c) + i*1024, vXd+i, SRD_X, sX)
            return e
        def mkw(i):
            return lambda: dma(vm, ("p", c), sM0w, sbase(c) + i*1024, vWd+i, SRD_W, sW, lanes=wl(i))
        return [mkx(i) for i in range(4)] + [mkw(i) for i in range(nw)]
    for c in range(1, 7):
        st.add(("p", c), c, (c - nslot + 1) if c >= nslot else -1, pops(c))
    st.add(("x", 0), 99, X_AVAIL[0], x_ops(a, vm, 0))
    st.run_to(0, Cfg.LA0 - 1)
    epoch_load(a)
    jobs2(a)
    srd(a, SRD_WS, P_WS, WS_SIZE)
    srd(a, SRD_OUT, P_OUT, 2048 * 1792)
    g1_bbig_setup(a)
    stamp(a, 2)
    vm.wait(("p", 0))
    a("s_barrier")
    for b in range(1, 7):
        st.run_to(b, Cfg.LA1)
        a("s_barrier")
    st.run_to(7, 99)
    assert st.pos == len(st.ops)
    return list(vm.q)

def epoch_load(a):
    a(f"""
    s_add_u32 s14, s{P_WS}, {WS_EPOCH}
    s_addc_u32 s15, s{P_WS+1}, 0
    s_load_dword s{S_TAG}, s[14:15], 0
    s_waitcnt lgkmcnt(0)
    s_mul_i32 s{S_TAG}, s{S_TAG}, 0x19660d
    s_add_u32 s{S_TAG}, s{S_TAG}, 0x3c6ef35f
    """)

def g1_program(a):
    NA = Cfg.NA
    t0, t1, t2, t3 = 17, 18, 19, 20
    a(f"s_cmp_ge_u32 s{S_LOC}, 16\ns_cbranch_scc1 g1_p1b")
    q0 = g1_p1(a, 0)
    a("s_branch g1_p1done\ng1_p1b:")
    q1 = g1_p1(a, 1)
    a("g1_p1done:")
    assert q0 == q1, (q0, q1)
    stamp(a, 3)
    vm = VM(a); vm.q = q0
    for kind in range(3):
        a(f"""
        s_add_u32 s14, s{S_H}, {16*kind}
        s_mul_i32 s15, s14, 43
        s_lshr_b32 s15, s15, 8
        s_mul_i32 s12, s15, 6
        s_sub_u32 s14, s14, s12
        s_cmp_ge_u32 s14, 3
        s_cselect_b32 s14, 1, 0
        s_lshl_b32 s15, s15, 6
        s_add_u32 s{8+kind}, s15, s14
        """)
    a(f"""
    v_mov_b32 v{t0}, s10
    v_mov_b32 v{t1}, s9
    v_cmp_gt_u32 vcc, 16, v{V_LANE}
    v_mov_b32 v{t2}, s8
    s_nop 0
    v_cndmask_b32 v{t0}, v{t0}, v{t1}, vcc
    v_cmp_gt_u32 vcc, 8, v{V_LANE}
    v_bfe_u32 v{t1}, v{V_LANE}, 1, 2
    v_min_u32 v{t1}, 2, v{t1}
    v_cndmask_b32 v{t0}, v{t0}, v{t2}, vcc
    v_sub_u32 v{t1}, s{S_J}, v{t1}
    v_max_i32 v{t1}, 0, v{t1}
    v_lshl_add_u32 v{t0}, v{t1}, 2, v{t0}
    v_and_b32 v{t1}, 1, v{V_LANE}
    v_lshl_add_u32 v{t0}, v{t1}, 1, v{t0}
    v_lshlrev_b32 v{G_PK}, {FS}, v{t0}
    v_and_b32 v{t0}, 31, v{V_LANE}
    v_lshlrev_b32 v{G_PO}, {FS}, v{t0}
    s_lshl_b32 s13, s{S_RB64}, {FS + 5}
    s_add_u32 s13, s13, {WS_F2}
    s_mov_b32 s12, {WS_F1}
    v_lshrrev_b32 v{t0}, 4, v{V_LANE}
    v_lshlrev_b32 v{t1}, 2, v{t0}
    v_sub_u32 v{t1}, v{V_LANE}, v{t1}
    v_and_b32 v{t1}, 15, v{t1}
    v_lshlrev_b32 v{t1}, 4, v{t1}
    v_lshl_add_u32 v{G_VD}, v{t0}, 8, v{t1}
    v_lshrrev_b32 v{t0}, 3, v{V_LANE}
    v_mul_u32_u24 v{t0}, 896, v{t0}
    v_and_b32 v{t1}, 7, v{V_LANE}
    v_bfe_u32 v{t2}, v{V_LANE}, 4, 1
    v_lshlrev_b32 v{t2}, 1, v{t2}
    v_xor_b32 v{t1}, v{t1}, v{t2}
    v_lshl_add_u32 v{G_WO}, v{t1}, 4, v{t0}
    v_xor_b32 v{t1}, 4, v{t1}
    v_lshl_add_u32 v{G_WO+1}, v{t1}, 4, v{t0}
    v_mov_b32 v{t2}, 0x7ffffff0
    v_cmp_gt_u32 vcc, 32, v{V_LANE}
    s_mul_i32 s9, s{S_WAVE}, {28*896}
    s_lshl_b32 s14, s{S_CT}, 7
    v_cndmask_b32 v{G_WO+2}, v{t2}, v{G_WO+1}, vcc
    s_add_u32 s9, s9, s14
    s_lshl_b32 s8, s{S_H}, 17
    s_add_u32 s8, s8, {WS_QKV + 16*131072}
    s_lshl_b32 s10, s{S_J}, 3
    s_add_u32 s10, s10, s{S_WAVE}
    s_sub_u32 s10, s10, 16
    """)
    srd(a, SRD_W, P_WO, 448 * 896)
    a("s_barrier")
    stamp(a, 4)
    for s in range(1, Cfg.NXPRE):
        for e in x_ops(a, vm, s):
            if len(vm.q) >= Cfg.LAQ:
                a(f"s_waitcnt vmcnt({Cfg.LAQ - 1})")
                vm.q = vm.q[-(Cfg.LAQ - 1):]
            e()
    a("s_barrier")
    stamp(a, 5)
    st = Stream(a, vm)
    def need(s): return 9 + s if s < NA else 10 + s
    def free_after_item(n):
        if n < NA: return 10 + n
        if n < NA + 2: return 10 + NA
        return 11 + (n - 2)
    def avail(n): return free_after_item(n - 5) if n >= 5 else -1
    def kv_ops(which):
        base = item_base(NA + which)
        def mk(i):
            def e():
                a(f"""s_add_u32 s14, s10, {4*i}
                s_max_i32 s14, s14, 0
                s_lshl_b32 s14, s14, 10
                s_add_u32 s14, s14, s8""")
                if which: a(f"s_add_u32 s14, s14, {16*131072}")
                dma(vm, "kv", 62, base + 4096*i, G_VD if which else G_L16, SRD_WS, 14, sc=SC)
            return e
        return [mk(i) for i in range(6)]
    def wo_ops(half):
        base = item_base(18 + half)
        def mk(i, qd):
            def e():
                a(f"s_add_u32 s14, s9, {((8*half + 4*i)*28 + 8*qd)*896}")
                dma(vm, "wo", 60, base + 16384*i + 1024*qd, G_WO + (2 if qd == 3 else qd % 2), SRD_W, 14)
            return e
        return [mk(i, qd) for i in range(2) for qd in range(4)]
    def o_ops(half):
        base = item_base(20 + half)
        def mk(i):
            def e():
                if half == 0 and i == 0:
                    a(f"s_lshl_b32 s10, s{S_RB64}, 12\ns_add_u32 s10, s10, s62\ns_add_u32 s10, s10, {WS_O}")
                a(f"s_add_u32 s14, s10, {(8*half + i)*131072}")
                dma(vm, "o", 62, base + 4096*i, G_L16, SRD_WS, 14, sc=SC)
            return e
        return [mk(i) for i in range(8)]
    kvb = 9 + Cfg.KV_POLL + 1
    ob = 10 + Cfg.O_POLL + 1
    for s in range(16):
        n = stage_item(s)
        if s == NA:
            st.add("kv", 9 + NA, max(avail(NA), kvb - 1), kv_ops(0))
            st.add("kv", 9 + NA, max(avail(NA + 1), kvb - 1), kv_ops(1))
        if s >= Cfg.NXPRE: st.add(("x", s), need(s), avail(n), x_ops(a, vm, s))
        st.add(("e", s), need(s), avail(n), e_ops(a, vm, s))
    st.add("wo", 27, avail(18), wo_ops(0))
    st.add("wo", 27, avail(19), wo_ops(1))
    st.add("o", 27, max(avail(20), ob - 1), o_ops(0))
    st.add("o", 27, max(avail(21), ob - 1), o_ops(1))
    def kv_patch():
        l = a.newlabel("nopatch")
        a(f"""
        s_cmp_ge_u32 s{S_J}, 2
        s_cbranch_scc1 {l}
        v_lshrrev_b32 v{t0}, 4, v{V_LANE}
        v_lshlrev_b32 v{t0}, 12, v{t0}
        v_and_b32 v{t1}, 15, v{V_LANE}
        v_lshl_add_u32 v{t0}, v{t1}, 4, v{t0}
        v_add_u32 v{t0}, s62, v{t0}
        v_add_u32 v{t0}, {item_base(NA)}, v{t0}
        v_mov_b32 v{t1}, 0xf14a
        s_cmp_eq_u32 s{S_J}, 0
        s_cselect_b32 exec_hi, -1, 0
        ds_write_b16 v{t0}, v{t1} offset:{3*256 + 8}
        s_mov_b32 exec_hi, -1
        s_waitcnt lgkmcnt(0)
        {l}:
        """)
    def async_check(vaddr, soff, name):
        l = a.newlabel(name)
        a(f"v_cmp_ne_u32 vcc, s{S_TAG}, v{G_PT}\ns_cbranch_vccz {l}")
        poll_blocking(a, vaddr, soff, G_PT, name + "b")
        a(f"{l}:")
    for b in range(9, 28):
        if b == kvb - 1: vm.op("pk", f"buffer_load_dword v{G_PT}, v{G_PK}, {S4(SRD_WS)}, s12 offen sc1")
        if b == ob - 1: vm.op("po", f"buffer_load_dword v{G_PT}, v{G_PO}, {S4(SRD_WS)}, s13 offen sc1")
        if b == kvb:
            vm.wait("pk"); async_check(G_PK, 12, "pk")
        if b == ob:
            vm.wait("po"); async_check(G_PO, 13, "po")
        if b == 27:
            while st.pos < len(st.ops):
                if len(vm.q) >= Cfg.LAQ:
                    a(f"s_waitcnt vmcnt({Cfg.LAQ - 1})")
                    vm.q = vm.q[-(Cfg.LAQ - 1):]
                st.ops[st.pos][3](); st.pos += 1
            a("s_waitcnt vmcnt(0)")
        else:
            st.run_to(b, Cfg.LA if b < 26 else Cfg.LAQ)
        if b == 9 + NA: kv_patch()
        if b == 27: break
        a("s_barrier")
        if b == 9: stamp(a, 6)
        if b == 9 + NA: stamp(a, 7)
    vPa, vOut = 4, 5
    a(f"""
    s_lshl_b32 s9, s{S_MB}, 2
    s_add_u32 s9, s9, s{S_NB}
    s_lshl_b32 s9, s9, 4
    s_lshl_b32 s14, s{S_KQ}, 2
    s_add_u32 s14, s14, s9
    s_lshl_b32 s8, s14, {FS}
    s_add_u32 s8, s8, {WS_F3}
    v_and_b32 v{vPa}, 3, v{V_LANE}
    v_lshlrev_b32 v{vPa}, {FS}, v{vPa}
    s_add_u32 s9, s9, s{S_KQ}
    s_lshl_b32 s10, s9, 13
    s_add_u32 s10, s10, {WS_PQ}
    s_lshl_b32 s14, s{S_WAVE}, 10
    s_cmp_eq_u32 s{S_WAVE}, 3
    s_cselect_b32 s14, 6144, s14
    s_cselect_b32 s15, 0, 3072
    s_add_u32 s10, s10, s14
    s_add_u32 s11, s10, s15
    s_lshl_b32 s12, s{S_MB}, 7
    s_lshl_b32 s14, s{S_KQ}, 5
    s_add_u32 s12, s12, s14
    s_mul_i32 s12, s12, 1792
    s_mul_i32 s14, s{S_NB}, 224
    s_add_u32 s12, s12, s14
    s_lshl_b32 s14, s{S_WAVE}, 4
    s_add_u32 s12, s12, s14
    s_add_u32 s12, s12, 896
    s_add_u32 s13, s12, {16*1792}
    v_and_b32 v{t0}, 15, v{V_LANE}
    v_mul_u32_u24 v{t0}, 1792, v{t0}
    v_lshrrev_b32 v{t1}, 4, v{V_LANE}
    v_mul_u32_u24 v{t1}, 56, v{t1}
    v_add_u32 v{vOut}, v{t0}, v{t1}
    s_mov_b32 s60, 0xffff0000
    s_barrier
    """)
    stamp(a, 8)
    poll_blocking(a, vPa, 8, G_PT, "pp")
    stamp(a, 9)
    D = 40
    for u in range(2):
        for q in range(4):
            a(f"buffer_load_dwordx4 {R(D + 16*u + 4*q)}, v{G_L16}, {S4(SRD_WS)}, s{10+u} offen{SC}\ns_add_u32 s{10+u}, s{10+u}, 32768")
    for u in range(2):
        a(f"s_waitcnt vmcnt({4 if u == 0 else 1})")
        for i in range(4):
            r = [D + 16*u + 4*q + i for q in range(4)]
            lo, hi = 80, 84
            for q in range(4):
                a(f"v_lshlrev_b32 v{lo+q}, 16, v{r[q]}\nv_and_b32 v{hi+q}, s60, v{r[q]}")
            for b in (lo, hi):
                a(f"v_add_f32 v{b}, v{b}, v{b+1}\nv_add_f32 v{b+2}, v{b+2}, v{b+3}")
            a(f"v_sub_f32 v{lo}, v{lo}, v{lo+2}\nv_sub_f32 v{hi}, v{hi}, v{hi+2}")
            a(f"v_cvt_pk_bf16_f32 v{88+4*u+i}, v{lo}, v{hi}")
        if u == 0:
            a(f"""
            s_cmp_eq_u32 s{S_WAVE}, 3
            s_cbranch_scc1 g1_tail
            buffer_store_dwordx4 {R(88)}, v{vOut}, {S4(SRD_OUT)}, s12 offen
            """)
        else:
            a(f"buffer_store_dwordx4 {R(92)}, v{vOut}, {S4(SRD_OUT)}, s13 offen\ns_branch g1_done")
    a(f"""
    g1_tail:
    buffer_store_dwordx2 {R(88,2)}, v{vOut}, {S4(SRD_OUT)}, s12 offen
    buffer_store_dwordx2 {R(90,2)}, v{vOut}, {S4(SRD_OUT)}, s13 offen
    s_cmp_lg_u32 s2, 0
    s_cbranch_scc1 g1_done
    v_lshlrev_b32 v{vPa}, {FS + 2}, v{V_LANE}
    """)
    for i in range(4):
        a(f"s_mov_b32 s8, {WS_F1 + (256 << FS)*i}")
        poll_blocking(a, vPa, 8, G_PT, "pe")
    a(f"""
    s_mov_b32 s14, {WS_EPOCH}
    v_mov_b32 v{t0}, 0
    v_mov_b32 v{t1}, s{S_TAG}
    s_mov_b64 exec, 1
    buffer_store_dword v{t1}, v{t0}, {S4(SRD_WS)}, s14 offen sc1
    s_mov_b64 exec, -1
    g1_done:
    """)
    stamp(a, 10)
    if Cfg.stamps: a("s_waitcnt vmcnt(0)")
    stamp(a, 11)
    stamp(a, 15, True)
    dump_stamps(a, 1)
    a("s_endpgm")

def build():
    a = Asm()
    kernel_begin(a, K)
    a(f"""
    s_cmp_ge_u32 s2, 256
    s_cbranch_scc1 k_end
    s_load_dwordx16 s[16:31], s[0:1], 0
    s_load_dwordx4 s[32:35], s[0:1], 64
    s_load_dwordx2 s[36:37], s[0:1], 80
    v_and_b32 v{V_LANE}, 63, v0
    v_lshrrev_b32 v2, 6, v0
    s_and_b32 s{S_XCD}, s2, 7
    v_readfirstlane_b32 s15, v2
    s_lshr_b32 s{S_LOC}, s2, 3
    """)
    stamp(a, 0); stamp(a, 14, True)
    a(f"""
    s_and_b32 s6, s{S_XCD}, 3
    s_lshl_b32 s6, s6, 2
    s_and_b32 s14, s{S_LOC}, 3
    s_add_u32 s6, s6, s14
    s_lshr_b32 s7, s{S_XCD}, 2
    s_lshl_b32 s7, s7, 2
    s_bfe_u32 s13, s{S_LOC}, 0x20002
    s_add_u32 s7, s7, s13
    s_add_u32 s8, s14, s13
    s_lshl_b32 s8, s8, 1
    s_cmp_ge_u32 s8, 7
    s_cselect_b32 s14, 7, 0
    s_sub_u32 s8, s8, s14
    s_and_b32 s{S_WAVE}, s15, 3
    s_cmp_lt_u32 s15, 4
    s_cbranch_scc1 g0_entry
    """)
    g1_program(a)
    a("g0_entry:")
    jobs2(a)
    a("s_waitcnt lgkmcnt(0)")
    srd(a, SRD_WS, P_WS, WS_SIZE)
    srd(a, SRD_OUT, P_OUT, 2048 * 1792)
    epoch_load(a)
    g0_program(a)
    a("k_end:\ns_endpgm")
    txt = a.text()
    return file_text_single(txt)

def file_text_single(body):
    h = HEADER_DOC + f"; @launch grid=(256,1,1) block=(512,1,1) lds={LDS_TOTAL}\n"
    return h + '.amdgcn_target "amdgcn-amd-amdhsa--gfx950"\n.text\n' + body + '.section .rodata,"a"\n' + descriptor(K, 256)

if __name__ == "__main__":
    out = sys.argv[1] if len(sys.argv) > 1 else "k3.s"
    Cfg.stamps = "stamps" in sys.argv
    for arg in sys.argv[2:]:
        if "=" in arg:
            k, v = arg.split("="); setattr(Cfg, k, int(v))
    open(out, "w").write(build())
```

```python
import sys, math, struct
from asmlib import *

NAME = "concat_heads__sliding_block__spectral_fnet__prompt"
K = NAME + "_kernel"

WS_F1, WS_F2, WS_F3, WS_EPOCH = 0x0, 0x20000, 0x40000, 0x60000
WS_QKV = 0x100000
WS_AT = 0x800000
AT_NB = 64 * 7168
WS_O = 0xC00000
WS_PQ = 0xE00000
WS_STAMP = 0x1700000
WS_SIZE = 0x1800000

C2 = (28 ** -0.5) * math.log2(math.e)
def f32bits(x):
    return struct.unpack("<I", struct.pack("<f", x))[0]
NEGBIG = f32bits(-1e30)

S_WAVE, S_XCD, S_LOC = 3, 4, 5
P_AX, P_WQKV, P_WO, P_BX, P_CR, P_CI, P_DR, P_DI, P_OUT, P_DBG, P_WS = 16, 18, 20, 22, 24, 26, 28, 30, 32, 34, 36
S_TAG = 38
S_TAGF = 35
SRD_X, SRD_W, SRD_WS, SRD_OUT = 40, 44, 48, 52
S_ST = 64
V_LANE = 1
SC = " sc1"
POLL_LIMIT = 20000

SLOT = 32768
LDS_TOTAL = 5 * SLOT
def item_base(n): return ((n + 4) % 5) * SLOT
FS = 4
SRD_C = 56

class Cfg:
    stamps = False
    NA_A = 6
    NA_B = 8
    KVL = 3
    LA = 12
    LAR = 4
    LA1 = 12
    LA0 = 10
    NXPRE = 2
    O_POLL = 15
    SLEEP = 4
    NT_TOUCH = 1
    NT_P1 = 0
    NT_WO = 0
    TPOS_A = 77
    RPG = 1
    NOCOMP = 0
    NOLOAD = 0
    NA = None
    SWAP = 1
    NTX = 2
    WOT = 1
    ALLNT = 0
    NOROT = 0
    TCH = 1
    HOLD = 0
    LASTNT = 0
    KVNT = 0
def NAof(typ): return Cfg.NA_A if typ == 0 else Cfg.NA_B
SG_N1, SG_N2, SG_D, SG_SL, SG_K, SG_V = 24, 25, 26, 27, 28, 29

def srd(a, d, p, nbytes):
    a(f"s_mov_b32 s{d}, s{p}\ns_and_b32 s{d+1}, s{p+1}, 0xffff\ns_mov_b32 s{d+2}, {nbytes}\ns_mov_b32 s{d+3}, 0x20000")
def srd_sel(a, d, p0, p1, nbytes):
    a(f"""s_cselect_b32 s{d}, s{p0}, s{p1}
    s_cselect_b32 s{d+1}, s{p0+1}, s{p1+1}
    s_and_b32 s{d+1}, s{d+1}, 0xffff
    s_mov_b32 s{d+2}, {nbytes}
    s_mov_b32 s{d+3}, 0x20000""")
def R(b, n=4):
    return f"v[{b}:{b+n-1}]"
def S4(d):
    return f"s[{d}:{d+3}]"

def interleave(a, mfmas, fillers):
    n, m = len(mfmas), len(fillers)
    k = 0
    for i, mf in enumerate(mfmas):
        a(mf)
        want = min(m, ((i + 1) * m + n - 1) // n)
        while k < want:
            a(fillers[k]); k += 1
    while k < m:
        a(fillers[k]); k += 1

def stamp(a, i, cyc=False):
    if Cfg.stamps:
        a(f"{'s_memtime' if cyc else 's_memrealtime'} s[{S_ST+2*i}:{S_ST+2*i+1}]")
def dump_stamps(a, grp, n=16):
    if not Cfg.stamps: return
    a(f"""
    s_waitcnt lgkmcnt(0)
    s_lshl_b32 s14, s2, 3
    s_add_u32 s14, s14, s{S_WAVE}
    s_add_u32 s14, s14, {4*grp}
    s_lshl_b32 s14, s14, 6
    s_add_u32 s14, s14, {WS_STAMP}
    v_mov_b32 v2, 0
    """)
    for i in range(n):
        a(f"v_mov_b32 v3, s{S_ST+2*i}\nbuffer_store_dword v3, v2, {S4(SRD_WS)}, s14 offen offset:{4*i}")

class VM:
    def __init__(self, a): self.a = a; self.q = []
    def op(self, tag, text):
        if Cfg.NOLOAD and " lds" in text:
            text = "\n".join(l for l in text.split("\n") if " lds" not in l)
            if tag in ("pk", "po"): raise Exception
            self.a(text); return
        self.a(text); self.q.append(tag)
    def wait(self, tag, extra=""):
        idx = max(i for i, t in enumerate(self.q) if t == tag) if tag in self.q else -1
        n = len(self.q) - 1 - idx
        assert n <= 63, n
        self.a(f"s_waitcnt vmcnt({n}){extra}")
        self.q = self.q[idx + 1:]
    def drained(self): self.q = []

def poll_blocking(a, vaddr, soff, vt, name):
    l = a.newlabel(name)
    a(f"""
    s_mov_b32 s39, 0
    {l}:
    buffer_load_dword v{vt}, v{vaddr}, {S4(SRD_WS)}, s{soff} offen sc1
    s_add_u32 s39, s39, 1
    s_waitcnt vmcnt(0)
    v_cmp_ne_u32 vcc, s{S_TAG}, v{vt}
    s_cmp_ge_u32 s39, {POLL_LIMIT}
    s_cbranch_scc1 {l}_x
    s_cbranch_vccz {l}_x
    s_sleep {Cfg.SLEEP}
    s_branch {l}
    {l}_x:
    """)

def flag_store(a, sidx, base, vt0, vt1):
    a(f"""
    s_lshl_b32 s14, s{sidx}, {FS}
    s_add_u32 s14, s14, {base}
    v_mov_b32 v{vt0}, 0
    v_mov_b32 v{vt1}, s{S_TAG}
    s_mov_b64 exec, 1
    buffer_store_dword v{vt1}, v{vt0}, {S4(SRD_WS)}, s14 offen sc1
    s_mov_b64 exec, -1
    """)

def xfrag_addrs(a, vX0, vX1, t0, t1, sbase):
    a(f"""
    v_and_b32 v{t0}, 15, v{V_LANE}
    v_lshrrev_b32 v{t1}, 1, v{t0}
    v_lshrrev_b32 v{vX0}, 4, v{V_LANE}
    v_xor_b32 v{vX0}, v{vX0}, v{t1}
    v_lshlrev_b32 v{vX0}, 4, v{vX0}
    v_lshl_add_u32 v{vX0}, v{t0}, 7, v{vX0}
    v_add_u32 v{vX0}, s{sbase}, v{vX0}
    v_xor_b32 v{vX1}, 64, v{vX0}
    """)

def frontload(a, mfmas, fillers):
    k = 0
    for mf in mfmas:
        a(mf)
        for _ in range(Cfg.RPG):
            if k < len(fillers):
                a(fillers[k]); k += 1
    while k < len(fillers):
        a(fillers[k]); k += 1

def gemm_loop(a, name, n_iter, STAGE, NSLOT, reads, mfmas, addr_regs, sSlot, sCnt, sD):
    l = a.newlabel(name)
    if Cfg.NOCOMP:
        reads = lambda ks, buf: []
        mfmas = lambda buf: ["s_nop 0"]
    a(f"s_mov_b32 s{sCnt}, {n_iter}\n{l}:")
    a("s_waitcnt lgkmcnt(0)")
    pre = [f"s_add_u32 s{sSlot}, s{sSlot}, 1\ns_cmp_eq_u32 s{sSlot}, {NSLOT}",
           f"s_cselect_b32 s{sD}, {-(NSLOT-1)}, 1\ns_cselect_b32 s{sSlot}, 0, s{sSlot}\ns_mul_i32 s{sD}, s{sD}, {STAGE}"]
    pre += [f"v_add_u32 v{r}, s{sD}, v{r}" for r in addr_regs]
    frontload(a, mfmas(0), reads(1, 1) + pre)
    a("s_waitcnt lgkmcnt(0)\ns_barrier")
    frontload(a, mfmas(1), reads(0, 0) + [f"s_sub_u32 s{sCnt}, s{sCnt}, 1\ns_cmp_lg_u32 s{sCnt}, 0"])
    a(f"s_cbranch_scc1 {l}")

def g0_a1(a):
    STAGE = 37888
    vX0, vX1, vWa = 14, 15, 16
    t0, t1 = 17, 18
    FR, ACC = 24, 104
    a(f"s_lshr_b32 s14, s{S_WAVE}, 1\ns_lshl_b32 s14, s14, 13")
    xfrag_addrs(a, vX0, vX1, t0, t1, 14)
    a(f"""
    s_and_b32 s14, s{S_WAVE}, 1
    s_mul_i32 s14, s14, 168
    s_add_u32 s14, s14, 16384
    v_lshrrev_b32 v{t0}, 2, v{V_LANE}
    v_mul_u32_u24 v{t0}, 672, v{t0}
    v_and_b32 v{t1}, 3, v{V_LANE}
    v_lshl_add_u32 v{t0}, v{t1}, 3, v{t0}
    v_add_u32 v{vWa}, s14, v{t0}
    """)
    for i in range(96):
        a(f"v_mov_b32 v{ACC+i}, 0")
    def reads(ks, buf):
        b = FR + 40 * buf
        x = [f"ds_read_b128 {R(b + 4*T)}, v{vX1 if ks else vX0} offset:{2048*T}" for T in range(4)]
        w = []
        for ct in range(6):
            sg, pi = ct // 2, ct % 2
            for j in range(2):
                w.append(f"ds_read_b64_tr_b16 {R(b + 16 + 4*ct + 2*j, 2)}, v{vWa} offset:{(32*ks + j)*336 + (7*sg + 4*pi)*8}")
        return w[:2] + x + w[2:]
    def mfmas(buf):
        b = FR + 40 * buf
        return [f"v_mfma_f32_16x16x32_bf16 {R(ACC + (ct*4+T)*4)}, {R(b + 16 + 4*ct)}, {R(b + 4*T)}, {R(ACC + (ct*4+T)*4)}"
                for ct in range(6) for T in range(4)]
    a("s_mov_b32 s9, 0\ns_barrier")
    stamp(a, 1)
    for f in reads(0, 0): a(f)
    gemm_loop(a, "a1", 7, STAGE, 4, reads, mfmas, [vX0, vX1, vWa], 9, 10, 11)
    stamp(a, 2)
    a(f"""
    s_waitcnt lgkmcnt(0)
    s_mul_i32 s9, s7, 6
    s_and_b32 s14, s{S_WAVE}, 1
    s_mul_i32 s14, s14, 3
    s_add_u32 s9, s9, s14
    s_lshl_b32 s10, s6, 3
    s_lshr_b32 s14, s{S_WAVE}, 1
    s_lshl_b32 s14, s14, 2
    s_add_u32 s10, s10, s14
    s_lshl_b32 s10, s10, 10
    s_add_u32 s10, s10, {WS_QKV}
    v_lshlrev_b32 v{t0}, 4, v{V_LANE}
    s_mov_b32 s56, 0
    s_mov_b32 s57, 0xffff0000
    """)
    for sg in range(3):
        a(f"""
        s_add_u32 s11, s9, {sg}
        s_lshl_b32 s12, s11, 17
        s_add_u32 s12, s12, s10
        s_cmp_lt_u32 s11, 16
        s_cselect_b32 s60, {f32bits(C2)}, 1.0
        s_cselect_b32 s61, {f32bits(C2)}, 1.0
        s_sub_u32 s14, s11, 16
        s_cmp_lt_u32 s14, 16
        s_cselect_b32 s14, 0, 0x3f80
        v_mov_b32 v{t1}, s14
        """)
        for T in range(4):
            d0 = ACC + ((2*sg)*4 + T)*4
            d1 = ACC + ((2*sg+1)*4 + T)*4
            o = FR + 4*((sg*4 + T) % 8)
            for d in (d0, d0+2, d1, d1+2):
                a(f"v_pk_mul_f32 {R(d,2)}, {R(d,2)}, s[60:61]")
            a(f"""
            v_cvt_pk_bf16_f32 v{o}, v{d0}, v{d0+1}
            v_cvt_pk_bf16_f32 v{o+1}, v{d0+2}, v{d0+3}
            v_cvt_pk_bf16_f32 v{o+2}, v{d1}, v{d1+1}
            v_cvt_pk_bf16_f32 v{o+3}, v{d1+2}, v{d1+3}
            v_cndmask_b32 v{o+2}, v{o+2}, v{t1}, s[56:57]
            v_cndmask_b32 v{o+3}, v{o+3}, 0, s[56:57]
            buffer_store_dwordx4 {R(o)}, v{t0}, {S4(SRD_WS)}, s12 offen offset:{1024*T}{SC}
            """)
    a(f"""
    s_lshl_b32 s9, s7, 4
    s_add_u32 s9, s9, s6
    s_lshl_b32 s9, s9, 2
    s_add_u32 s9, s9, s{S_WAVE}
    """)

B_X0, B_X1, B_E0, B_E1 = 14, 15, 16, 21
B_FR, B_ACC = 24, 104

def g0_bs(a):
    STAGE = SLOT
    t0, t1 = 17, 18
    FR, ACC = B_FR, B_ACC
    a(f"s_lshl_b32 s14, s{S_WAVE}, 12\ns_add_u32 s14, s14, {2*SLOT}")
    xfrag_addrs(a, B_X0, B_X1, t0, t1, 14)
    a(f"""
    v_subrev_u32 v{B_E0}, s14, v{B_X0}
    v_add_u32 v{B_E0}, {2*SLOT + 16384}, v{B_E0}
    v_xor_b32 v{B_E1}, 64, v{B_E0}
    """)
    for i in range(56):
        a(f"v_mov_b32 v{ACC+i}, 0")
    def reads(ks, buf):
        b = FR + 36 * buf
        f = [f"ds_read_b128 {R(b + 4*T)}, v{B_X1 if ks else B_X0} offset:{2048*T}" for T in range(2)]
        f += [f"ds_read_b128 {R(b + 8 + 4*t)}, v{B_E1 if ks else B_E0} offset:{2048*t}" for t in range(7)]
        return f
    def mfmas(buf):
        b = FR + 36 * buf
        return [f"v_mfma_f32_16x16x32_bf16 {R(ACC + (t*2+T)*4)}, {R(b + 4*T)}, {R(b + 8 + 4*t)}, {R(ACC + (t*2+T)*4)}"
                for t in range(7) for T in range(2)]
    a("s_mov_b32 s9, 2\ns_barrier")
    stamp(a, 1)
    for f in reads(0, 0): a(f)
    gemm_loop(a, "bs", 7, STAGE, 5, reads, mfmas, [B_X0, B_X1, B_E0, B_E1], 9, 10, 11)
    stamp(a, 2)
    a(f"""
    s_waitcnt lgkmcnt(0)
    s_mul_i32 s9, s7, {AT_NB}
    s_lshl_b32 s10, s6, 2
    s_add_u32 s10, s10, s{S_WAVE}
    s_mul_i32 s10, s10, 7168
    s_add_u32 s9, s9, s10
    s_add_u32 s9, s9, {WS_AT}
    s_add_u32 s10, s9, 4096
    v_lshlrev_b32 v{t0}, 4, v{V_LANE}
    """)
    for t in range(7):
        d0 = ACC + (t*2)*4
        d1 = d0 + 4
        o = FR + 4*t
        a(f"""
        v_cvt_pk_bf16_f32 v{o}, v{d0}, v{d0+1}
        v_cvt_pk_bf16_f32 v{o+1}, v{d0+2}, v{d0+3}
        v_cvt_pk_bf16_f32 v{o+2}, v{d1}, v{d1+1}
        v_cvt_pk_bf16_f32 v{o+3}, v{d1+2}, v{d1+3}
        buffer_store_dwordx4 {R(o)}, v{t0}, {S4(SRD_WS)}, s{9 if t < 4 else 10} offen offset:{1024*(t%4)}{SC}
        """)
    a(f"""
    s_lshl_b32 s9, s7, 4
    s_add_u32 s9, s9, s6
    s_add_u32 s9, s9, 128
    s_lshl_b32 s9, s9, 2
    s_add_u32 s9, s9, s{S_WAVE}
    """)

S_MB, S_NB, S_KQ, S_H, S_J, S_RB64, S_CT = 96, 97, 98, 99, 100, 101, 63

def jobs2(a):
    a(f"""
    s_lshr_b32 s{S_KQ}, s{S_XCD}, 1
    s_and_b32 s{S_MB}, s{S_XCD}, 1
    s_lshl_b32 s{S_MB}, s{S_MB}, 3
    s_and_b32 s14, s{S_LOC}, 7
    s_add_u32 s{S_MB}, s{S_MB}, s14
    s_lshr_b32 s{S_NB}, s{S_LOC}, 3
    s_lshl_b32 s{S_H}, s{S_XCD}, 1
    s_lshr_b32 s14, s{S_LOC}, 4
    s_add_u32 s{S_H}, s{S_H}, s14
    s_and_b32 s{S_J}, s{S_LOC}, 15
    s_mul_i32 s14, s{S_LOC}, 37
    s_lshr_b32 s14, s14, 8
    s_mul_i32 s15, s14, 7
    s_sub_u32 s{S_CT}, s{S_LOC}, s15
    s_min_u32 s14, s14, 3
    s_lshl_b32 s{S_RB64}, s{S_XCD}, 2
    s_add_u32 s{S_RB64}, s{S_RB64}, s14
    """)

A_Q = 160
A_CM0, A_CM8 = 168, 184
A_NM = 200
A_O = 216
A_S0, A_S1 = 232, 60
A_KF = 76
A_P = 248
A_VF, A_VF2 = 40, 48
A_KA, A_VA0, A_VA1, A_QA = 96, 97, 98, 99
A_M0, A_M1, A_T0 = 56, 57, 58
SA_O, SA_F, SA_MASK, SA_ROLE, SA_Q = 16, 17, 18, 90, 23

def attn_setup(a):
    t0, t1 = 17, 18
    a(f"""
    v_and_b32 v{t0}, 31, v{V_LANE}
    v_lshrrev_b32 v{t1}, 5, v{V_LANE}
    v_lshlrev_b32 v{t1}, 2, v{t1}
    v_sub_u32 v{t0}, v{t0}, v{t1}
    v_mov_b32 v{t1}, {NEGBIG}
    """)
    for i in range(16):
        kk = 8*(i//4) + i % 4
        a(f"""
        v_cmp_gt_i32 vcc, {kk}, v{t0}
        s_nop 1
        v_cndmask_b32 v{A_CM0+i}, v{t1}, 0, vcc
        v_cndmask_b32 v{A_CM8+i}, 0, v{t1}, vcc
        """)
    a(f"""
    v_bfe_u32 v{t0}, v{V_LANE}, 4, 1
    v_lshrrev_b32 v{t1}, 5, v{V_LANE}
    v_lshlrev_b32 v{t0}, 10, v{t0}
    v_lshl_add_u32 v{t0}, v{t1}, 8, v{t0}
    v_and_b32 v{t1}, 15, v{V_LANE}
    v_lshl_add_u32 v{A_QA}, v{t1}, 4, v{t0}
    s_lshl_b32 s14, s{S_WAVE}, 11
    s_add_u32 s15, s14, s{SG_K}
    v_add_u32 v{A_KA}, s15, v{A_QA}
    v_bfe_u32 v{t0}, v{V_LANE}, 4, 1
    v_bfe_u32 v{t1}, v{V_LANE}, 1, 1
    v_lshl_add_u32 v{t0}, v{t0}, 1, v{t1}
    v_lshrrev_b32 v{t1}, 5, v{V_LANE}
    v_add_u32 v{t1}, v{t1}, v{t0}
    v_and_b32 v{t1}, 3, v{t1}
    v_lshlrev_b32 v{t1}, 6, v{t1}
    v_lshl_add_u32 v{t0}, v{t0}, 8, v{t1}
    v_bfe_u32 v{t1}, v{V_LANE}, 2, 2
    v_lshl_add_u32 v{t0}, v{t1}, 4, v{t0}
    v_and_b32 v{t1}, 1, v{V_LANE}
    v_lshl_add_u32 v{t0}, v{t1}, 3, v{t0}
    s_add_u32 s15, s14, s{SG_V}
    v_add_u32 v{A_VA0}, s15, v{t0}
    v_xor_b32 v{A_VA1}, 128, v{A_VA0}
    s_lshl_b32 s15, s{S_H}, 17
    s_add_u32 s14, s14, s15
    s_lshl_b32 s15, s{S_J}, 13
    s_add_u32 s14, s14, s15
    s_add_u32 s{SA_O}, s14, {WS_O}
    s_add_u32 s{SA_Q}, s14, {WS_QKV}
    s_lshl_b32 s{SA_F}, s{S_J}, 1
    s_lshr_b32 s14, s{S_WAVE}, 1
    s_add_u32 s{SA_F}, s{SA_F}, s14
    s_lshl_b32 s{SA_F}, s{SA_F}, 4
    s_add_u32 s{SA_F}, s{SA_F}, s{S_H}
    s_lshl_b32 s{SA_F}, s{SA_F}, 1
    s_and_b32 s14, s{S_WAVE}, 1
    s_add_u32 s{SA_F}, s{SA_F}, s14
    s_mov_b32 s{SA_MASK}, 0
    s_mov_b32 s{SA_MASK+1}, -1
    """)

def qload_ops():
    return [f"buffer_load_dwordx4 {R(A_Q)}, v{A_QA}, {S4(SRD_WS)}, s{SA_Q} offen{SC}",
            f"buffer_load_dwordx4 {R(A_Q+4)}, v{A_QA}, {S4(SRD_WS)}, s{SA_Q} offen offset:512{SC}"]

def g0_attention(a):
    S = [A_S0, A_S1]
    def kread(t):
        b = A_KF + 8 * (t % 2)
        return [f"ds_read_b128 {R(b + 4*m)}, v{A_KA} offset:{2048*t + 512*m}" for m in range(2)]
    def vread(t):
        b = A_VF if t % 2 == 0 else A_VF2
        return [f"ds_read_b64_tr_b16 {R(b + 4*m + 2*jj, 2)}, v{A_VA1 if jj else A_VA0} offset:{2048*t + 1024*m}" for m in range(2) for jj in range(2)]
    def qk(t, c):
        b = A_KF + 8 * (t % 2)
        s = R(S[t % 2], 16)
        return [f"v_mfma_f32_32x32x16_bf16 {s}, {R(b)}, {R(A_Q)}, {c}",
                f"v_mfma_f32_32x32x16_bf16 {s}, {R(b+4)}, {R(A_Q+4)}, {s}"]
    for f in kread(0) + kread(1): a(f)
    a(f"v_mov_b32 v{A_M0}, {NEGBIG}\nv_mov_b32 v{A_M1}, {NEGBIG}")
    a("s_waitcnt lgkmcnt(2)")
    def c1(t): return R(A_CM0, 16) if t == 0 else (R(A_CM8, 16) if t == 8 else "0")
    def maxes(t):
        s = S[t % 2]
        return [f"v_max3_f32 v{A_M0 if i % 2 == 0 else A_M1}, v{s+2*i}, v{s+2*i+1}, v{A_M0 if i % 2 == 0 else A_M1}" for i in range(8)]
    for f in qk(0, c1(0)): a(f)
    for t in range(9):
        if t + 1 <= 8:
            a("s_waitcnt lgkmcnt(0)")
            for f in qk(t + 1, c1(t + 1)): a(f)
        if t + 2 <= 8:
            for f in kread(t + 2): a(f)
        if t == 0: a("s_nop 7")
        if t == 8:
            for f in kread(0) + kread(1): a(f)
        for f in maxes(t): a(f)
    for f in vread(0): a(f)
    a(f"""
    v_max_f32 v{A_M0}, v{A_M0}, v{A_M1}
    v_mov_b32 v{A_M1}, v{A_M0}
    s_nop 1
    v_permlane32_swap_b32 v{A_M0}, v{A_M1}
    v_max_f32 v{A_M0}, v{A_M0}, v{A_M1}
    """)
    for i in range(16):
        a(f"v_sub_f32 v{A_CM0+i}, v{A_CM0+i}, v{A_M0}")
    def c2(t): return R(A_CM0, 16) if t == 0 else (R(A_CM8, 16) if t == 8 else R(A_NM, 16))
    a("s_waitcnt lgkmcnt(0)\ns_nop 0")
    q0 = qk(0, c2(0))
    a(q0[0])
    for i in range(8):
        a(f"v_sub_f32 v{A_NM+i}, 0, v{A_M0}")
    a(q0[1])
    for i in range(8, 16):
        a(f"v_sub_f32 v{A_NM+i}, 0, v{A_M0}")
    for i in range(16):
        a(f"v_sub_f32 v{A_CM8+i}, v{A_CM8+i}, v{A_M0}")
    O = R(A_O, 16)
    def pv(t, m):
        vb = A_VF if t % 2 == 0 else A_VF2
        c = "0" if (t == 0 and m == 0) else O
        return f"v_mfma_f32_32x32x16_bf16 {O}, {R(vb+4*m)}, {R(A_P+4*m)}, {c}"
    for t in range(9):
        s = S[t % 2]
        ex = [f"v_exp_f32 v{s+i}, v{s+i}" for i in range(16)]
        cv = [f"v_cvt_pk_bf16_f32 v{A_P+i}, v{s+2*i}, v{s+2*i+1}" for i in range(8)]
        nq = qk(t + 1, c2(t + 1)) if t + 1 <= 8 else [None, None]
        kr = kread(t + 2) if t + 2 <= 8 else []
        vr = vread(t + 1) if t + 1 <= 8 else []
        a(ex[0]); a(ex[1])
        if t > 0: a(pv(t - 1, 1))
        a(ex[2]); a(ex[3]); a(ex[4]); a(ex[5])
        a("s_waitcnt lgkmcnt(0)")
        if nq[0]: a(nq[0])
        a(ex[6]); a(ex[7]); a(ex[8])
        for f in cv[0:4]: a(f)
        if nq[1]: a(nq[1])
        for f in vr: a(f)
        a(ex[9]); a(ex[10]); a(ex[11])
        a(pv(t, 0))
        for f in kr: a(f)
        a(ex[12]); a(ex[13]); a(ex[14]); a(ex[15])
        a(cv[4]); a(cv[5]); a(cv[6]); a(cv[7])
    t0 = A_T0
    a(f"""
    v_lshrrev_b32 v{t0}, 5, v{V_LANE}
    v_lshl_add_u32 v{t0}, v{t0}, 8, v{A_QA}
    """)
    a(pv(8, 1))
    a(f"""
    s_nop 11
    v_mov_b32 v{A_M0}, v{A_O+12}
    v_mov_b32 v{A_M1}, v{A_O+12}
    s_nop 1
    v_permlane32_swap_b32 v{A_M0}, v{A_M1}
    v_rcp_f32 v{A_M1}, v{A_M1}
    s_nop 0
    """)
    for i in range(16):
        a(f"v_mul_f32 v{A_O+i}, v{A_O+i}, v{A_M1}")
    for i in range(8):
        a(f"v_cvt_pk_bf16_f32 v{A_P+i}, v{A_O+2*i}, v{A_O+2*i+1}")
    a(f"""
    v_cndmask_b32 v{A_P+6}, v{A_P+6}, 0, s[{SA_MASK}:{SA_MASK+1}]
    v_cndmask_b32 v{A_P+7}, v{A_P+7}, 0, s[{SA_MASK}:{SA_MASK+1}]
    buffer_store_dwordx4 {R(A_P)}, v{t0}, {S4(SRD_WS)}, s{SA_O} offen{SC}
    buffer_store_dwordx4 {R(A_P+4)}, v{t0}, {S4(SRD_WS)}, s{SA_O} offen offset:256{SC}
    """)

def ab_poll_addr(a, v, sreg, partner=False):
    _ab_poll_addr(a, v, sreg)
    if partner:
        a(f"v_lshrrev_b32 v17, 5, v{V_LANE}\nv_lshl_add_u32 v{v}, v17, {FS + 7}, v{v}")

def _ab_poll_addr(a, v, sreg):
    a(f"""
    s_lshr_b32 s15, s{S_KQ}, 1
    s_lshl_b32 s15, s15, 2
    s_add_u32 s15, s15, s{S_NB}
    s_lshl_b32 s15, s15, 4
    s_and_b32 s14, s{S_KQ}, 1
    s_lshl_b32 s14, s14, 3
    s_add_u32 s15, s15, s14
    s_add_u32 s15, s15, 128
    s_lshl_b32 s{sreg}, s15, {FS + 2}
    v_and_b32 v{v}, 31, v{V_LANE}
    v_lshlrev_b32 v{v}, {FS}, v{v}
    """)

def g0_program(a):
    FR, ACC = B_FR, B_ACC
    t0, t1 = 17, 18
    a(f"s_cmp_ge_u32 s{S_LOC}, 16\ns_cbranch_scc1 g0_p1b")
    na = NAof(0)
    a(f"""
    s_mov_b32 s{SG_N1}, {na - 1}
    s_mov_b32 s{SG_N2}, {16 - na - 2}
    s_mov_b32 s{SG_D}, {(item_base(na + 2) - item_base(na)) & 0xffffffff}
    s_mov_b32 s{SG_SL}, {(na + 2 + 4) % 5}
    s_mov_b32 s{SG_K}, {item_base(na)}
    s_mov_b32 s{SG_V}, {item_base(na + 1)}
    """)
    g0_a1(a)
    a("s_barrier\ns_branch g0_p1done\ng0_p1b:")
    na = NAof(1)
    a(f"""
    s_mov_b32 s{SG_N1}, {na - 1}
    s_mov_b32 s{SG_N2}, {16 - na - 2}
    s_mov_b32 s{SG_D}, {(item_base(na + 2) - item_base(na)) & 0xffffffff}
    s_mov_b32 s{SG_SL}, {(na + 2 + 4) % 5}
    s_mov_b32 s{SG_K}, {item_base(na)}
    s_mov_b32 s{SG_V}, {item_base(na + 1)}
    """)
    g0_bs(a)
    a("g0_p1done:")
    stamp(a, 3)
    a(f"s_lshl_b32 s14, s{S_WAVE}, 12\ns_add_u32 s14, s14, {item_base(0)}")
    xfrag_addrs(a, B_X0, B_X1, t0, t1, 14)
    a(f"""
    v_lshlrev_b32 v{B_E0}, 4, v{V_LANE}
    v_add_u32 v{B_E0}, {item_base(0) + 16384}, v{B_E0}
    """)
    for i in range(56):
        a(f"v_mov_b32 v{ACC+i}, 0")
    a("s_waitcnt vmcnt(0)")
    flag_store(a, 9, WS_F1, t0, t1)
    stamp(a, 4)
    a(f"s_cmp_lt_u32 s{S_LOC}, 16\ns_cbranch_scc1 g0_t1\ns_barrier\ng0_t1:")
    attn_setup(a)
    a(f"s_cmp_lt_u32 s{S_LOC}, 16\ns_cbranch_scc1 g0_t2")
    a(f"s_cmp_lg_u32 s{S_WAVE}, 0\ns_cbranch_scc1 g0_nopoll")
    ab_poll_addr(a, t0, 56)
    poll_blocking(a, t0, 56, t1, "pab")
    a("g0_nopoll:\ns_barrier\ng0_t2:")
    def reads(ks, buf):
        b = FR + 36 * buf
        f = [f"ds_read_b128 {R(b + 4*T)}, v{B_X1 if ks else B_X0} offset:{2048*T}" for T in range(2)]
        f += [f"ds_read_b128 {R(b + 8 + 4*t)}, v{B_E0} offset:{7168*ks + 1024*t}" for t in range(7)]
        return f
    def mfmas(buf):
        b = FR + 36 * buf
        return [f"v_mfma_f32_16x16x32_bf16 {R(ACC + (t*2+T)*4)}, {R(b + 8 + 4*t)}, {R(b + 4*T)}, {R(ACC + (t*2+T)*4)}"
                for t in range(7) for T in range(2)]
    AR = [B_X0, B_X1, B_E0]
    a("s_mov_b32 s8, 4\ns_barrier")
    stamp(a, 5)
    for f in reads(0, 0): a(f)
    gemm_loop(a, "bb1", f"s{SG_N1}", SLOT, 5, reads, mfmas, AR, 8, 10, 11)
    for f in qload_ops(): a(f)
    gemm_loop(a, "bb1b", 1, SLOT, 5, reads, mfmas, AR, 8, 10, 11)
    stamp(a, 6)
    for r in AR:
        a(f"v_add_u32 v{r}, s{SG_D}, v{r}")
    a(f"s_mov_b32 s8, s{SG_SL}\ns_waitcnt vmcnt(0)")
    g0_attention(a)
    stamp(a, 7)
    a("s_barrier")
    for f in reads(0, 0): a(f)
    gemm_loop(a, "bb2", 1, SLOT, 5, reads, mfmas, AR, 8, 10, 11)
    a("s_waitcnt vmcnt(0)")
    flag_store(a, SA_F, WS_F2, t0, t1)
    gemm_loop(a, "bb3", f"s{SG_N2}", SLOT, 5, reads, mfmas, AR, 8, 10, 11)
    a("s_waitcnt lgkmcnt(0)")
    frontload(a, mfmas(0), reads(1, 1))
    a("s_waitcnt lgkmcnt(0)")
    frontload(a, mfmas(1), [])
    stamp(a, 8)
    a(f"""
    s_waitcnt lgkmcnt(0)
    s_lshl_b32 s9, s{S_MB}, 2
    s_add_u32 s9, s9, s{S_NB}
    s_lshl_b32 s9, s9, 4
    s_lshl_b32 s10, s{S_KQ}, 2
    s_add_u32 s10, s10, s9
    s_add_u32 s10, s10, s{S_WAVE}
    s_lshl_b32 s10, s10, 13
    s_add_u32 s10, s10, {WS_PQ}
    s_add_u32 s11, s10, 4096
    v_lshlrev_b32 v{t0}, 4, v{V_LANE}
    """)
    PK = 24
    for T in range(2):
        def val(v): return ACC + ((v // 4)*2 + T)*4 + v % 4
        for i in range(4):
            o = PK + 4*(T*4 + i)
            for d in range(3):
                a(f"v_cvt_pk_bf16_f32 v{o+d}, v{val(7*i+2*d)}, v{val(7*i+2*d+1)}")
            a(f"v_cvt_pk_bf16_f32 v{o+3}, v{val(7*i+6)}, s{S_TAGF}")
            a(f"buffer_store_dwordx4 {R(o)}, v{t0}, {S4(SRD_WS)}, s{10+T} offen offset:{1024*i}{SC}")
    a("s_barrier")
    WF = 60
    DA = 104
    WA = 4
    OA = 12
    a(f"""
    v_lshrrev_b32 v{WA}, 4, v{V_LANE}
    v_lshlrev_b32 v{WA}, 3, v{WA}
    v_bfe_u32 v{t1}, v{V_LANE}, 2, 2
    v_add_u32 v{WA}, v{WA}, v{t1}
    v_lshlrev_b32 v{WA}, 7, v{WA}
    v_bfe_u32 v{t1}, v{V_LANE}, 3, 2
    v_lshl_add_u32 v{WA}, v{t1}, 5, v{WA}
    v_and_b32 v{t1}, 3, v{V_LANE}
    v_lshl_add_u32 v{WA}, v{t1}, 3, v{WA}
    v_add_u32 v{WA}, {item_base(18)}, v{WA}
    v_xor_b32 v{WA+1}, 32, v{WA}
    v_xor_b32 v{WA+2}, 64, v{WA}
    v_xor_b32 v{WA+3}, 96, v{WA}
    s_lshl_b32 s14, s{S_WAVE}, 10
    v_add_u32 v{OA}, s14, v{t0}
    s_mov_b32 s11, 16384
    v_add_u32 v{OA}, {item_base(20)}, v{OA}
    s_lshl_b32 s12, s{S_RB64}, 6
    s_lshl_b32 s15, s{S_WAVE}, 4
    s_add_u32 s12, s12, s15
    s_mul_i32 s12, s12, 1792
    s_lshl_b32 s15, s{S_CT}, 7
    s_add_u32 s12, s12, s15
    v_and_b32 v{t0}, 15, v{V_LANE}
    v_mul_u32_u24 v{t0}, 1792, v{t0}
    v_lshrrev_b32 v{t1}, 4, v{V_LANE}
    v_lshl_add_u32 v{t0}, v{t1}, 3, v{t0}
    """)
    for i in range(16): a(f"v_mov_b32 v{DA+i}, 0")
    stamp(a, 9)
    a(f"""
    s_barrier
    s_cmp_ge_u32 s{S_LOC}, 28
    s_cbranch_scc1 g0_done
    """)
    WF = 128
    def wread(hh, buf):
        b = WF + 20 * buf
        f = [f"ds_read_b128 {R(b + 16)}, v{OA} offset:{4096*hh}"]
        f += [f"ds_read_b64_tr_b16 {R(b + 4*tau + 2*jj, 2)}, v{WA + tau} offset:{4096*hh + 512*jj}" for tau in range(4) for jj in range(2)]
        return f
    def mf(buf):
        b = WF + 20 * buf
        return [f"v_mfma_f32_16x16x32_bf16 {R(DA + 4*tau)}, {R(b + 4*tau)}, {R(b + 16)}, {R(DA + 4*tau)}" for tau in range(4)]
    for f in wread(0, 0) + wread(1, 1): a(f)
    dW = item_base(19) - item_base(18) - 16384
    dO = item_base(21) - item_base(20) - 16384
    a(f"s_mov_b32 s10, 0\na3_loop:")
    for f in wread(2, 2): a(f)
    a("s_waitcnt lgkmcnt(15)\ns_waitcnt lgkmcnt(9)" if False else "s_waitcnt lgkmcnt(9)")
    interleave(a, mf(0) + mf(1), wread(3, 3) + [f"""s_cmp_eq_u32 s10, 1
    s_cselect_b32 s14, {dW & 0xffffffff}, 16384
    s_cselect_b32 s15, {dO & 0xffffffff}, 16384""".replace(", 16384", ", s11")] )
    for tau in range(4): a(f"v_add_u32 v{WA+tau}, s14, v{WA+tau}")
    a(f"v_add_u32 v{OA}, s15, v{OA}")
    for f in wread(0, 0): a(f)
    a("s_waitcnt lgkmcnt(9)")
    interleave(a, mf(2) + mf(3), wread(1, 1) + ["s_add_u32 s10, s10, 1\ns_cmp_lt_u32 s10, 4"])
    a("s_cbranch_scc1 a3_loop")
    a("s_nop 7")
    for tau in range(4):
        d = DA + 4*tau
        a(f"""
        v_cvt_pk_bf16_f32 v{60+2*tau}, v{d}, v{d+1}
        v_cvt_pk_bf16_f32 v{60+2*tau+1}, v{d+2}, v{d+3}
        buffer_store_dwordx2 {R(60+2*tau, 2)}, v{t0}, {S4(SRD_OUT)}, s12 offen offset:{32*tau}
        """)
    a("g0_done:")
    stamp(a, 10)
    if Cfg.stamps: a("s_waitcnt vmcnt(0)")
    stamp(a, 11)
    stamp(a, 15, True)
    dump_stamps(a, 0)
    a("s_endpgm")

def dma(vm, tag, m0base, m0imm, vaddr, srd_, soff, lanes=64, sc=""):
    pre, post = "s_nop 0", ""
    if lanes == 16: pre, post = "s_mov_b64 exec, 0xffff", "\ns_mov_b64 exec, -1"
    if lanes == 32: pre, post = "s_mov_b32 exec_hi, 0", "\ns_mov_b32 exec_hi, -1"
    vm.op(tag, f"s_add_u32 m0, s{m0base}, {m0imm}\n{pre}\nbuffer_load_dwordx4 v{vaddr}, {S4(srd_)}, s{soff} offen{sc} lds{post}")

def x_dma_addrs(a, vXd, srow, rowbytes, permute, t0, t1, t2):
    if not permute:
        a(f"v_lshrrev_b32 v{t0}, 3, v{V_LANE}")
        o1, o2 = 8, 16
    else:
        a(f"""v_lshrrev_b32 v{t0}, 5, v{V_LANE}
        v_bfe_u32 v{t1}, v{V_LANE}, 3, 2
        v_lshl_add_u32 v{t0}, v{t0}, 3, v{t1}""")
        o1, o2 = 16, 4
    a(f"""
    v_add_u32 v{t0}, s{srow}, v{t0}
    v_mul_u32_u24 v{t0}, {rowbytes}, v{t0}
    v_and_b32 v{t1}, 7, v{V_LANE}
    v_lshrrev_b32 v{t2}, 4, v{V_LANE}
    v_xor_b32 v{t1}, v{t1}, v{t2}
    v_lshl_add_u32 v{vXd}, v{t1}, 4, v{t0}
    v_xor_b32 v{t1}, 4, v{t1}
    v_lshl_add_u32 v{vXd+1}, v{t1}, 4, v{t0}
    v_add_u32 v{vXd+1}, {o1*rowbytes}, v{vXd+1}
    v_add_u32 v{vXd+2}, {o2*rowbytes}, v{vXd}
    v_add_u32 v{vXd+3}, {o2*rowbytes}, v{vXd+1}
    """)

V_TR = 100
def g1bar(a, b):
    a("s_barrier")
    if Cfg.stamps:
        if b > 0: a(f"s_waitcnt lgkmcnt(0)\nv_writelane_b32 v{V_TR}, s88, {b-1}")
        a("s_memrealtime s[88:89]")

class Stream:
    def __init__(self, a, vm):
        self.a, self.vm, self.ops, self.pos = a, vm, [], 0
        self.hook = None
    def add(self, tag, need, avail, emits):
        for e in emits: self.ops.append((tag, need, avail, e))
    def run_to(self, b, la, maxops=999):
        last_needed = max([i for i, o in enumerate(self.ops) if o[1] <= b] + [-1])
        while self.pos < len(self.ops):
            tag, need, avail, e = self.ops[self.pos]
            if avail >= b:
                assert self.pos > last_needed, (b, tag)
                break
            if self.pos > last_needed + la: break
            if self.pos > last_needed and maxops <= 0: break
            e(); self.pos += 1; maxops -= 1
        if self.hook: self.hook(); self.hook = None
        tags = [o[0] for o in self.ops[:last_needed + 1]]
        pend = [t for t in self.vm.q if t in set(tags)]
        if pend: self.vm.wait(pend[-1])

G_XD, G_WD, G_CD, G_L16, G_PK, G_PO, G_PT, G_VD, G_WO = 4, 8, 24, 28, 29, 30, 31, 32, 33
G_TA, G_DUM, G_PA = 36, 38, 39
def g1_bbig_setup(a):
    t0, t1, t2 = 17, 18, 19
    a(f"""
    s_lshl_b32 s15, s{S_MB}, 7
    s_lshl_b32 s14, s{S_WAVE}, 5
    s_add_u32 s15, s15, s14
    """)
    x_dma_addrs(a, G_CD, 15, 4096, False, t0, t1, t2)
    a(f"s_cmp_lt_u32 s{S_KQ}, 2")
    srd_sel(a, SRD_C, P_CR, P_CI, 2048 * 4096)
    a(f"""
    v_lshlrev_b32 v{G_L16}, 4, v{V_LANE}
    s_and_b32 s14, s{S_KQ}, 1
    s_lshl_b32 s7, s14, 11
    s_mul_i32 s6, s14, {32*7168}
    s_lshr_b32 s15, s{S_KQ}, 1
    s_lshl_b32 s15, s15, 2
    s_add_u32 s15, s15, s{S_NB}
    s_mul_i32 s15, s15, {AT_NB}
    s_add_u32 s6, s6, s15
    s_mul_i32 s15, s{S_WAVE}, 3584
    s_add_u32 s6, s6, s15
    s_add_u32 s6, s6, {WS_AT}
    s_add_u32 s61, s15, 16384
    s_lshl_b32 s60, s{S_WAVE}, 12
    s_lshl_b32 s62, s{S_WAVE}, 10
    s_and_b32 s11, s{S_LOC}, 7
    s_and_b32 s14, s{S_NB}, 1
    s_lshl_b32 s14, s14, 2
    s_add_u32 s11, s11, s14
    s_cmp_lt_u32 s{S_NB}, 2
    s_cselect_b32 s14, 2, 0
    s_add_u32 s11, s11, s14
    s_and_b32 s30, s{S_XCD}, {Cfg.SWAP}
    s_lshl_b32 s30, s30, 3
    s_xor_b32 s31, s30, 8
    {"s_and_b32 s11, s%d, 7" % S_LOC if Cfg.NOROT else ""}
    """)

def touch_setup(a):
    t0, t1, t2 = 17, 18, 19
    a(f"""
    s_lshl_b32 s15, s{S_MB}, 7
    s_lshl_b32 s14, s{S_WAVE}, 5
    s_add_u32 s15, s15, s14
    v_lshrrev_b32 v{t0}, 1, v{V_LANE}
    v_add_u32 v{t0}, s15, v{t0}
    v_lshlrev_b32 v{t0}, 12, v{t0}
    v_and_b32 v{t1}, 1, v{V_LANE}
    v_add_u32 v{t1}, s11, v{t1}
    v_and_b32 v{t2}, 7, v{t1}
    v_lshl_add_u32 v{G_TA}, v{t2}, 7, v{t0}
    v_add_u32 v{t1}, 2, v{t1}
    v_and_b32 v{t2}, 7, v{t1}
    v_lshl_add_u32 v{G_TA+1}, v{t2}, 7, v{t0}
    """)
def touch_ops(a, vm, off=0):
    nt = " nt" if Cfg.NT_TOUCH else ""
    return [(lambda i=i: vm.op("touch", f"buffer_load_dword v{G_DUM}, v{G_TA+i}, {S4(SRD_C)}, s7 offen offset:{off}{nt}")) for i in range(2)]

def stage_item(s): return s if s < Cfg.NA else s + 2
def x_ops(a, vm, s, nt=None):
    base = item_base(stage_item(s))
    if nt is None: nt = bool(Cfg.ALLNT or s < 2 or (s in (8, 9) and Cfg.NA == 8) or (Cfg.LASTNT and (s & 7) >= 6))
    def mk(i):
        def e():
            if i == 0:
                a(f"s_add_u32 s14, s11, {s}\ns_and_b32 s14, s14, 7\ns_or_b32 s14, s14, s{30 + (s >> 3)}\ns_lshl_b32 s0, s14, 7\ns_add_u32 s0, s0, s7")
            dma(vm, ("x", s), 60, base + i*1024, G_CD + i, SRD_C, 0, sc=(" nt" if nt else ""))
        return e
    return [mk(i) for i in range(4)]
def e_ops(a, vm, s):
    base = item_base(stage_item(s))
    ent = " nt" if (Cfg.LASTNT and (s & 7) == 7) else ""
    def mk(i):
        def e():
            if i == 0:
                a(f"s_add_u32 s14, s11, {s}\ns_and_b32 s14, s14, 7\ns_or_b32 s14, s14, s{30 + (s >> 3)}\ns_mul_i32 s1, s14, 14336\ns_add_u32 s1, s1, s6")
            pre, post = ("s_nop 0", "") if i < 3 else ("s_mov_b32 exec_hi, 0", "\ns_mov_b32 exec_hi, -1")
            vm.op(("e", s), f"s_add_u32 m0, s61, {base}\n{pre}\nbuffer_load_dwordx4 v{G_L16}, {S4(SRD_WS)}, s1 offen offset:{1024*i}{SC}{ent} lds{post}")
        return e
    return [mk(i) for i in range(4)]

X_AVAIL = [4, 5, 6, 7, 7]

def g1_p1(a, typ):
    vXd, vWd = G_XD, G_WD
    t0, t1, t2, t3 = 17, 18, 19, 20
    sX, sW, sC, sT, sM0x, sM0w = 9, 10, 8, 11, 12, 13
    stepW = 64*2688 if typ == 0 else 128
    def sbase(c): return (c % 4) * 37888 if typ == 0 else ((c + 2) % 5) * SLOT
    nslot = 4 if typ == 0 else 5
    ntp = " nt" if Cfg.NT_P1 in (1, 2, 4) else ""
    def ntc(c): return " nt" if (Cfg.NT_P1 == 1 or (Cfg.NT_P1 == 2 and c < 2) or (Cfg.NT_P1 == 3 and c >= 5) or (Cfg.NT_P1 == 4 and (c >= 5 or c < 2))) else ""
    a(f"""
    s_lshl_b32 s{sT}, s6, 7
    s_lshl_b32 s14, s{S_WAVE}, 5
    s_add_u32 s{sT}, s{sT}, s14
    """)
    x_dma_addrs(a, vXd, sT, 896, typ == 1, t0, t1, t2)
    a(f"s_lshl_b32 s{sM0x}, s{S_WAVE}, 12\ns_lshl_b32 s{sX}, s{sC}, 7\ns_waitcnt lgkmcnt(0)")
    srd(a, SRD_X, P_AX if typ == 0 else P_BX, 2048 * 896)
    vm = VM(a)
    stamp(a, 1)
    for i in range(4):
        dma(vm, ("p", 0), sM0x, sbase(0) + i*1024, vXd+i, SRD_X, sX, sc=ntp)
    if typ == 0:
        srd(a, SRD_W, P_WQKV, 448 * 2688)
        a(f"""
        s_mul_i32 s{sT}, s{S_WAVE}, {16*2688}
        s_mul_i32 s14, s7, 336
        s_add_u32 s{sT}, s{sT}, s14
        """)
        nw, wbytes = 6, 5376
        def waddr(i):
            a(f"""
            v_add_u32 v{t0}, {64*i}, v{V_LANE}
            v_mul_u32_u24 v{t1}, 3121, v{t0}
            v_lshrrev_b32 v{t1}, 16, v{t1}
            v_mul_u32_u24 v{t2}, 21, v{t1}
            v_sub_u32 v{t0}, v{t0}, v{t2}
            v_and_b32 v{t2}, 8, v{t1}
            v_and_b32 v{t3}, 1, v{t1}
            v_lshl_add_u32 v{t2}, v{t3}, 2, v{t2}
            v_bfe_u32 v{t3}, v{t1}, 1, 2
            v_add_u32 v{t2}, v{t2}, v{t3}
            v_mul_u32_u24 v{t2}, 2688, v{t2}
            v_lshl_add_u32 v{t2}, v{t0}, 4, v{t2}
            v_add_u32 v{vWd+i}, s{sT}, v{t2}
            """)
    else:
        a("s_cmp_lt_u32 s7, 4")
        srd_sel(a, SRD_W, P_DR, P_DI, 448 * 896)
        a(f"""
        s_and_b32 s{sT}, s7, 3
        s_mul_i32 s{sT}, s{sT}, 112
        s_mul_i32 s15, s{S_WAVE}, 28
        """)
        nw, wbytes = 4, 3584
        def waddr(i):
            a(f"""
            v_lshrrev_b32 v{t0}, 3, v{V_LANE}
            v_add3_u32 v{t0}, v{t0}, s15, {8*i}
            v_bfe_u32 v{t1}, v{t0}, 2, 2
            v_mul_u32_u24 v{t1}, 28, v{t1}
            v_lshrrev_b32 v{t2}, 4, v{t0}
            v_lshl_add_u32 v{t1}, v{t2}, 2, v{t1}
            v_and_b32 v{t2}, 3, v{t0}
            v_add3_u32 v{t1}, v{t1}, v{t2}, s{sT}
            v_mul_u32_u24 v{t1}, 896, v{t1}
            v_bfe_u32 v{t2}, v{t0}, 1, 3
            v_and_b32 v{t3}, 7, v{V_LANE}
            v_xor_b32 v{t2}, v{t2}, v{t3}
            v_lshl_add_u32 v{vWd+i}, v{t2}, 4, v{t1}
            """)
    a(f"""
    s_mul_i32 s{sM0w}, s{S_WAVE}, {wbytes}
    s_add_u32 s{sM0w}, s{sM0w}, 16384
    s_mul_i32 s{sW}, s{sC}, {stepW}
    """)
    def wl(i): return 64 if i < nw - 1 else (16 if typ == 0 else 32)
    for i in range(nw):
        waddr(i)
        dma(vm, ("p", 0), sM0w, sbase(0) + i*1024, vWd+i, SRD_W, sW, lanes=wl(i), sc=ntp)
    st = Stream(a, vm)
    st.add(("p", 0), 0, -1, [])
    def pops(c):
        ops = []
        def mkx(i):
            def e():
                if i == 0:
                    a(f"s_add_u32 s{sC}, s{sC}, 1\ns_cmp_eq_u32 s{sC}, 7\ns_cselect_b32 s{sC}, 0, s{sC}\ns_lshl_b32 s{sX}, s{sC}, 7\ns_mul_i32 s{sW}, s{sC}, {stepW}")
                dma(vm, ("p", c), sM0x, sbase(c) + i*1024, vXd+i, SRD_X, sX, sc=ntc(c))
            return e
        def mkw(i):
            return lambda: dma(vm, ("p", c), sM0w, sbase(c) + i*1024, vWd+i, SRD_W, sW, lanes=wl(i), sc=ntc(c))
        return [mkx(i) for i in range(4)] + [mkw(i) for i in range(nw)]
    tpos = Cfg.TPOS_A if typ == 0 else 77
    for c in range(1, 7):
        st.add(("p", c), c, (c - nslot + 1) if c >= nslot else -1, pops(c))
        if tpos == c: st.add("touch", c + 1 if c < 6 else 99, -1, touch_ops(a, vm))
    st.run_to(0, Cfg.LA0)
    jobs2(a)
    g1_bbig_setup(a)
    touch_setup(a)
    if tpos == 0:
        for e in touch_ops(a, vm): e()
    epoch_load(a)
    srd(a, SRD_WS, P_WS, WS_SIZE)
    srd(a, SRD_OUT, P_OUT, 2048 * 1792)
    stamp(a, 2)
    vm.wait(("p", 0))
    g1bar(a, 0)
    for b in range(1, 7):
        st.run_to(b, Cfg.LA1)
        g1bar(a, b)
    st.run_to(7, 99)
    assert st.pos == len(st.ops)
    return list(vm.q)

def epoch_load(a):
    a(f"""
    s_add_u32 s14, s{P_WS}, {WS_EPOCH}
    s_addc_u32 s15, s{P_WS+1}, 0
    s_load_dword s39, s[14:15], 0
    s_waitcnt lgkmcnt(0)
    s_mul_i32 s{S_TAG}, s39, 0x19660d
    s_add_u32 s{S_TAG}, s{S_TAG}, 0x3c6ef35f
    s_and_b32 s14, s{S_TAG}, 0xfff
    s_or_b32 s14, s14, 0x4000
    s_lshr_b32 s15, s39, 16
    s_cmp_eq_u32 s14, s15
    s_cselect_b32 s15, 0x1000, 0
    s_or_b32 s14, s14, s15
    s_lshl_b32 s{S_TAGF}, s14, 16
    """)

def g1_common_setup(a):
    t0, t1, t2 = 17, 18, 19
    a(f"""
    v_and_b32 v{t0}, 31, v{V_LANE}
    v_lshlrev_b32 v{G_PO}, {FS}, v{t0}
    s_lshl_b32 s13, s{S_RB64}, {FS + 5}
    s_add_u32 s13, s13, {WS_F2}
    v_lshrrev_b32 v{t0}, 3, v{V_LANE}
    v_mul_u32_u24 v{t0}, 896, v{t0}
    v_and_b32 v{t1}, 7, v{V_LANE}
    v_bfe_u32 v{t2}, v{V_LANE}, 4, 1
    v_lshlrev_b32 v{t2}, 1, v{t2}
    v_xor_b32 v{t1}, v{t1}, v{t2}
    v_lshl_add_u32 v{G_WO}, v{t1}, 4, v{t0}
    v_xor_b32 v{t1}, 4, v{t1}
    v_lshl_add_u32 v{G_WO+1}, v{t1}, 4, v{t0}
    v_mov_b32 v{t2}, 0x7ffffff0
    v_cmp_gt_u32 vcc, 32, v{V_LANE}
    s_mul_i32 s9, s{S_WAVE}, {28*896}
    s_lshl_b32 s14, s{S_CT}, 7
    v_cndmask_b32 v{G_WO+2}, v{t2}, v{G_WO+1}, vcc
    s_add_u32 s9, s9, s14
    """)
    srd(a, SRD_W, P_WO, 448 * 896)

def g1_kv_setup(a):
    t0, t1, t2 = 17, 18, 19
    for kind in range(3):
        a(f"""
        s_add_u32 s14, s{S_H}, {16*kind}
        s_mul_i32 s15, s14, 43
        s_lshr_b32 s15, s15, 8
        s_mul_i32 s12, s15, 6
        s_sub_u32 s14, s14, s12
        s_cmp_ge_u32 s14, 3
        s_cselect_b32 s14, 1, 0
        s_lshl_b32 s15, s15, 6
        s_add_u32 s{24+kind}, s15, s14
        """)
    a(f"""
    v_mov_b32 v{t0}, s26
    v_mov_b32 v{t1}, s25
    v_cmp_gt_u32 vcc, 16, v{V_LANE}
    v_mov_b32 v{t2}, s24
    s_nop 0
    v_cndmask_b32 v{t0}, v{t0}, v{t1}, vcc
    v_cmp_gt_u32 vcc, 8, v{V_LANE}
    v_bfe_u32 v{t1}, v{V_LANE}, 1, 2
    v_min_u32 v{t1}, 2, v{t1}
    v_cndmask_b32 v{t0}, v{t0}, v{t2}, vcc
    v_sub_u32 v{t1}, s{S_J}, v{t1}
    v_max_i32 v{t1}, 0, v{t1}
    v_lshl_add_u32 v{t0}, v{t1}, 2, v{t0}
    v_and_b32 v{t1}, 1, v{V_LANE}
    v_lshl_add_u32 v{t0}, v{t1}, 1, v{t0}
    v_lshlrev_b32 v{G_PK}, {FS}, v{t0}
    s_mov_b32 s12, {WS_F1}
    v_lshrrev_b32 v{t0}, 4, v{V_LANE}
    v_lshlrev_b32 v{t1}, 2, v{t0}
    v_sub_u32 v{t1}, v{V_LANE}, v{t1}
    v_and_b32 v{t1}, 15, v{t1}
    v_lshlrev_b32 v{t1}, 4, v{t1}
    v_lshl_add_u32 v{G_VD}, v{t0}, 8, v{t1}
    s_lshl_b32 s8, s{S_H}, 17
    s_add_u32 s8, s8, {WS_QKV + 16*131072}
    s_lshl_b32 s10, s{S_J}, 3
    s_add_u32 s10, s10, s{S_WAVE}
    s_sub_u32 s10, s10, 16
    """)

def g1_phase2(a, typ):
    NA = Cfg.NA = NAof(typ)
    t0, t1, t2, t3 = 17, 18, 19, 20
    vm = VM(a)
    stamp(a, 3)
    g1_common_setup(a)
    g1_kv_setup(a)
    nt = bool(Cfg.NT_TOUCH)
    def async_check(vaddr, soff, name):
        l = a.newlabel(name)
        a(f"v_cmp_ne_u32 vcc, s{S_TAG}, v{G_PT}\ns_cbranch_vccz {l}")
        poll_blocking(a, vaddr, soff, G_PT, name + "b")
        a(f"{l}:")
    if typ == 0: ab_poll_addr(a, G_PA, 34)
    g1bar(a, 7)
    stamp(a, 4)
    a("s_barrier")
    if typ == 0:
        vm.op("pa", f"buffer_load_dword v{G_PT}, v{G_PA}, {S4(SRD_WS)}, s34 offen sc1")
    for st_ in range(Cfg.NXPRE):
        for e in x_ops(a, vm, st_): e()
    if typ == 0:
        vm.wait("pa")
        async_check(G_PA, 34, "pa")
    else:
        a("s_barrier")
    if Cfg.stamps: a(f"s_waitcnt lgkmcnt(0)\nv_writelane_b32 v{V_TR}, s88, 7\ns_memrealtime s[88:89]")
    vm.q = []
    stamp(a, 5)
    st = Stream(a, vm)
    def need(s): return 9 + s if s < NA else 10 + s
    def free_after_item(n):
        if n < NA: return 10 + n
        if n < NA + 2: return 10 + NA
        return 11 + (n - 2)
    def avail(n): return free_after_item(n - 5) if n >= 5 else -1
    def kv_ops(which):
        base = item_base(NA + which)
        def mk(i):
            def e():
                a(f"""s_add_u32 s14, s10, {4*i}
                s_max_i32 s14, s14, 0
                s_lshl_b32 s14, s14, 10
                s_add_u32 s14, s14, s8""")
                if which: a(f"s_add_u32 s14, s14, {16*131072}")
                dma(vm, "kv", 62, base + 4096*i, G_VD if which else G_L16, SRD_WS, 14, sc=SC + (" nt" if Cfg.KVNT else ""))
            return e
        return [mk(i) for i in range(6)]
    def wo_ops(half):
        base = item_base(18 + half)
        def mk(i, qd):
            def e():
                a(f"s_add_u32 s14, s9, {((8*half + 4*i)*28 + 8*qd)*896}")
                dma(vm, "wo", 60, base + 16384*i + 1024*qd, G_WO + (2 if qd == 3 else qd % 2), SRD_W, 14)
            return e
        return [mk(i, qd) for i in range(2) for qd in range(4)]
    def touchB():
        if not Cfg.TCH: return
        if NA != 8:
            a("s_lshl_b32 s14, s31, 7\ns_add_u32 s14, s14, s7")
            vm.op("touch", f"buffer_load_dword v{G_DUM}, v{G_TA}, {S4(SRD_C)}, s14 offen nt")
        a(f"""
        s_and_b32 s14, s11, 7
        s_add_u32 s14, s14, s31
        s_mul_i32 s14, s14, 14336
        s_add_u32 s14, s14, s6
        v_lshlrev_b32 v{t0}, 7, v{V_LANE}
        s_mov_b64 exec, 0xfffffff
        """)
        vm.op("touch", f"buffer_load_dword v{G_DUM}, v{t0}, {S4(SRD_WS)}, s14 offen sc1")
        a(f"""
        s_lshl_b32 s14, s{S_LOC}, 2
        s_add_u32 s14, s14, s{S_WAVE}
        s_mul_i32 s14, s14, 3200
        s_mov_b64 exec, 0x1ffffff
        v_add_u32 v{t0}, s14, v{t0}
        """)
        if Cfg.WOT: vm.op("touch", f"buffer_load_dword v{G_DUM}, v{t0}, {S4(SRD_W)}, 0 offen{' nt' if Cfg.WOT == 2 else ''}")
        a("s_mov_b64 exec, -1")
    kvb = 9 + NA - Cfg.KVL
    ob = 10 + Cfg.O_POLL + 1
    for s in range(16):
        n = stage_item(s)
        av = avail(n)
        if Cfg.HOLD and s >= 10: av = max(av, 10 + NA)
        if s == NA:
            st.add("kv", 9 + NA, max(avail(NA), kvb - 1), kv_ops(0))
            st.add("kv", 9 + NA, max(avail(NA + 1), kvb - 1), kv_ops(1))
            st.add("tb", 10 + NA, 9 + NA, [touchB])
        if s >= Cfg.NXPRE: st.add(("x", s), need(s), av, x_ops(a, vm, s))
        st.add(("e", s), need(s), av, e_ops(a, vm, s))
    st.add("wo", 27, avail(18), wo_ops(0))
    st.add("wo", 27, avail(19), wo_ops(1))
    def kv_patch():
        l = a.newlabel("nopatch")
        a(f"""
        s_cmp_ge_u32 s{S_J}, 2
        s_cbranch_scc1 {l}
        v_lshrrev_b32 v{t0}, 4, v{V_LANE}
        v_lshlrev_b32 v{t0}, 12, v{t0}
        v_and_b32 v{t1}, 15, v{V_LANE}
        v_lshl_add_u32 v{t0}, v{t1}, 4, v{t0}
        v_add_u32 v{t0}, s62, v{t0}
        v_add_u32 v{t0}, {item_base(NA)}, v{t0}
        v_mov_b32 v{t1}, 0xf14a
        s_cmp_eq_u32 s{S_J}, 0
        s_cselect_b32 exec_hi, -1, 0
        ds_write_b16 v{t0}, v{t1} offset:{3*256 + 8}
        s_mov_b32 exec_hi, -1
        s_waitcnt lgkmcnt(0)
        {l}:
        """)
    for b in range(9, 27):
        if b == kvb - 1: vm.op("pk", f"buffer_load_dword v{G_PT}, v{G_PK}, {S4(SRD_WS)}, s12 offen sc1")
        if b == ob - 1: vm.op("po", f"buffer_load_dword v{G_PT}, v{G_PO}, {S4(SRD_WS)}, s13 offen sc1")
        if b == kvb:
            vm.wait("pk"); async_check(G_PK, 12, "pk")
        if b == ob:
            vm.wait("po"); async_check(G_PO, 13, "po")
        la = Cfg.LA + Cfg.LAR * (b - 9)
        if b == 26: la = 99
        st.run_to(b, la)
        if b == 9 + NA: kv_patch()
        g1bar(a, b)
        if b == 9: stamp(a, 6)
        if b == 9 + NA: stamp(a, 7)
    assert st.pos == len(st.ops)

def g1_program(a):
    t0, t1, t2, t3 = 17, 18, 19, 20
    a(f"s_cmp_ge_u32 s{S_LOC}, 16\ns_cbranch_scc1 g1_p1b")
    g1_p1(a, 0)
    g1_phase2(a, 0)
    a("s_branch g1_join\ng1_p1b:")
    g1_p1(a, 1)
    g1_phase2(a, 1)
    a("g1_join:")
    d21 = item_base(21) - item_base(20) - 8*4096
    a(f"s_lshl_b32 s10, s{S_RB64}, 12\ns_add_u32 s10, s10, s62\ns_add_u32 s10, s10, {WS_O}\ns_lshl_b32 s8, s{S_CT}, 1\ns_add_u32 s9, s62, {item_base(20)}\ns_mov_b32 s12, 16\ng1_ol:")
    a(f"""
    s_and_b32 s14, s8, 15
    s_lshl_b32 s15, s14, 12
    s_add_u32 s15, s15, s9
    s_cmp_ge_u32 s14, 8
    s_cselect_b32 s0, {d21 & 0xffffffff}, 0
    s_add_u32 m0, s15, s0
    s_lshl_b32 s14, s14, 17
    s_add_u32 s14, s14, s10
    buffer_load_dwordx4 v{G_L16}, {S4(SRD_WS)}, s14 offen{SC} lds
    s_add_u32 s8, s8, 1
    s_sub_u32 s12, s12, 1
    s_cmp_lg_u32 s12, 0
    s_cbranch_scc1 g1_ol
    """)
    vPa, vOut = 4, 5
    a(f"""
    s_lshl_b32 s9, s{S_MB}, 2
    s_add_u32 s9, s9, s{S_NB}
    s_lshl_b32 s9, s9, 4
    s_add_u32 s9, s9, s{S_KQ}
    s_lshl_b32 s8, s9, 13
    s_add_u32 s8, s8, {WS_PQ}
    s_lshl_b32 s14, s{S_WAVE}, 11
    s_add_u32 s8, s8, s14
    s_add_u32 s9, s8, 32768
    s_add_u32 s10, s8, 65536
    s_add_u32 s11, s8, 98304
    s_lshl_b32 s12, s{S_MB}, 7
    s_lshl_b32 s14, s{S_KQ}, 5
    s_add_u32 s12, s12, s14
    s_lshr_b32 s14, s{S_WAVE}, 1
    s_lshl_b32 s14, s14, 4
    s_add_u32 s12, s12, s14
    s_mul_i32 s12, s12, 1792
    s_mul_i32 s14, s{S_NB}, 224
    s_add_u32 s12, s12, s14
    s_and_b32 s14, s{S_WAVE}, 1
    s_mul_i32 s14, s14, 28
    s_add_u32 s12, s12, s14
    s_add_u32 s12, s12, 896
    v_and_b32 v{t0}, 15, v{V_LANE}
    v_mul_u32_u24 v{t0}, 1792, v{t0}
    v_lshrrev_b32 v{t1}, 4, v{V_LANE}
    v_mul_u32_u24 v{t1}, 56, v{t1}
    v_add_u32 v{vOut}, v{t0}, v{t1}
    s_mov_b32 s60, 0xffff0000
    """)
    D = 40
    def ploads():
        for q in range(4):
            for i in range(2):
                a(f"buffer_load_dwordx4 {R(D + 8*q + 4*i)}, v{G_L16}, {S4(SRD_WS)}, s{8+q} offen offset:{1024*i}{SC}")
    ploads()
    a("s_waitcnt vmcnt(8)")
    g1bar(a, 27)
    if Cfg.stamps: a(f"s_waitcnt lgkmcnt(0)\nv_writelane_b32 v{V_TR}, s88, 27")
    stamp(a, 8)
    a("s_mov_b32 s39, 0\ns_branch g1_pp1\ng1_pp:")
    ploads()
    a(f"g1_pp1:\ns_add_u32 s39, s39, 1\ns_waitcnt vmcnt(0)")
    a(f"v_xor_b32 v{t0}, s{S_TAGF}, v{D+3}")
    for n in range(1, 8):
        a(f"v_xor_b32 v{t1}, s{S_TAGF}, v{D+4*n+3}\nv_or_b32 v{t0}, v{t0}, v{t1}")
    a(f"""
    v_cmp_le_u32 vcc, 0x10000, v{t0}
    s_cmp_ge_u32 s39, {POLL_LIMIT}
    s_cbranch_scc1 g1_ppx
    s_cbranch_vccz g1_ppx
    s_sleep {Cfg.SLEEP}
    s_branch g1_pp
    g1_ppx:
    """)
    stamp(a, 9)
    SUM = 104
    lo = 80
    for i in range(2):
        for d in range(4):
            r = [D + 8*q + 4*i + d for q in range(4)]
            for half in range(2 if d < 3 else 1):
                for q in range(4):
                    a(f"v_lshlrev_b32 v{lo+q}, 16, v{r[q]}" if half == 0 else f"v_and_b32 v{lo+q}, s60, v{r[q]}")
                a(f"v_add_f32 v{lo}, v{lo}, v{lo+1}\nv_add_f32 v{lo+2}, v{lo+2}, v{lo+3}\nv_sub_f32 v{SUM + 7*i + 2*d + half}, v{lo}, v{lo+2}")
    for n in range(7):
        a(f"v_cvt_pk_bf16_f32 v{88+n}, v{SUM+2*n}, v{SUM+2*n+1}")
    a(f"""
    buffer_store_dwordx4 {R(88)}, v{vOut}, {S4(SRD_OUT)}, s12 offen
    buffer_store_dwordx3 {R(92,3)}, v{vOut}, {S4(SRD_OUT)}, s12 offen offset:16
    s_cmp_lg_u32 s2, 0
    s_cbranch_scc1 g1_done
    s_cmp_lg_u32 s{S_WAVE}, 0
    s_cbranch_scc1 g1_done
    v_lshlrev_b32 v{vPa}, {FS + 2}, v{V_LANE}
    """)
    for i in range(4):
        a(f"s_mov_b32 s8, {WS_F1 + (256 << FS)*i}")
        poll_blocking(a, vPa, 8, G_PT, "pe")
    a(f"""
    s_mov_b32 s14, {WS_EPOCH}
    v_mov_b32 v{t0}, 0
    v_mov_b32 v{t1}, s{S_TAG}
    s_mov_b64 exec, 1
    buffer_store_dword v{t1}, v{t0}, {S4(SRD_WS)}, s14 offen sc1
    s_mov_b64 exec, -1
    g1_done:
    """)
    stamp(a, 10)
    if Cfg.stamps: a("s_waitcnt vmcnt(0)")
    stamp(a, 11)
    stamp(a, 15, True)
    dump_stamps(a, 1)
    if Cfg.stamps:
        a(f"""
        s_lshl_b32 s14, s2, 2
        s_add_u32 s14, s14, s{S_WAVE}
        s_lshl_b32 s14, s14, 8
        s_add_u32 s14, s14, {WS_STAMP + 0x40000}
        v_lshlrev_b32 v2, 2, v{V_LANE}
        buffer_store_dword v{V_TR}, v2, {S4(SRD_WS)}, s14 offen
        """)
    a("s_endpgm")

def build():
    a = Asm()
    kernel_begin(a, K)
    a(f"""
    s_cmp_ge_u32 s2, 256
    s_cbranch_scc1 k_end
    s_load_dwordx16 s[16:31], s[0:1], 0
    s_load_dwordx4 s[32:35], s[0:1], 64
    s_load_dwordx2 s[36:37], s[0:1], 80
    v_and_b32 v{V_LANE}, 63, v0
    v_lshrrev_b32 v2, 6, v0
    s_and_b32 s{S_XCD}, s2, 7
    v_readfirstlane_b32 s15, v2
    s_lshr_b32 s{S_LOC}, s2, 3
    """)
    stamp(a, 0); stamp(a, 14, True)
    a(f"""
    s_and_b32 s6, s{S_XCD}, 3
    s_lshl_b32 s6, s6, 2
    s_and_b32 s14, s{S_LOC}, 3
    s_add_u32 s6, s6, s14
    s_lshr_b32 s7, s{S_XCD}, 2
    s_lshl_b32 s7, s7, 2
    s_bfe_u32 s13, s{S_LOC}, 0x20002
    s_add_u32 s7, s7, s13
    s_add_u32 s8, s14, s13
    s_lshl_b32 s8, s8, 1
    s_cmp_ge_u32 s8, 7
    s_cselect_b32 s14, 7, 0
    s_sub_u32 s8, s8, s14
    s_and_b32 s{S_WAVE}, s15, 3
    s_cmp_lt_u32 s15, 4
    s_cbranch_scc1 g0_entry
    """)
    g1_program(a)
    a("g0_entry:")
    jobs2(a)
    a("s_waitcnt lgkmcnt(0)")
    srd(a, SRD_WS, P_WS, WS_SIZE)
    srd(a, SRD_OUT, P_OUT, 2048 * 1792)
    epoch_load(a)
    g0_program(a)
    a("k_end:\ns_endpgm")
    txt = a.text()
    return file_text_single(txt)

def file_text_single(body):
    h = HEADER_DOC + f"; @launch grid=(256,1,1) block=(512,1,1) lds={LDS_TOTAL}\n"
    return h + '.amdgcn_target "amdgcn-amd-amdhsa--gfx950"\n.text\n' + body + '.section .rodata,"a"\n' + descriptor(K, 256)

if __name__ == "__main__":
    out = sys.argv[1] if len(sys.argv) > 1 else "k3.s"
    Cfg.stamps = "stamps" in sys.argv
    for arg in sys.argv[2:]:
        if "=" in arg:
            k, v = arg.split("="); setattr(Cfg, k, int(v))
    open(out, "w").write(build())
```

```python
import sys, math, struct
from asmlib import *

NAME = "concat_heads__sliding_block__spectral_fnet__prompt"
K = NAME + "_kernel"

WS_F1, WS_F2, WS_F3, WS_EPOCH = 0x0, 0x20000, 0x40000, 0x60000
WS_QKV = 0x100000
WS_AT = 0x800000
AT_NB = 64 * 7168
WS_O = 0xC00000
WS_PQ = 0xE00000
WS_STAMP = 0x1700000
WS_SIZE = 0x1800000

C2 = (28 ** -0.5) * math.log2(math.e)
def f32bits(x):
    return struct.unpack("<I", struct.pack("<f", x))[0]
NEGBIG = f32bits(-1e30)

S_WAVE, S_XCD, S_LOC = 3, 4, 5
P_AX, P_WQKV, P_WO, P_BX, P_CR, P_CI, P_DR, P_DI, P_OUT, P_DBG, P_WS = 16, 18, 20, 22, 24, 26, 28, 30, 32, 34, 36
S_TAG = 38
S_TAGF = 35
SRD_X, SRD_W, SRD_WS, SRD_OUT = 40, 44, 48, 52
S_ST = 64
V_LANE = 1
SC = " sc1"
POLL_LIMIT = 20000

SLOT = 32768
LDS_TOTAL = 5 * SLOT
def item_base(n): return ((n + 4) % 5) * SLOT
FS = 4
SRD_C = 56

class Cfg:
    stamps = False
    NA_A = 8
    NA_B = 8
    KVL = 3
    LA = 12
    LAR = 0
    LA1 = 12
    LA0 = 10
    NXPRE = 2
    O_POLL = 15
    SLEEP = 4
    NT_TOUCH = 0
    NT_P1 = 0
    NT_WO = 0
    TPOS_A = 77
    RPG = 1
    NOCOMP = 0
    NOLOAD = 0
    NA = None
    SWAP = 1
    NTX = 2
    WOT = 1
    ALLNT = 0
    NOROT = 0
    TCH = 1
    HOLD = 0
    TLBW = 0
    TLBS = 20
    FDEL = 2
    LADDER = 1
    A1LATE = 0
    XA_AT = 7
    NOBP = 0
    LASTNT = 0
    KVNT = 0
def NAof(typ): return Cfg.NA_A if typ == 0 else Cfg.NA_B
SG_N1, SG_N2, SG_D, SG_SL, SG_K, SG_V = 24, 25, 26, 27, 28, 29

def srd(a, d, p, nbytes):
    a(f"s_mov_b32 s{d}, s{p}\ns_and_b32 s{d+1}, s{p+1}, 0xffff\ns_mov_b32 s{d+2}, {nbytes}\ns_mov_b32 s{d+3}, 0x20000")
def srd_sel(a, d, p0, p1, nbytes):
    a(f"""s_cselect_b32 s{d}, s{p0}, s{p1}
    s_cselect_b32 s{d+1}, s{p0+1}, s{p1+1}
    s_and_b32 s{d+1}, s{d+1}, 0xffff
    s_mov_b32 s{d+2}, {nbytes}
    s_mov_b32 s{d+3}, 0x20000""")
def R(b, n=4):
    return f"v[{b}:{b+n-1}]"
def S4(d):
    return f"s[{d}:{d+3}]"

def interleave(a, mfmas, fillers):
    n, m = len(mfmas), len(fillers)
    k = 0
    for i, mf in enumerate(mfmas):
        a(mf)
        want = min(m, ((i + 1) * m + n - 1) // n)
        while k < want:
            a(fillers[k]); k += 1
    while k < m:
        a(fillers[k]); k += 1

def stamp(a, i, cyc=False):
    if Cfg.stamps:
        a(f"{'s_memtime' if cyc else 's_memrealtime'} s[{S_ST+2*i}:{S_ST+2*i+1}]")
def dump_stamps(a, grp, n=16):
    if not Cfg.stamps: return
    a(f"""
    s_waitcnt lgkmcnt(0)
    s_lshl_b32 s14, s2, 3
    s_add_u32 s14, s14, s{S_WAVE}
    s_add_u32 s14, s14, {4*grp}
    s_lshl_b32 s14, s14, 6
    s_add_u32 s14, s14, {WS_STAMP}
    v_mov_b32 v2, 0
    """)
    for i in range(n):
        a(f"v_mov_b32 v3, s{S_ST+2*i}\nbuffer_store_dword v3, v2, {S4(SRD_WS)}, s14 offen offset:{4*i}")

class VM:
    def __init__(self, a): self.a = a; self.q = []
    def op(self, tag, text):
        if Cfg.NOLOAD and " lds" in text:
            text = "\n".join(l for l in text.split("\n") if " lds" not in l)
            if tag in ("pk", "po"): raise Exception
            self.a(text); return
        self.a(text); self.q.append(tag)
    def wait(self, tag, extra=""):
        idx = max(i for i, t in enumerate(self.q) if t == tag) if tag in self.q else -1
        n = len(self.q) - 1 - idx
        assert n <= 63, n
        self.a(f"s_waitcnt vmcnt({n}){extra}")
        self.q = self.q[idx + 1:]
    def drained(self): self.q = []

def poll_blocking(a, vaddr, soff, vt, name):
    l = a.newlabel(name)
    a(f"""
    s_mov_b32 s39, 0
    {l}:
    buffer_load_dword v{vt}, v{vaddr}, {S4(SRD_WS)}, s{soff} offen sc1
    s_add_u32 s39, s39, 1
    s_waitcnt vmcnt(0)
    v_cmp_ne_u32 vcc, s{S_TAG}, v{vt}
    s_cmp_ge_u32 s39, {POLL_LIMIT}
    s_cbranch_scc1 {l}_x
    s_cbranch_vccz {l}_x
    s_sleep {Cfg.SLEEP}
    s_branch {l}
    {l}_x:
    """)

def flag_store(a, sidx, base, vt0, vt1):
    a(f"""
    s_lshl_b32 s14, s{sidx}, {FS}
    s_add_u32 s14, s14, {base}
    v_mov_b32 v{vt0}, 0
    v_mov_b32 v{vt1}, s{S_TAG}
    s_mov_b64 exec, 1
    buffer_store_dword v{vt1}, v{vt0}, {S4(SRD_WS)}, s14 offen sc1
    s_mov_b64 exec, -1
    """)

def xfrag_addrs(a, vX0, vX1, t0, t1, sbase):
    a(f"""
    v_and_b32 v{t0}, 15, v{V_LANE}
    v_lshrrev_b32 v{t1}, 1, v{t0}
    v_lshrrev_b32 v{vX0}, 4, v{V_LANE}
    v_xor_b32 v{vX0}, v{vX0}, v{t1}
    v_lshlrev_b32 v{vX0}, 4, v{vX0}
    v_lshl_add_u32 v{vX0}, v{t0}, 7, v{vX0}
    v_add_u32 v{vX0}, s{sbase}, v{vX0}
    v_xor_b32 v{vX1}, 64, v{vX0}
    """)

def frontload(a, mfmas, fillers):
    k = 0
    for mf in mfmas:
        a(mf)
        for _ in range(Cfg.RPG):
            if k < len(fillers):
                a(fillers[k]); k += 1
    while k < len(fillers):
        a(fillers[k]); k += 1

import re as _re
def _rng(tok):
    m = _re.match(r"v\[(\d+):(\d+)\]", tok.strip())
    return set(range(int(m.group(1)), int(m.group(2)) + 1))
def ladder_step(a, mf, cur_reads, nxt_reads, extra, front=False):
    dst = [_rng(r.split(None, 1)[1].split(",")[0]) for r in cur_reads]
    n, m = len(mf), len(nxt_reads)
    issued, done, ke = 0, -1, 0
    for i, ins in enumerate(mf):
        ops = ins.split(None, 1)[1].split(", ")
        use = _rng(ops[1]) | _rng(ops[2])
        q = max(j for j, d in enumerate(dst) if d & use)
        if q > done:
            a(f"s_waitcnt lgkmcnt({min(15, len(cur_reads) - 1 - q + issued)})")
            done = q
        a(ins)
        want = min(m, i + 1) if front else min(m, ((i + 1) * m + n - 1) // n)
        if issued < want:
            a(nxt_reads[issued]); issued += 1
        elif ke < len(extra):
            a(extra[ke]); ke += 1
    while issued < m:
        a(nxt_reads[issued]); issued += 1
    while ke < len(extra):
        a(extra[ke]); ke += 1

def gemm_loop(a, name, n_iter, STAGE, NSLOT, reads, mfmas, addr_regs, sSlot, sCnt, sD, strict=False):
    l = a.newlabel(name)
    r0, r1, rs = addr_regs
    a(f"s_mov_b32 s{sCnt}, {n_iter}\n{l}:")
    pre = [f"s_add_u32 s{sSlot}, s{sSlot}, 1\ns_cmp_eq_u32 s{sSlot}, {NSLOT}",
           f"s_cselect_b32 s{sD}, {-(NSLOT-1)}, 1\ns_cselect_b32 s{sSlot}, 0, s{sSlot}", f"s_mul_i32 s{sD}, s{sD}, {STAGE}"]
    add = lambda rr: [f"v_add_u32 v{r}, s{sD}, v{r}" for r in rr]
    ladder_step(a, mfmas(0), reads(0, 0), reads(1, 1), pre + add(r0), front=strict)
    for f in add(rs): a(f)
    a("s_waitcnt lgkmcnt(0)\ns_barrier" if strict else "s_barrier")
    ladder_step(a, mfmas(1), reads(1, 1), [] if strict else reads(0, 0), add(r1) + [f"s_sub_u32 s{sCnt}, s{sCnt}, 1\ns_cmp_lg_u32 s{sCnt}, 0"])
    a(f"s_cbranch_scc1 {l}")

def g0_a1(a):
    STAGE = 37888
    vX0, vX1, vWa = 14, 15, 16
    t0, t1 = 17, 18
    FR, ACC = 24, 104
    a(f"s_lshr_b32 s14, s{S_WAVE}, 1\ns_lshl_b32 s14, s14, 13")
    xfrag_addrs(a, vX0, vX1, t0, t1, 14)
    a(f"""
    s_and_b32 s14, s{S_WAVE}, 1
    s_mul_i32 s14, s14, 168
    s_add_u32 s14, s14, 16384
    v_lshrrev_b32 v{t0}, 2, v{V_LANE}
    v_mul_u32_u24 v{t0}, 672, v{t0}
    v_and_b32 v{t1}, 3, v{V_LANE}
    v_lshl_add_u32 v{t0}, v{t1}, 3, v{t0}
    v_add_u32 v{vWa}, s14, v{t0}
    """)
    for i in range(96):
        a(f"v_mov_b32 v{ACC+i}, 0")
    def reads(ks, buf):
        b = FR + 40 * buf
        x = [f"ds_read_b128 {R(b + 4*T)}, v{vX1 if ks else vX0} offset:{2048*T}" for T in range(4)]
        w = []
        for ct in range(6):
            sg, pi = ct // 2, ct % 2
            for j in range(2):
                w.append(f"ds_read_b64_tr_b16 {R(b + 16 + 4*ct + 2*j, 2)}, v{vWa} offset:{(32*ks + j)*336 + (7*sg + 4*pi)*8}")
        return w[:2] + x + w[2:]
    def mfmas(buf):
        b = FR + 40 * buf
        return [f"v_mfma_f32_16x16x32_bf16 {R(ACC + (ct*4+T)*4)}, {R(b + 16 + 4*ct)}, {R(b + 4*T)}, {R(ACC + (ct*4+T)*4)}"
                for ct in range(6) for T in range(4)]
    a("s_mov_b32 s9, 0\ns_barrier")
    stamp(a, 1)
    for f in reads(0, 0): a(f)
    gemm_loop(a, "a1", 7, STAGE, 4, reads, mfmas, ([vX0], [vX1], [vWa]), 9, 10, 11)
    stamp(a, 2)
    a(f"""
    s_waitcnt lgkmcnt(0)
    s_mul_i32 s9, s7, 6
    s_and_b32 s14, s{S_WAVE}, 1
    s_mul_i32 s14, s14, 3
    s_add_u32 s9, s9, s14
    s_lshl_b32 s10, s6, 3
    s_lshr_b32 s14, s{S_WAVE}, 1
    s_lshl_b32 s14, s14, 2
    s_add_u32 s10, s10, s14
    s_lshl_b32 s10, s10, 10
    s_add_u32 s10, s10, {WS_QKV}
    v_lshlrev_b32 v{t0}, 4, v{V_LANE}
    s_mov_b32 s56, 0
    s_mov_b32 s57, 0xffff0000
    """)
    for sg in range(3):
        a(f"""
        s_add_u32 s11, s9, {sg}
        s_lshl_b32 s12, s11, 17
        s_add_u32 s12, s12, s10
        s_cmp_lt_u32 s11, 16
        s_cselect_b32 s60, {f32bits(C2)}, 1.0
        s_cselect_b32 s61, {f32bits(C2)}, 1.0
        s_sub_u32 s14, s11, 16
        s_cmp_lt_u32 s14, 16
        s_cselect_b32 s14, 0, 0x3f80
        v_mov_b32 v{t1}, s14
        """)
        for T in range(4):
            d0 = ACC + ((2*sg)*4 + T)*4
            d1 = ACC + ((2*sg+1)*4 + T)*4
            o = FR + 4*((sg*4 + T) % 8)
            for d in (d0, d0+2, d1, d1+2):
                a(f"v_pk_mul_f32 {R(d,2)}, {R(d,2)}, s[60:61]")
            a(f"""
            v_cvt_pk_bf16_f32 v{o}, v{d0}, v{d0+1}
            v_cvt_pk_bf16_f32 v{o+1}, v{d0+2}, v{d0+3}
            v_cvt_pk_bf16_f32 v{o+2}, v{d1}, v{d1+1}
            v_cvt_pk_bf16_f32 v{o+3}, v{d1+2}, v{d1+3}
            v_cndmask_b32 v{o+2}, v{o+2}, v{t1}, s[56:57]
            v_cndmask_b32 v{o+3}, v{o+3}, 0, s[56:57]
            buffer_store_dwordx4 {R(o)}, v{t0}, {S4(SRD_WS)}, s12 offen offset:{1024*T}{SC}
            """)
    a(f"""
    s_lshl_b32 s9, s7, 4
    s_add_u32 s9, s9, s6
    s_lshl_b32 s9, s9, 2
    s_add_u32 s9, s9, s{S_WAVE}
    """)

B_X0, B_X1, B_E0, B_E1 = 14, 15, 16, 21
B_FR, B_ACC = 24, 104

def g0_bs(a):
    STAGE = SLOT
    t0, t1 = 17, 18
    FR, ACC = B_FR, B_ACC
    a(f"s_lshl_b32 s14, s{S_WAVE}, 12\ns_add_u32 s14, s14, {2*SLOT}")
    xfrag_addrs(a, B_X0, B_X1, t0, t1, 14)
    a(f"""
    v_subrev_u32 v{B_E0}, s14, v{B_X0}
    v_add_u32 v{B_E0}, {2*SLOT + 16384}, v{B_E0}
    v_xor_b32 v{B_E1}, 64, v{B_E0}
    """)
    for i in range(56):
        a(f"v_mov_b32 v{ACC+i}, 0")
    def reads(ks, buf):
        b = FR + 36 * buf
        f = [f"ds_read_b128 {R(b + 4*T)}, v{B_X1 if ks else B_X0} offset:{2048*T}" for T in range(2)]
        f += [f"ds_read_b128 {R(b + 8 + 4*t)}, v{B_E1 if ks else B_E0} offset:{2048*t}" for t in range(7)]
        return f
    def mfmas(buf):
        b = FR + 36 * buf
        return [f"v_mfma_f32_16x16x32_bf16 {R(ACC + (t*2+T)*4)}, {R(b + 4*T)}, {R(b + 8 + 4*t)}, {R(ACC + (t*2+T)*4)}"
                for t in range(7) for T in range(2)]
    a("s_mov_b32 s9, 2\ns_barrier")
    stamp(a, 1)
    for f in reads(0, 0): a(f)
    gemm_loop(a, "bs", 7, STAGE, 5, reads, mfmas, ([B_X0, B_E0], [B_X1, B_E1], []), 9, 10, 11)
    stamp(a, 2)
    a(f"""
    s_waitcnt lgkmcnt(0)
    s_mul_i32 s9, s7, {AT_NB}
    s_lshl_b32 s10, s6, 2
    s_add_u32 s10, s10, s{S_WAVE}
    s_mul_i32 s10, s10, 7168
    s_add_u32 s9, s9, s10
    s_add_u32 s9, s9, {WS_AT}
    s_add_u32 s10, s9, 4096
    v_lshlrev_b32 v{t0}, 4, v{V_LANE}
    """)
    for t in range(7):
        d0 = ACC + (t*2)*4
        d1 = d0 + 4
        o = FR + 4*t
        a(f"""
        v_cvt_pk_bf16_f32 v{o}, v{d0}, v{d0+1}
        v_cvt_pk_bf16_f32 v{o+1}, v{d0+2}, v{d0+3}
        v_cvt_pk_bf16_f32 v{o+2}, v{d1}, v{d1+1}
        v_cvt_pk_bf16_f32 v{o+3}, v{d1+2}, v{d1+3}
        buffer_store_dwordx4 {R(o)}, v{t0}, {S4(SRD_WS)}, s{9 if t < 4 else 10} offen offset:{1024*(t%4)}{SC}
        """)
    a(f"""
    s_lshl_b32 s9, s7, 4
    s_add_u32 s9, s9, s6
    s_add_u32 s9, s9, 128
    s_lshl_b32 s9, s9, 2
    s_add_u32 s9, s9, s{S_WAVE}
    """)

S_MB, S_NB, S_KQ, S_H, S_J, S_RB64, S_CT = 96, 97, 98, 99, 100, 101, 63

def jobs2(a):
    a(f"""
    s_lshr_b32 s{S_KQ}, s{S_XCD}, 1
    s_and_b32 s{S_MB}, s{S_XCD}, 1
    s_lshl_b32 s{S_MB}, s{S_MB}, 3
    s_and_b32 s14, s{S_LOC}, 7
    s_add_u32 s{S_MB}, s{S_MB}, s14
    s_lshr_b32 s{S_NB}, s{S_LOC}, 3
    s_lshl_b32 s{S_H}, s{S_XCD}, 1
    s_lshr_b32 s14, s{S_LOC}, 4
    s_add_u32 s{S_H}, s{S_H}, s14
    s_and_b32 s{S_J}, s{S_LOC}, 15
    s_mul_i32 s14, s{S_LOC}, 37
    s_lshr_b32 s14, s14, 8
    s_mul_i32 s15, s14, 7
    s_sub_u32 s{S_CT}, s{S_LOC}, s15
    s_min_u32 s14, s14, 3
    s_lshl_b32 s{S_RB64}, s{S_XCD}, 2
    s_add_u32 s{S_RB64}, s{S_RB64}, s14
    """)

A_Q = 160
A_CM0, A_CM8 = 168, 184
A_NM = 200
A_O = 216
A_S0, A_S1 = 232, 60
A_KF = 76
A_P = 248
A_VF, A_VF2 = 40, 48
A_KA, A_VA0, A_VA1, A_QA = 96, 97, 98, 99
A_M0, A_M1, A_T0 = 56, 57, 58
SA_O, SA_F, SA_MASK, SA_ROLE, SA_Q = 16, 17, 18, 90, 23

def attn_setup(a):
    t0, t1 = 17, 18
    a(f"""
    v_and_b32 v{t0}, 31, v{V_LANE}
    v_lshrrev_b32 v{t1}, 5, v{V_LANE}
    v_lshlrev_b32 v{t1}, 2, v{t1}
    v_sub_u32 v{t0}, v{t0}, v{t1}
    v_mov_b32 v{t1}, {NEGBIG}
    """)
    for i in range(16):
        kk = 8*(i//4) + i % 4
        a(f"""
        v_cmp_gt_i32 vcc, {kk}, v{t0}
        s_nop 1
        v_cndmask_b32 v{A_CM0+i}, v{t1}, 0, vcc
        v_cndmask_b32 v{A_CM8+i}, 0, v{t1}, vcc
        """)
    a(f"""
    v_bfe_u32 v{t0}, v{V_LANE}, 4, 1
    v_lshrrev_b32 v{t1}, 5, v{V_LANE}
    v_lshlrev_b32 v{t0}, 10, v{t0}
    v_lshl_add_u32 v{t0}, v{t1}, 8, v{t0}
    v_and_b32 v{t1}, 15, v{V_LANE}
    v_lshl_add_u32 v{A_QA}, v{t1}, 4, v{t0}
    s_lshl_b32 s14, s{S_WAVE}, 11
    s_add_u32 s15, s14, s{SG_K}
    v_add_u32 v{A_KA}, s15, v{A_QA}
    v_bfe_u32 v{t0}, v{V_LANE}, 4, 1
    v_bfe_u32 v{t1}, v{V_LANE}, 1, 1
    v_lshl_add_u32 v{t0}, v{t0}, 1, v{t1}
    v_lshrrev_b32 v{t1}, 5, v{V_LANE}
    v_add_u32 v{t1}, v{t1}, v{t0}
    v_and_b32 v{t1}, 3, v{t1}
    v_lshlrev_b32 v{t1}, 6, v{t1}
    v_lshl_add_u32 v{t0}, v{t0}, 8, v{t1}
    v_bfe_u32 v{t1}, v{V_LANE}, 2, 2
    v_lshl_add_u32 v{t0}, v{t1}, 4, v{t0}
    v_and_b32 v{t1}, 1, v{V_LANE}
    v_lshl_add_u32 v{t0}, v{t1}, 3, v{t0}
    s_add_u32 s15, s14, s{SG_V}
    v_add_u32 v{A_VA0}, s15, v{t0}
    v_xor_b32 v{A_VA1}, 128, v{A_VA0}
    s_lshl_b32 s15, s{S_H}, 17
    s_add_u32 s14, s14, s15
    s_lshl_b32 s15, s{S_J}, 13
    s_add_u32 s14, s14, s15
    s_add_u32 s{SA_O}, s14, {WS_O}
    s_add_u32 s{SA_Q}, s14, {WS_QKV}
    s_lshl_b32 s{SA_F}, s{S_J}, 1
    s_lshr_b32 s14, s{S_WAVE}, 1
    s_add_u32 s{SA_F}, s{SA_F}, s14
    s_lshl_b32 s{SA_F}, s{SA_F}, 4
    s_add_u32 s{SA_F}, s{SA_F}, s{S_H}
    s_lshl_b32 s{SA_F}, s{SA_F}, 1
    s_and_b32 s14, s{S_WAVE}, 1
    s_add_u32 s{SA_F}, s{SA_F}, s14
    s_mov_b32 s{SA_MASK}, 0
    s_mov_b32 s{SA_MASK+1}, -1
    """)

def qload_ops():
    return [f"buffer_load_dwordx4 {R(A_Q)}, v{A_QA}, {S4(SRD_WS)}, s{SA_Q} offen{SC}",
            f"buffer_load_dwordx4 {R(A_Q+4)}, v{A_QA}, {S4(SRD_WS)}, s{SA_Q} offen offset:512{SC}"]

def g0_attention(a):
    S = [A_S0, A_S1]
    def kread(t):
        b = A_KF + 8 * (t % 2)
        return [f"ds_read_b128 {R(b + 4*m)}, v{A_KA} offset:{2048*t + 512*m}" for m in range(2)]
    def vread(t):
        b = A_VF if t % 2 == 0 else A_VF2
        return [f"ds_read_b64_tr_b16 {R(b + 4*m + 2*jj, 2)}, v{A_VA1 if jj else A_VA0} offset:{2048*t + 1024*m}" for m in range(2) for jj in range(2)]
    def qk(t, c):
        b = A_KF + 8 * (t % 2)
        s = R(S[t % 2], 16)
        return [f"v_mfma_f32_32x32x16_bf16 {s}, {R(b)}, {R(A_Q)}, {c}",
                f"v_mfma_f32_32x32x16_bf16 {s}, {R(b+4)}, {R(A_Q+4)}, {s}"]
    for f in kread(0) + kread(1): a(f)
    a(f"v_mov_b32 v{A_M0}, {NEGBIG}\nv_mov_b32 v{A_M1}, {NEGBIG}")
    a("s_waitcnt lgkmcnt(2)")
    def c1(t): return R(A_CM0, 16) if t == 0 else (R(A_CM8, 16) if t == 8 else "0")
    def maxes(t):
        s = S[t % 2]
        return [f"v_max3_f32 v{A_M0 if i % 2 == 0 else A_M1}, v{s+2*i}, v{s+2*i+1}, v{A_M0 if i % 2 == 0 else A_M1}" for i in range(8)]
    for f in qk(0, c1(0)): a(f)
    for t in range(9):
        if t + 1 <= 8:
            a("s_waitcnt lgkmcnt(0)")
            for f in qk(t + 1, c1(t + 1)): a(f)
        if t + 2 <= 8:
            for f in kread(t + 2): a(f)
        if t == 0: a("s_nop 7")
        if t == 8:
            for f in kread(0) + kread(1): a(f)
        for f in maxes(t): a(f)
    for f in vread(0): a(f)
    a(f"""
    v_max_f32 v{A_M0}, v{A_M0}, v{A_M1}
    v_mov_b32 v{A_M1}, v{A_M0}
    s_nop 1
    v_permlane32_swap_b32 v{A_M0}, v{A_M1}
    v_max_f32 v{A_M0}, v{A_M0}, v{A_M1}
    """)
    for i in range(16):
        a(f"v_sub_f32 v{A_CM0+i}, v{A_CM0+i}, v{A_M0}")
    def c2(t): return R(A_CM0, 16) if t == 0 else (R(A_CM8, 16) if t == 8 else R(A_NM, 16))
    a("s_waitcnt lgkmcnt(0)\ns_nop 0")
    q0 = qk(0, c2(0))
    a(q0[0])
    for i in range(8):
        a(f"v_sub_f32 v{A_NM+i}, 0, v{A_M0}")
    a(q0[1])
    for i in range(8, 16):
        a(f"v_sub_f32 v{A_NM+i}, 0, v{A_M0}")
    for i in range(16):
        a(f"v_sub_f32 v{A_CM8+i}, v{A_CM8+i}, v{A_M0}")
    O = R(A_O, 16)
    def pv(t, m):
        vb = A_VF if t % 2 == 0 else A_VF2
        c = "0" if (t == 0 and m == 0) else O
        return f"v_mfma_f32_32x32x16_bf16 {O}, {R(vb+4*m)}, {R(A_P+4*m)}, {c}"
    for t in range(9):
        s = S[t % 2]
        ex = [f"v_exp_f32 v{s+i}, v{s+i}" for i in range(16)]
        cv = [f"v_cvt_pk_bf16_f32 v{A_P+i}, v{s+2*i}, v{s+2*i+1}" for i in range(8)]
        nq = qk(t + 1, c2(t + 1)) if t + 1 <= 8 else [None, None]
        kr = kread(t + 2) if t + 2 <= 8 else []
        vr = vread(t + 1) if t + 1 <= 8 else []
        a(ex[0]); a(ex[1])
        if t > 0: a(pv(t - 1, 1))
        a(ex[2]); a(ex[3]); a(ex[4]); a(ex[5])
        a("s_waitcnt lgkmcnt(0)")
        if nq[0]: a(nq[0])
        a(ex[6]); a(ex[7]); a(ex[8])
        for f in cv[0:4]: a(f)
        if nq[1]: a(nq[1])
        for f in vr: a(f)
        a(ex[9]); a(ex[10]); a(ex[11])
        a(pv(t, 0))
        for f in kr: a(f)
        a(ex[12]); a(ex[13]); a(ex[14]); a(ex[15])
        a(cv[4]); a(cv[5]); a(cv[6]); a(cv[7])
    t0 = A_T0
    a(f"""
    v_lshrrev_b32 v{t0}, 5, v{V_LANE}
    v_lshl_add_u32 v{t0}, v{t0}, 8, v{A_QA}
    """)
    a(pv(8, 1))
    a(f"""
    s_nop 11
    v_mov_b32 v{A_M0}, v{A_O+12}
    v_mov_b32 v{A_M1}, v{A_O+12}
    s_nop 1
    v_permlane32_swap_b32 v{A_M0}, v{A_M1}
    v_rcp_f32 v{A_M1}, v{A_M1}
    s_nop 0
    """)
    for i in range(16):
        a(f"v_mul_f32 v{A_O+i}, v{A_O+i}, v{A_M1}")
    for i in range(8):
        a(f"v_cvt_pk_bf16_f32 v{A_P+i}, v{A_O+2*i}, v{A_O+2*i+1}")
    a(f"""
    v_cndmask_b32 v{A_P+6}, v{A_P+6}, 0, s[{SA_MASK}:{SA_MASK+1}]
    v_cndmask_b32 v{A_P+7}, v{A_P+7}, 0, s[{SA_MASK}:{SA_MASK+1}]
    buffer_store_dwordx4 {R(A_P)}, v{t0}, {S4(SRD_WS)}, s{SA_O} offen{SC}
    buffer_store_dwordx4 {R(A_P+4)}, v{t0}, {S4(SRD_WS)}, s{SA_O} offen offset:256{SC}
    """)

def ab_poll_addr(a, v, sreg, partner=False):
    _ab_poll_addr(a, v, sreg)
    if partner:
        a(f"v_lshrrev_b32 v17, 5, v{V_LANE}\nv_lshl_add_u32 v{v}, v17, {FS + 7}, v{v}")

def _ab_poll_addr(a, v, sreg):
    a(f"""
    s_lshr_b32 s15, s{S_KQ}, 1
    s_lshl_b32 s15, s15, 2
    s_add_u32 s15, s15, s{S_NB}
    s_lshl_b32 s15, s15, 4
    s_and_b32 s14, s{S_KQ}, 1
    s_lshl_b32 s14, s14, 3
    s_add_u32 s15, s15, s14
    s_add_u32 s15, s15, 128
    s_lshl_b32 s{sreg}, s15, {FS + 2}
    v_and_b32 v{v}, 31, v{V_LANE}
    v_lshlrev_b32 v{v}, {FS}, v{v}
    """)

def g0_program(a):
    FR, ACC = B_FR, B_ACC
    t0, t1 = 17, 18
    a(f"s_cmp_ge_u32 s{S_LOC}, 16\ns_cbranch_scc1 g0_p1b")
    na = NAof(0)
    a(f"""
    s_mov_b32 s{SG_N1}, {na - 1}
    s_mov_b32 s{SG_N2}, {16 - na - 1 - Cfg.FDEL}
    s_mov_b32 s{SG_D}, {(item_base(na + 2) - item_base(na)) & 0xffffffff}
    s_mov_b32 s{SG_SL}, {(na + 2 + 4) % 5}
    s_mov_b32 s{SG_K}, {item_base(na)}
    s_mov_b32 s{SG_V}, {item_base(na + 1)}
    """)
    g0_a1(a)
    a(("" if Cfg.NOBP else "s_barrier\n") + "s_branch g0_p1done\ng0_p1b:")
    na = NAof(1)
    a(f"""
    s_mov_b32 s{SG_N1}, {na - 1}
    s_mov_b32 s{SG_N2}, {16 - na - 1 - Cfg.FDEL}
    s_mov_b32 s{SG_D}, {(item_base(na + 2) - item_base(na)) & 0xffffffff}
    s_mov_b32 s{SG_SL}, {(na + 2 + 4) % 5}
    s_mov_b32 s{SG_K}, {item_base(na)}
    s_mov_b32 s{SG_V}, {item_base(na + 1)}
    """)
    g0_bs(a)
    a("g0_p1done:")
    stamp(a, 3)
    a(f"s_lshl_b32 s14, s{S_WAVE}, 12\ns_add_u32 s14, s14, {item_base(0)}")
    xfrag_addrs(a, B_X0, B_X1, t0, t1, 14)
    a(f"""
    v_lshlrev_b32 v{B_E0}, 4, v{V_LANE}
    v_add_u32 v{B_E0}, {item_base(0) + 16384}, v{B_E0}
    """)
    for i in range(56):
        a(f"v_mov_b32 v{ACC+i}, 0")
    a("s_waitcnt vmcnt(0)")
    flag_store(a, 9, WS_F1, t0, t1)
    stamp(a, 4)
    a(f"s_cmp_lt_u32 s{S_LOC}, 16\ns_cbranch_scc1 g0_t1\ns_barrier\ng0_t1:")
    attn_setup(a)
    a(f"s_cmp_lt_u32 s{S_LOC}, 16\ns_cbranch_scc1 g0_t2")
    a(f"s_cmp_lg_u32 s{S_WAVE}, 0\ns_cbranch_scc1 g0_nopoll")
    ab_poll_addr(a, t0, 56)
    poll_blocking(a, t0, 56, t1, "pab")
    a("g0_nopoll:\ns_barrier\ng0_t2:")
    def reads(ks, buf):
        b = FR + 36 * buf
        f = [f"ds_read_b128 {R(b + 4*T)}, v{B_X1 if ks else B_X0} offset:{2048*T}" for T in range(2)]
        f += [f"ds_read_b128 {R(b + 8 + 4*t)}, v{B_E0} offset:{7168*ks + 1024*t}" for t in range(7)]
        return f
    def mfmas(buf):
        b = FR + 36 * buf
        return [f"v_mfma_f32_16x16x32_bf16 {R(ACC + (t*2+T)*4)}, {R(b + 8 + 4*t)}, {R(b + 4*T)}, {R(ACC + (t*2+T)*4)}"
                for t in range(7) for T in range(2)]
    AR = [B_X0, B_X1, B_E0]
    AR3 = ([B_X0], [B_X1], [B_E0])
    a("s_mov_b32 s8, 4\ns_barrier")
    stamp(a, 5)
    for f in reads(0, 0): a(f)
    gemm_loop(a, "bb1", f"s{SG_N1}", SLOT, 5, reads, mfmas, AR3, 8, 10, 11)
    for f in qload_ops(): a(f)
    gemm_loop(a, "bb1b", 1, SLOT, 5, reads, mfmas, AR3, 8, 10, 11, strict=True)
    stamp(a, 6)
    for r in AR:
        a(f"v_add_u32 v{r}, s{SG_D}, v{r}")
    a(f"s_mov_b32 s8, s{SG_SL}\ns_waitcnt vmcnt(0)")
    g0_attention(a)
    stamp(a, 7)
    a("s_barrier")
    for f in reads(0, 0): a(f)
    gemm_loop(a, "bb2", Cfg.FDEL, SLOT, 5, reads, mfmas, AR3, 8, 10, 11)
    a("s_waitcnt vmcnt(0)")
    flag_store(a, SA_F, WS_F2, t0, t1)
    gemm_loop(a, "bb3", f"s{SG_N2}", SLOT, 5, reads, mfmas, AR3, 8, 10, 11)
    ladder_step(a, mfmas(0), reads(0, 0), reads(1, 1), [])
    ladder_step(a, mfmas(1), reads(1, 1), [], [])
    stamp(a, 8)
    a(f"""
    s_waitcnt lgkmcnt(0)
    s_lshl_b32 s9, s{S_MB}, 2
    s_add_u32 s9, s9, s{S_NB}
    s_lshl_b32 s9, s9, 4
    s_lshl_b32 s10, s{S_KQ}, 2
    s_add_u32 s10, s10, s9
    s_add_u32 s10, s10, s{S_WAVE}
    s_lshl_b32 s10, s10, 13
    s_add_u32 s10, s10, {WS_PQ}
    s_add_u32 s11, s10, 4096
    v_lshlrev_b32 v{t0}, 4, v{V_LANE}
    """)
    PK = 24
    for T in range(2):
        def val(v): return ACC + ((v // 4)*2 + T)*4 + v % 4
        for i in range(4):
            o = PK + 4*(T*4 + i)
            for d in range(3):
                a(f"v_cvt_pk_bf16_f32 v{o+d}, v{val(7*i+2*d)}, v{val(7*i+2*d+1)}")
            a(f"v_cvt_pk_bf16_f32 v{o+3}, v{val(7*i+6)}, s{S_TAGF}")
            a(f"buffer_store_dwordx4 {R(o)}, v{t0}, {S4(SRD_WS)}, s{10+T} offen offset:{1024*i}{SC}")
    a("s_barrier")
    WF = 60
    DA = 104
    WA = 4
    OA = 12
    a(f"""
    v_lshrrev_b32 v{WA}, 4, v{V_LANE}
    v_lshlrev_b32 v{WA}, 3, v{WA}
    v_bfe_u32 v{t1}, v{V_LANE}, 2, 2
    v_add_u32 v{WA}, v{WA}, v{t1}
    v_lshlrev_b32 v{WA}, 7, v{WA}
    v_bfe_u32 v{t1}, v{V_LANE}, 3, 2
    v_lshl_add_u32 v{WA}, v{t1}, 5, v{WA}
    v_and_b32 v{t1}, 3, v{V_LANE}
    v_lshl_add_u32 v{WA}, v{t1}, 3, v{WA}
    v_add_u32 v{WA}, {item_base(18)}, v{WA}
    v_xor_b32 v{WA+1}, 32, v{WA}
    v_xor_b32 v{WA+2}, 64, v{WA}
    v_xor_b32 v{WA+3}, 96, v{WA}
    s_lshl_b32 s14, s{S_WAVE}, 10
    v_add_u32 v{OA}, s14, v{t0}
    s_mov_b32 s11, 16384
    v_add_u32 v{OA}, {item_base(20)}, v{OA}
    s_lshl_b32 s12, s{S_RB64}, 6
    s_lshl_b32 s15, s{S_WAVE}, 4
    s_add_u32 s12, s12, s15
    s_mul_i32 s12, s12, 1792
    s_lshl_b32 s15, s{S_CT}, 7
    s_add_u32 s12, s12, s15
    v_and_b32 v{t0}, 15, v{V_LANE}
    v_mul_u32_u24 v{t0}, 1792, v{t0}
    v_lshrrev_b32 v{t1}, 4, v{V_LANE}
    v_lshl_add_u32 v{t0}, v{t1}, 3, v{t0}
    """)
    for i in range(16): a(f"v_mov_b32 v{DA+i}, 0")
    stamp(a, 9)
    a(f"""
    s_barrier
    s_cmp_ge_u32 s{S_LOC}, 28
    s_cbranch_scc1 g0_done
    """)
    WF = 128
    def wread(hh, buf):
        b = WF + 20 * buf
        f = [f"ds_read_b128 {R(b + 16)}, v{OA} offset:{4096*hh}"]
        f += [f"ds_read_b64_tr_b16 {R(b + 4*tau + 2*jj, 2)}, v{WA + tau} offset:{4096*hh + 512*jj}" for tau in range(4) for jj in range(2)]
        return f
    def mf(buf):
        b = WF + 20 * buf
        return [f"v_mfma_f32_16x16x32_bf16 {R(DA + 4*tau)}, {R(b + 4*tau)}, {R(b + 16)}, {R(DA + 4*tau)}" for tau in range(4)]
    for f in wread(0, 0) + wread(1, 1): a(f)
    dW = item_base(19) - item_base(18) - 16384
    dO = item_base(21) - item_base(20) - 16384
    a(f"s_mov_b32 s10, 0\na3_loop:")
    for f in wread(2, 2): a(f)
    a("s_waitcnt lgkmcnt(15)\ns_waitcnt lgkmcnt(9)" if False else "s_waitcnt lgkmcnt(9)")
    interleave(a, mf(0) + mf(1), wread(3, 3) + [f"""s_cmp_eq_u32 s10, 1
    s_cselect_b32 s14, {dW & 0xffffffff}, 16384
    s_cselect_b32 s15, {dO & 0xffffffff}, 16384""".replace(", 16384", ", s11")] )
    for tau in range(4): a(f"v_add_u32 v{WA+tau}, s14, v{WA+tau}")
    a(f"v_add_u32 v{OA}, s15, v{OA}")
    for f in wread(0, 0): a(f)
    a("s_waitcnt lgkmcnt(9)")
    interleave(a, mf(2) + mf(3), wread(1, 1) + ["s_add_u32 s10, s10, 1\ns_cmp_lt_u32 s10, 4"])
    a("s_cbranch_scc1 a3_loop")
    a("s_nop 7")
    for tau in range(4):
        d = DA + 4*tau
        a(f"""
        v_cvt_pk_bf16_f32 v{60+2*tau}, v{d}, v{d+1}
        v_cvt_pk_bf16_f32 v{60+2*tau+1}, v{d+2}, v{d+3}
        buffer_store_dwordx2 {R(60+2*tau, 2)}, v{t0}, {S4(SRD_OUT)}, s12 offen offset:{32*tau}
        """)
    a("g0_done:")
    stamp(a, 10)
    if Cfg.stamps: a("s_waitcnt vmcnt(0)")
    stamp(a, 11)
    stamp(a, 15, True)
    dump_stamps(a, 0)
    a("s_endpgm")

def dma(vm, tag, m0base, m0imm, vaddr, srd_, soff, lanes=64, sc=""):
    pre, post = "s_nop 0", ""
    if lanes == 16: pre, post = "s_mov_b64 exec, 0xffff", "\ns_mov_b64 exec, -1"
    if lanes == 32: pre, post = "s_mov_b32 exec_hi, 0", "\ns_mov_b32 exec_hi, -1"
    vm.op(tag, f"s_add_u32 m0, s{m0base}, {m0imm}\n{pre}\nbuffer_load_dwordx4 v{vaddr}, {S4(srd_)}, s{soff} offen{sc} lds{post}")

def x_dma_addrs(a, vXd, srow, rowbytes, permute, t0, t1, t2):
    if not permute:
        a(f"v_lshrrev_b32 v{t0}, 3, v{V_LANE}")
        o1, o2 = 8, 16
    else:
        a(f"""v_lshrrev_b32 v{t0}, 5, v{V_LANE}
        v_bfe_u32 v{t1}, v{V_LANE}, 3, 2
        v_lshl_add_u32 v{t0}, v{t0}, 3, v{t1}""")
        o1, o2 = 16, 4
    a(f"""
    v_add_u32 v{t0}, s{srow}, v{t0}
    v_mul_u32_u24 v{t0}, {rowbytes}, v{t0}
    v_and_b32 v{t1}, 7, v{V_LANE}
    v_lshrrev_b32 v{t2}, 4, v{V_LANE}
    v_xor_b32 v{t1}, v{t1}, v{t2}
    v_lshl_add_u32 v{vXd}, v{t1}, 4, v{t0}
    v_xor_b32 v{t1}, 4, v{t1}
    v_lshl_add_u32 v{vXd+1}, v{t1}, 4, v{t0}
    v_add_u32 v{vXd+1}, {o1*rowbytes}, v{vXd+1}
    v_add_u32 v{vXd+2}, {o2*rowbytes}, v{vXd}
    v_add_u32 v{vXd+3}, {o2*rowbytes}, v{vXd+1}
    """)

V_TR = 100
def g1bar(a, b):
    a("s_barrier")
    if Cfg.stamps:
        if b > 0: a(f"s_waitcnt lgkmcnt(0)\nv_writelane_b32 v{V_TR}, s88, {b-1}")
        a("s_memrealtime s[88:89]")

class Stream:
    def __init__(self, a, vm):
        self.a, self.vm, self.ops, self.pos = a, vm, [], 0
        self.hook = None
    def add(self, tag, need, avail, emits):
        for e in emits: self.ops.append((tag, need, avail, e))
    def run_to(self, b, la, maxops=999):
        last_needed = max([i for i, o in enumerate(self.ops) if o[1] <= b] + [-1])
        while self.pos < len(self.ops):
            tag, need, avail, e = self.ops[self.pos]
            if avail >= b:
                assert self.pos > last_needed, (b, tag)
                break
            if self.pos > last_needed + la: break
            if self.pos > last_needed and maxops <= 0: break
            e(); self.pos += 1; maxops -= 1
        if self.hook: self.hook(); self.hook = None
        tags = [o[0] for o in self.ops[:last_needed + 1]]
        pend = [t for t in self.vm.q if t in set(tags)]
        if pend: self.vm.wait(pend[-1])

G_XD, G_WD, G_CD, G_L16, G_PK, G_PO, G_PT, G_VD, G_WO = 4, 8, 24, 28, 29, 30, 31, 32, 33
G_TA, G_DUM, G_PA = 36, 38, 39
def g1_bbig_setup(a):
    t0, t1, t2 = 17, 18, 19
    a(f"""
    s_lshl_b32 s15, s{S_MB}, 7
    s_lshl_b32 s14, s{S_WAVE}, 5
    s_add_u32 s15, s15, s14
    """)
    x_dma_addrs(a, G_CD, 15, 4096, False, t0, t1, t2)
    a(f"s_cmp_lt_u32 s{S_KQ}, 2")
    srd_sel(a, SRD_C, P_CR, P_CI, 2048 * 4096)
    a(f"""
    v_lshlrev_b32 v{G_L16}, 4, v{V_LANE}
    s_and_b32 s14, s{S_KQ}, 1
    s_lshl_b32 s7, s14, 11
    s_mul_i32 s6, s14, {32*7168}
    s_lshr_b32 s15, s{S_KQ}, 1
    s_lshl_b32 s15, s15, 2
    s_add_u32 s15, s15, s{S_NB}
    s_mul_i32 s15, s15, {AT_NB}
    s_add_u32 s6, s6, s15
    s_mul_i32 s15, s{S_WAVE}, 3584
    s_add_u32 s6, s6, s15
    s_add_u32 s6, s6, {WS_AT}
    s_add_u32 s61, s15, 16384
    s_lshl_b32 s60, s{S_WAVE}, 12
    s_lshl_b32 s62, s{S_WAVE}, 10
    s_and_b32 s11, s{S_LOC}, 7
    s_and_b32 s14, s{S_NB}, 1
    s_lshl_b32 s14, s14, 2
    s_add_u32 s11, s11, s14
    s_cmp_lt_u32 s{S_NB}, 2
    s_cselect_b32 s14, 2, 0
    s_add_u32 s11, s11, s14
    s_and_b32 s30, s{S_XCD}, {Cfg.SWAP}
    s_lshl_b32 s30, s30, 3
    s_xor_b32 s31, s30, 8
    {"s_and_b32 s11, s%d, 7" % S_LOC if Cfg.NOROT else ""}
    """)

def touch_setup(a):
    t0, t1, t2 = 17, 18, 19
    a(f"""
    s_lshl_b32 s15, s{S_MB}, 7
    s_lshl_b32 s14, s{S_WAVE}, 5
    s_add_u32 s15, s15, s14
    v_lshrrev_b32 v{t0}, 1, v{V_LANE}
    v_add_u32 v{t0}, s15, v{t0}
    v_lshlrev_b32 v{t0}, 12, v{t0}
    v_and_b32 v{t1}, 1, v{V_LANE}
    v_add_u32 v{t1}, s11, v{t1}
    v_and_b32 v{t2}, 7, v{t1}
    v_lshl_add_u32 v{G_TA}, v{t2}, 7, v{t0}
    v_add_u32 v{t1}, 2, v{t1}
    v_and_b32 v{t2}, 7, v{t1}
    v_lshl_add_u32 v{G_TA+1}, v{t2}, 7, v{t0}
    """)
def touch_ops(a, vm, off=0):
    nt = " nt" if Cfg.NT_TOUCH else ""
    return [(lambda i=i: vm.op("touch", f"buffer_load_dword v{G_DUM}, v{G_TA+i}, {S4(SRD_C)}, s7 offen offset:{off}{nt}")) for i in range(2)]

def stage_item(s): return s if s < Cfg.NA else s + 2
def x_ops(a, vm, s, nt=None):
    base = item_base(stage_item(s))
    if nt is None: nt = bool(Cfg.NT_TOUCH and (s < 2 or (s in (8, 9) and Cfg.NA == 8)))
    def mk(i):
        def e():
            if i == 0:
                a(f"s_add_u32 s14, s11, {s}\ns_and_b32 s14, s14, 7\ns_or_b32 s14, s14, s{30 + (s >> 3)}\ns_lshl_b32 s0, s14, 7\ns_add_u32 s0, s0, s7")
            dma(vm, ("x", s), 60, base + i*1024, G_CD + i, SRD_C, 0, sc=(" nt" if nt else ""))
        return e
    return [mk(i) for i in range(4)]
def e_ops(a, vm, s):
    base = item_base(stage_item(s))
    ent = " nt" if (Cfg.LASTNT and (s & 7) == 7) else ""
    def mk(i):
        def e():
            if i == 0:
                a(f"s_add_u32 s14, s11, {s}\ns_and_b32 s14, s14, 7\ns_or_b32 s14, s14, s{30 + (s >> 3)}\ns_mul_i32 s1, s14, 14336\ns_add_u32 s1, s1, s6")
            pre, post = ("s_nop 0", "") if i < 3 else ("s_mov_b32 exec_hi, 0", "\ns_mov_b32 exec_hi, -1")
            vm.op(("e", s), f"s_add_u32 m0, s61, {base}\n{pre}\nbuffer_load_dwordx4 v{G_L16}, {S4(SRD_WS)}, s1 offen offset:{1024*i}{SC}{ent} lds{post}")
        return e
    return [mk(i) for i in range(4)]

X_AVAIL = [4, 5, 6, 7, 7]

def g1_p1(a, typ):
    vXd, vWd = G_XD, G_WD
    t0, t1, t2, t3 = 17, 18, 19, 20
    sX, sW, sC, sT, sM0x, sM0w = 9, 10, 8, 11, 12, 13
    stepW = 64*2688 if typ == 0 else 128
    def sbase(c): return (c % 4) * 37888 if typ == 0 else ((c + 2) % 5) * SLOT
    nslot = 4 if typ == 0 else 5
    ntp = " nt" if Cfg.NT_P1 in (1, 2, 4) else ""
    def ntc(c): return " nt" if (Cfg.NT_P1 == 1 or (Cfg.NT_P1 == 2 and c < 2) or (Cfg.NT_P1 == 3 and c >= 5) or (Cfg.NT_P1 == 4 and (c >= 5 or c < 2))) else ""
    a(f"""
    s_lshl_b32 s{sT}, s6, 7
    s_lshl_b32 s14, s{S_WAVE}, 5
    s_add_u32 s{sT}, s{sT}, s14
    """)
    x_dma_addrs(a, vXd, sT, 896, typ == 1, t0, t1, t2)
    a(f"s_lshl_b32 s{sM0x}, s{S_WAVE}, 12\ns_lshl_b32 s{sX}, s{sC}, 7\ns_waitcnt lgkmcnt(0)")
    srd(a, SRD_X, P_AX if typ == 0 else P_BX, 2048 * 896)
    vm = VM(a)
    if typ == 0 and Cfg.A1LATE:
        epoch_load(a)
    stamp(a, 1)
    for i in range(4):
        dma(vm, ("p", 0), sM0x, sbase(0) + i*1024, vXd+i, SRD_X, sX, sc=ntp)
    if typ == 0:
        srd(a, SRD_W, P_WQKV, 448 * 2688)
        a(f"""
        s_mul_i32 s{sT}, s{S_WAVE}, {16*2688}
        s_mul_i32 s14, s7, 336
        s_add_u32 s{sT}, s{sT}, s14
        """)
        nw, wbytes = 6, 5376
        def waddr(i):
            a(f"""
            v_add_u32 v{t0}, {64*i}, v{V_LANE}
            v_mul_u32_u24 v{t1}, 3121, v{t0}
            v_lshrrev_b32 v{t1}, 16, v{t1}
            v_mul_u32_u24 v{t2}, 21, v{t1}
            v_sub_u32 v{t0}, v{t0}, v{t2}
            v_and_b32 v{t2}, 8, v{t1}
            v_and_b32 v{t3}, 1, v{t1}
            v_lshl_add_u32 v{t2}, v{t3}, 2, v{t2}
            v_bfe_u32 v{t3}, v{t1}, 1, 2
            v_add_u32 v{t2}, v{t2}, v{t3}
            v_mul_u32_u24 v{t2}, 2688, v{t2}
            v_lshl_add_u32 v{t2}, v{t0}, 4, v{t2}
            v_add_u32 v{vWd+i}, s{sT}, v{t2}
            """)
    else:
        a("s_cmp_lt_u32 s7, 4")
        srd_sel(a, SRD_W, P_DR, P_DI, 448 * 896)
        a(f"""
        s_and_b32 s{sT}, s7, 3
        s_mul_i32 s{sT}, s{sT}, 112
        s_mul_i32 s15, s{S_WAVE}, 28
        """)
        nw, wbytes = 4, 3584
        def waddr(i):
            a(f"""
            v_lshrrev_b32 v{t0}, 3, v{V_LANE}
            v_add3_u32 v{t0}, v{t0}, s15, {8*i}
            v_bfe_u32 v{t1}, v{t0}, 2, 2
            v_mul_u32_u24 v{t1}, 28, v{t1}
            v_lshrrev_b32 v{t2}, 4, v{t0}
            v_lshl_add_u32 v{t1}, v{t2}, 2, v{t1}
            v_and_b32 v{t2}, 3, v{t0}
            v_add3_u32 v{t1}, v{t1}, v{t2}, s{sT}
            v_mul_u32_u24 v{t1}, 896, v{t1}
            v_bfe_u32 v{t2}, v{t0}, 1, 3
            v_and_b32 v{t3}, 7, v{V_LANE}
            v_xor_b32 v{t2}, v{t2}, v{t3}
            v_lshl_add_u32 v{vWd+i}, v{t2}, 4, v{t1}
            """)
    a(f"""
    s_mul_i32 s{sM0w}, s{S_WAVE}, {wbytes}
    s_add_u32 s{sM0w}, s{sM0w}, 16384
    s_mul_i32 s{sW}, s{sC}, {stepW}
    """)
    def wl(i): return 64 if i < nw - 1 else (16 if typ == 0 else 32)
    for i in range(nw):
        waddr(i)
        dma(vm, ("p", 0), sM0w, sbase(0) + i*1024, vWd+i, SRD_W, sW, lanes=wl(i), sc=ntp)
    st = Stream(a, vm)
    st.add(("p", 0), 0, -1, [])
    def pops(c):
        ops = []
        def mkx(i):
            def e():
                if i == 0:
                    a(f"s_add_u32 s{sC}, s{sC}, 1\ns_cmp_eq_u32 s{sC}, 7\ns_cselect_b32 s{sC}, 0, s{sC}\ns_lshl_b32 s{sX}, s{sC}, 7\ns_mul_i32 s{sW}, s{sC}, {stepW}")
                dma(vm, ("p", c), sM0x, sbase(c) + i*1024, vXd+i, SRD_X, sX, sc=ntc(c))
            return e
        def mkw(i):
            return lambda: dma(vm, ("p", c), sM0w, sbase(c) + i*1024, vWd+i, SRD_W, sW, lanes=wl(i), sc=ntc(c))
        return [mkx(i) for i in range(4)] + [mkw(i) for i in range(nw)]
    tpos = Cfg.TPOS_A if typ == 0 else 77
    for c in range(1, 7):
        st.add(("p", c), c, (c - nslot + 2) if c >= nslot else -1, pops(c))
        if tpos == c: st.add("touch", c + 1 if c < 6 else 99, -1, touch_ops(a, vm))
    st.run_to(0, Cfg.LA0)
    jobs2(a)
    g1_bbig_setup(a)
    touch_setup(a)
    if tpos == 0:
        for e in touch_ops(a, vm): e()
    if not (typ == 0 and Cfg.A1LATE): epoch_load(a)
    srd(a, SRD_WS, P_WS, WS_SIZE)
    srd(a, SRD_OUT, P_OUT, 2048 * 1792)
    stamp(a, 2)
    vm.wait(("p", 0))
    g1bar(a, 0)
    for b in range(1, 7):
        st.run_to(b, Cfg.LA1)
        g1bar(a, b)
    st.run_to(7, 99)
    assert st.pos == len(st.ops)
    return list(vm.q)

def epoch_load(a):
    a(f"""
    s_add_u32 s14, s{P_WS}, {WS_EPOCH}
    s_addc_u32 s15, s{P_WS+1}, 0
    s_load_dword s39, s[14:15], 0
    s_waitcnt lgkmcnt(0)
    s_mul_i32 s{S_TAG}, s39, 0x19660d
    s_add_u32 s{S_TAG}, s{S_TAG}, 0x3c6ef35f
    s_and_b32 s14, s{S_TAG}, 0xfff
    s_or_b32 s14, s14, 0x4000
    s_lshr_b32 s15, s39, 16
    s_cmp_eq_u32 s14, s15
    s_cselect_b32 s15, 0x1000, 0
    s_or_b32 s14, s14, s15
    s_lshl_b32 s{S_TAGF}, s14, 16
    """)

def g1_common_setup(a):
    t0, t1, t2 = 17, 18, 19
    a(f"""
    v_and_b32 v{t0}, 31, v{V_LANE}
    v_lshlrev_b32 v{G_PO}, {FS}, v{t0}
    s_lshl_b32 s13, s{S_RB64}, {FS + 5}
    s_add_u32 s13, s13, {WS_F2}
    v_lshrrev_b32 v{t0}, 3, v{V_LANE}
    v_mul_u32_u24 v{t0}, 896, v{t0}
    v_and_b32 v{t1}, 7, v{V_LANE}
    v_bfe_u32 v{t2}, v{V_LANE}, 4, 1
    v_lshlrev_b32 v{t2}, 1, v{t2}
    v_xor_b32 v{t1}, v{t1}, v{t2}
    v_lshl_add_u32 v{G_WO}, v{t1}, 4, v{t0}
    v_xor_b32 v{t1}, 4, v{t1}
    v_lshl_add_u32 v{G_WO+1}, v{t1}, 4, v{t0}
    v_mov_b32 v{t2}, 0x7ffffff0
    v_cmp_gt_u32 vcc, 32, v{V_LANE}
    s_mul_i32 s9, s{S_WAVE}, {28*896}
    s_lshl_b32 s14, s{S_CT}, 7
    v_cndmask_b32 v{G_WO+2}, v{t2}, v{G_WO+1}, vcc
    s_add_u32 s9, s9, s14
    """)
    srd(a, SRD_W, P_WO, 448 * 896)

def g1_kv_setup(a):
    t0, t1, t2 = 17, 18, 19
    for kind in range(3):
        a(f"""
        s_add_u32 s14, s{S_H}, {16*kind}
        s_mul_i32 s15, s14, 43
        s_lshr_b32 s15, s15, 8
        s_mul_i32 s12, s15, 6
        s_sub_u32 s14, s14, s12
        s_cmp_ge_u32 s14, 3
        s_cselect_b32 s14, 1, 0
        s_lshl_b32 s15, s15, 6
        s_add_u32 s{24+kind}, s15, s14
        """)
    a(f"""
    v_mov_b32 v{t0}, s26
    v_mov_b32 v{t1}, s25
    v_cmp_gt_u32 vcc, 16, v{V_LANE}
    v_mov_b32 v{t2}, s24
    s_nop 0
    v_cndmask_b32 v{t0}, v{t0}, v{t1}, vcc
    v_cmp_gt_u32 vcc, 8, v{V_LANE}
    v_bfe_u32 v{t1}, v{V_LANE}, 1, 2
    v_min_u32 v{t1}, 2, v{t1}
    v_cndmask_b32 v{t0}, v{t0}, v{t2}, vcc
    v_sub_u32 v{t1}, s{S_J}, v{t1}
    v_max_i32 v{t1}, 0, v{t1}
    v_lshl_add_u32 v{t0}, v{t1}, 2, v{t0}
    v_and_b32 v{t1}, 1, v{V_LANE}
    v_lshl_add_u32 v{t0}, v{t1}, 1, v{t0}
    v_lshlrev_b32 v{G_PK}, {FS}, v{t0}
    s_mov_b32 s12, {WS_F1}
    v_lshrrev_b32 v{t0}, 4, v{V_LANE}
    v_lshlrev_b32 v{t1}, 2, v{t0}
    v_sub_u32 v{t1}, v{V_LANE}, v{t1}
    v_and_b32 v{t1}, 15, v{t1}
    v_lshlrev_b32 v{t1}, 4, v{t1}
    v_lshl_add_u32 v{G_VD}, v{t0}, 8, v{t1}
    s_lshl_b32 s8, s{S_H}, 17
    s_add_u32 s8, s8, {WS_QKV + 16*131072}
    s_lshl_b32 s10, s{S_J}, 3
    s_add_u32 s10, s10, s{S_WAVE}
    s_sub_u32 s10, s10, 16
    """)

def g1_phase2(a, typ):
    NA = Cfg.NA = NAof(typ)
    t0, t1, t2, t3 = 17, 18, 19, 20
    vm = VM(a)
    stamp(a, 3)
    g1_common_setup(a)
    g1_kv_setup(a)
    nt = bool(Cfg.NT_TOUCH)
    def async_check(vaddr, soff, name):
        l = a.newlabel(name)
        a(f"v_cmp_ne_u32 vcc, s{S_TAG}, v{G_PT}\ns_cbranch_vccz {l}")
        poll_blocking(a, vaddr, soff, G_PT, name + "b")
        a(f"{l}:")
    if typ == 0: ab_poll_addr(a, G_PA, 34)
    def xpre():
        for st_ in range(Cfg.NXPRE):
            for e in x_ops(a, vm, st_): e()
    if typ == 0 and Cfg.XA_AT == 6: xpre()
    g1bar(a, 7)
    stamp(a, 4)
    if typ == 1 or not Cfg.NOBP: a("s_barrier")
    if typ == 0:
        vm.op("pa", f"buffer_load_dword v{G_PT}, v{G_PA}, {S4(SRD_WS)}, s34 offen sc1")
    if not (typ == 0 and Cfg.XA_AT == 6): xpre()
    if typ == 0:
        vm.wait("pa")
        async_check(G_PA, 34, "pa")
    else:
        a("s_barrier")
    if Cfg.stamps: a(f"s_waitcnt lgkmcnt(0)\nv_writelane_b32 v{V_TR}, s88, 7\ns_memrealtime s[88:89]")
    vm.q = []
    stamp(a, 5)
    st = Stream(a, vm)
    def need(s): return 9 + s if s < NA else 10 + s
    def free_after_item(n):
        if n < NA - 1: return 11 + n
        if n == NA - 1: return 9 + NA
        if n < NA + 2: return 10 + NA
        return 12 + (n - 2)
    def avail(n):
        if n >= 5: return free_after_item(n - 5)
        return 9 if (typ == 0 and Cfg.NOBP and n >= 3) else -1
    def kv_ops(which):
        base = item_base(NA + which)
        def mk(i):
            def e():
                a(f"""s_add_u32 s14, s10, {4*i}
                s_max_i32 s14, s14, 0
                s_lshl_b32 s14, s14, 10
                s_add_u32 s14, s14, s8""")
                if which: a(f"s_add_u32 s14, s14, {16*131072}")
                dma(vm, "kv", 62, base + 4096*i, G_VD if which else G_L16, SRD_WS, 14, sc=SC + (" nt" if Cfg.KVNT else ""))
            return e
        return [mk(i) for i in range(6)]
    def wo_ops(half):
        base = item_base(18 + half)
        def mk(i, qd):
            def e():
                a(f"s_add_u32 s14, s9, {((8*half + 4*i)*28 + 8*qd)*896}")
                dma(vm, "wo", 60, base + 16384*i + 1024*qd, G_WO + (2 if qd == 3 else qd % 2), SRD_W, 14)
            return e
        return [mk(i, qd) for i in range(2) for qd in range(4)]
    def touchB():
        if not Cfg.TCH: return
        if NA != 8:
            a("s_lshl_b32 s14, s31, 7\ns_add_u32 s14, s14, s7")
            vm.op("touch", f"buffer_load_dword v{G_DUM}, v{G_TA}, {S4(SRD_C)}, s14 offen")
        a(f"""
        s_and_b32 s14, s11, 7
        s_add_u32 s14, s14, s31
        s_mul_i32 s14, s14, 14336
        s_add_u32 s14, s14, s6
        v_lshlrev_b32 v{t0}, 7, v{V_LANE}
        s_mov_b64 exec, 0xfffffff
        """)
        vm.op("touch", f"buffer_load_dword v{G_DUM}, v{t0}, {S4(SRD_WS)}, s14 offen sc1")
        a(f"""
        s_lshl_b32 s14, s{S_LOC}, 2
        s_add_u32 s14, s14, s{S_WAVE}
        s_mul_i32 s14, s14, 3200
        s_mov_b64 exec, 0x1ffffff
        v_add_u32 v{t0}, s14, v{t0}
        """)
        if Cfg.WOT: vm.op("touch", f"buffer_load_dword v{G_DUM}, v{t0}, {S4(SRD_W)}, 0 offen{' nt' if Cfg.WOT == 2 else ''}")
        a("s_mov_b64 exec, -1")
    def epoch_bump():
        a(f"""
        s_cmp_lg_u32 s2, 0
        s_cbranch_scc1 eb_done
        s_cmp_lg_u32 s{S_WAVE}, 0
        s_cbranch_scc1 eb_done
        v_lshlrev_b32 v{t0}, {FS + 2}, v{V_LANE}
        s_mov_b32 s39, 0
        eb_loop:
        """)
        for i in range(4):
            a(f"s_mov_b32 s14, {WS_F1 + (256 << FS)*i}\nbuffer_load_dword v{40+i}, v{t0}, {S4(SRD_WS)}, s14 offen sc1")
        a(f"""
        s_add_u32 s39, s39, 1
        s_waitcnt vmcnt(0)
        v_xor_b32 v40, s{S_TAG}, v40
        v_xor_b32 v41, s{S_TAG}, v41
        v_xor_b32 v42, s{S_TAG}, v42
        v_xor_b32 v43, s{S_TAG}, v43
        v_or_b32 v40, v40, v41
        v_or3_b32 v40, v40, v42, v43
        v_cmp_ne_u32 vcc, 0, v40
        s_cmp_ge_u32 s39, {POLL_LIMIT}
        s_cbranch_scc1 eb_st
        s_cbranch_vccnz eb_loop
        eb_st:
        s_mov_b32 s14, {WS_EPOCH}
        v_mov_b32 v{t0}, 0
        v_mov_b32 v{t1}, s{S_TAG}
        s_mov_b64 exec, 1
        buffer_store_dword v{t1}, v{t0}, {S4(SRD_WS)}, s14 offen sc1
        s_mov_b64 exec, -1
        eb_done:
        """)
    kvb = 9 + NA - Cfg.KVL
    ob = 10 + Cfg.O_POLL + 1
    for s in range(16):
        n = stage_item(s)
        av = avail(n)
        if Cfg.HOLD and s >= 10: av = max(av, 10 + NA)
        if s == NA:
            st.add("kv", 9 + NA, max(avail(NA), kvb - 1), kv_ops(0))
            st.add("kv", 9 + NA, max(avail(NA + 1), kvb - 1), kv_ops(1))
            st.add("tb", 10 + NA, 9 + NA, [touchB])
        if s >= Cfg.NXPRE: st.add(("x", s), need(s), av, x_ops(a, vm, s))
        st.add(("e", s), need(s), av, e_ops(a, vm, s))
    st.add("wo", 27, avail(18), wo_ops(0))
    st.add("wo", 27, avail(19), wo_ops(1))
    def kv_patch():
        l = a.newlabel("nopatch")
        a(f"""
        s_cmp_ge_u32 s{S_J}, 2
        s_cbranch_scc1 {l}
        v_lshrrev_b32 v{t0}, 4, v{V_LANE}
        v_lshlrev_b32 v{t0}, 12, v{t0}
        v_and_b32 v{t1}, 15, v{V_LANE}
        v_lshl_add_u32 v{t0}, v{t1}, 4, v{t0}
        v_add_u32 v{t0}, s62, v{t0}
        v_add_u32 v{t0}, {item_base(NA)}, v{t0}
        v_mov_b32 v{t1}, 0xf14a
        s_cmp_eq_u32 s{S_J}, 0
        s_cselect_b32 exec_hi, -1, 0
        ds_write_b16 v{t0}, v{t1} offset:{3*256 + 8}
        s_mov_b32 exec_hi, -1
        s_waitcnt lgkmcnt(0)
        {l}:
        """)
    for b in range(9, 27):
        if b == kvb - 1: vm.op("pk", f"buffer_load_dword v{G_PT}, v{G_PK}, {S4(SRD_WS)}, s12 offen sc1")
        if b == ob - 1: vm.op("po", f"buffer_load_dword v{G_PT}, v{G_PO}, {S4(SRD_WS)}, s13 offen sc1")
        if b == kvb:
            vm.wait("pk"); async_check(G_PK, 12, "pk")
        if b == ob:
            vm.wait("po"); async_check(G_PO, 13, "po")
        la = Cfg.LA + Cfg.LAR * (b - 9)
        if b == 26: la = 99
        if b == 10 + NA and typ == 0: st.hook = epoch_bump
        st.run_to(b, la)
        if b == 9 + NA: kv_patch()
        g1bar(a, b)
        if b == 9: stamp(a, 6)
        if b == 9 + NA: stamp(a, 7)
    assert st.pos == len(st.ops)

def g1_program(a):
    t0, t1, t2, t3 = 17, 18, 19, 20
    a(f"s_cmp_ge_u32 s{S_LOC}, 16\ns_cbranch_scc1 g1_p1b")
    g1_p1(a, 0)
    g1_phase2(a, 0)
    a("s_branch g1_join\ng1_p1b:")
    g1_p1(a, 1)
    g1_phase2(a, 1)
    a("g1_join:")
    d21 = item_base(21) - item_base(20) - 8*4096
    a(f"s_lshl_b32 s10, s{S_RB64}, 12\ns_add_u32 s10, s10, s62\ns_add_u32 s10, s10, {WS_O}\ns_lshl_b32 s8, s{S_CT}, 1\ns_add_u32 s9, s62, {item_base(20)}\ns_mov_b32 s12, 16\ng1_ol:")
    a(f"""
    s_and_b32 s14, s8, 15
    s_lshl_b32 s15, s14, 12
    s_add_u32 s15, s15, s9
    s_cmp_ge_u32 s14, 8
    s_cselect_b32 s0, {d21 & 0xffffffff}, 0
    s_add_u32 m0, s15, s0
    s_lshl_b32 s14, s14, 17
    s_add_u32 s14, s14, s10
    buffer_load_dwordx4 v{G_L16}, {S4(SRD_WS)}, s14 offen{SC} lds
    s_add_u32 s8, s8, 1
    s_sub_u32 s12, s12, 1
    s_cmp_lg_u32 s12, 0
    s_cbranch_scc1 g1_ol
    """)
    vPa, vOut = 4, 5
    a(f"""
    s_lshl_b32 s9, s{S_MB}, 2
    s_add_u32 s9, s9, s{S_NB}
    s_lshl_b32 s9, s9, 4
    s_add_u32 s9, s9, s{S_KQ}
    s_lshl_b32 s8, s9, 13
    s_add_u32 s8, s8, {WS_PQ}
    s_lshl_b32 s14, s{S_WAVE}, 11
    s_add_u32 s8, s8, s14
    s_add_u32 s9, s8, 32768
    s_add_u32 s10, s8, 65536
    s_add_u32 s11, s8, 98304
    s_lshl_b32 s12, s{S_MB}, 7
    s_lshl_b32 s14, s{S_KQ}, 5
    s_add_u32 s12, s12, s14
    s_lshr_b32 s14, s{S_WAVE}, 1
    s_lshl_b32 s14, s14, 4
    s_add_u32 s12, s12, s14
    s_mul_i32 s12, s12, 1792
    s_mul_i32 s14, s{S_NB}, 224
    s_add_u32 s12, s12, s14
    s_and_b32 s14, s{S_WAVE}, 1
    s_mul_i32 s14, s14, 28
    s_add_u32 s12, s12, s14
    s_add_u32 s12, s12, 896
    v_and_b32 v{t0}, 15, v{V_LANE}
    v_mul_u32_u24 v{t0}, 1792, v{t0}
    v_lshrrev_b32 v{t1}, 4, v{V_LANE}
    v_mul_u32_u24 v{t1}, 56, v{t1}
    v_add_u32 v{vOut}, v{t0}, v{t1}
    s_mov_b32 s60, 0xffff0000
    """)
    D = 40
    def ploads():
        for q in range(4):
            for i in range(2):
                a(f"buffer_load_dwordx4 {R(D + 8*q + 4*i)}, v{G_L16}, {S4(SRD_WS)}, s{8+q} offen offset:{1024*i}{SC}")
    ploads()
    a("s_waitcnt vmcnt(8)")
    g1bar(a, 27)
    if Cfg.stamps: a(f"s_waitcnt lgkmcnt(0)\nv_writelane_b32 v{V_TR}, s88, 27")
    stamp(a, 8)
    a("s_mov_b32 s39, 0\ns_branch g1_pp1\ng1_pp:")
    ploads()
    a(f"g1_pp1:\ns_add_u32 s39, s39, 1\ns_waitcnt vmcnt(0)")
    a(f"v_xor_b32 v{t0}, s{S_TAGF}, v{D+3}")
    for n in range(1, 8):
        a(f"v_xor_b32 v{t1}, s{S_TAGF}, v{D+4*n+3}\nv_or_b32 v{t0}, v{t0}, v{t1}")
    a(f"""
    v_cmp_le_u32 vcc, 0x10000, v{t0}
    s_cmp_ge_u32 s39, {POLL_LIMIT}
    s_cbranch_scc1 g1_ppx
    s_cbranch_vccz g1_ppx
    s_sleep {Cfg.SLEEP}
    s_branch g1_pp
    g1_ppx:
    """)
    stamp(a, 9)
    SUM = 104
    lo = 80
    for i in range(2):
        for d in range(4):
            r = [D + 8*q + 4*i + d for q in range(4)]
            for half in range(2 if d < 3 else 1):
                for q in range(4):
                    a(f"v_lshlrev_b32 v{lo+q}, 16, v{r[q]}" if half == 0 else f"v_and_b32 v{lo+q}, s60, v{r[q]}")
                a(f"v_add_f32 v{lo}, v{lo}, v{lo+1}\nv_add_f32 v{lo+2}, v{lo+2}, v{lo+3}\nv_sub_f32 v{SUM + 7*i + 2*d + half}, v{lo}, v{lo+2}")
    for n in range(7):
        a(f"v_cvt_pk_bf16_f32 v{88+n}, v{SUM+2*n}, v{SUM+2*n+1}")
    a(f"""
    buffer_store_dwordx4 {R(88)}, v{vOut}, {S4(SRD_OUT)}, s12 offen
    buffer_store_dwordx3 {R(92,3)}, v{vOut}, {S4(SRD_OUT)}, s12 offen offset:16
    g1_done:
    """)
    stamp(a, 10)
    if Cfg.stamps: a("s_waitcnt vmcnt(0)")
    stamp(a, 11)
    stamp(a, 15, True)
    dump_stamps(a, 1)
    if Cfg.stamps:
        a(f"""
        s_lshl_b32 s14, s2, 2
        s_add_u32 s14, s14, s{S_WAVE}
        s_lshl_b32 s14, s14, 8
        s_add_u32 s14, s14, {WS_STAMP + 0x40000}
        v_lshlrev_b32 v2, 2, v{V_LANE}
        buffer_store_dword v{V_TR}, v2, {S4(SRD_WS)}, s14 offen
        """)
    a("s_endpgm")

def build():
    a = Asm()
    kernel_begin(a, K)
    a(f"""
    s_cmp_ge_u32 s2, 256
    s_cbranch_scc1 k_end
    s_load_dwordx16 s[16:31], s[0:1], 0
    s_load_dwordx4 s[32:35], s[0:1], 64
    s_load_dwordx2 s[36:37], s[0:1], 80
    v_and_b32 v{V_LANE}, 63, v0
    v_lshrrev_b32 v2, 6, v0
    s_and_b32 s{S_XCD}, s2, 7
    v_readfirstlane_b32 s15, v2
    s_lshr_b32 s{S_LOC}, s2, 3
    """)
    stamp(a, 0); stamp(a, 14, True)
    a(f"""
    s_and_b32 s6, s{S_XCD}, 3
    s_lshl_b32 s6, s6, 2
    s_and_b32 s14, s{S_LOC}, 3
    s_add_u32 s6, s6, s14
    s_lshr_b32 s7, s{S_XCD}, 2
    s_lshl_b32 s7, s7, 2
    s_bfe_u32 s13, s{S_LOC}, 0x20002
    s_add_u32 s7, s7, s13
    s_add_u32 s8, s14, s13
    s_lshl_b32 s8, s8, 1
    s_cmp_ge_u32 s8, 7
    s_cselect_b32 s14, 7, 0
    s_sub_u32 s8, s8, s14
    s_and_b32 s{S_WAVE}, s15, 3
    s_cmp_lt_u32 s15, 4
    s_cbranch_scc1 g0_entry
    """)
    g1_program(a)
    a("g0_entry:")
    jobs2(a)
    a("s_waitcnt lgkmcnt(0)")
    srd(a, SRD_WS, P_WS, WS_SIZE)
    srd(a, SRD_OUT, P_OUT, 2048 * 1792)
    epoch_load(a)
    if Cfg.TLBW:
        a(f"s_cmp_lt_u32 s{S_KQ}, 2")
        srd_sel(a, SRD_X, P_CR, P_CI, 2048 * 4096)
        srd(a, SRD_W, P_WO, 448 * 896)
        a(f"""
        v_lshlrev_b32 v2, {Cfg.TLBS}, v{V_LANE}
        s_cmp_lg_u32 s{S_WAVE}, 0
        s_cbranch_scc1 tlb_done
        buffer_load_dword v3, v2, {S4(SRD_WS)}, 0 offen sc1
        buffer_load_dword v3, v2, {S4(SRD_X)}, 0 offen
        buffer_load_dword v3, v2, {S4(SRD_OUT)}, 0 offen sc1
        buffer_load_dword v3, v2, {S4(SRD_W)}, 0 offen
        tlb_done:
        """)
    g0_program(a)
    a("k_end:\ns_endpgm")
    txt = a.text()
    return file_text_single(txt)

def file_text_single(body):
    h = HEADER_DOC + f"; @launch grid=(256,1,1) block=(512,1,1) lds={LDS_TOTAL}\n"
    return h + '.amdgcn_target "amdgcn-amd-amdhsa--gfx950"\n.text\n' + body + '.section .rodata,"a"\n' + descriptor(K, 256)

if __name__ == "__main__":
    out = sys.argv[1] if len(sys.argv) > 1 else "k3.s"
    Cfg.stamps = "stamps" in sys.argv
    for arg in sys.argv[2:]:
        if "=" in arg:
            k, v = arg.split("="); setattr(Cfg, k, int(v))
    open(out, "w").write(build())
```

```python
import sys, math, struct
from asmlib import *

NAME = "concat_heads__sliding_block__spectral_fnet__prompt"
K = NAME + "_kernel"

WS_F1, WS_F2, WS_F3, WS_EPOCH = 0x0, 0x20000, 0x40000, 0x60000
WS_QKV = 0x100000
WS_AT = 0x800000
AT_NB = 64 * 7168
WS_O = 0xC00000
WS_PQ = 0xE00000
WS_STAMP = 0x1700000
WS_SIZE = 0x1800000

C2 = (28 ** -0.5) * math.log2(math.e)
def f32bits(x):
    return struct.unpack("<I", struct.pack("<f", x))[0]
NEGBIG = f32bits(-1e30)

S_WAVE, S_XCD, S_LOC = 3, 4, 5
P_AX, P_WQKV, P_WO, P_BX, P_CR, P_CI, P_DR, P_DI, P_OUT, P_DBG, P_WS = 16, 18, 20, 22, 24, 26, 28, 30, 32, 34, 36
S_TAG = 38
S_TAGF = 35
SRD_X, SRD_W, SRD_WS, SRD_OUT = 40, 44, 48, 52
S_ST = 64
V_LANE = 1
SC = " sc1"
POLL_LIMIT = 20000

SLOT = 32768
LDS_TOTAL = 5 * SLOT
def item_base(n): return ((n + 4) % 5) * SLOT
FS = 4
SRD_C = 56

class Cfg:
    stamps = False
    NA_A = 8
    NA_B = 8
    KVL = 3
    LA = 12
    LAR = 0
    LA1 = 12
    LA0 = 10
    NXPRE = 2
    O_POLL = 15
    SLEEP = 4
    NT_TOUCH = 0
    NT_P1 = 0
    NT_WO = 0
    TPOS_A = 77
    RPG = 1
    NOCOMP = 0
    NOLOAD = 0
    NA = None
    SWAP = 0
    NTX = 2
    WOT = 1
    ALLNT = 0
    NOROT = 0
    TCH = 1
    HOLD = 0
    BPPOS = 12
    CODEW = 0
    LAB1 = 12
    MORD = 0
    AGPR = 0
    OUTSC = 0
    PRIO0 = 0
    TLBW = 1
    TLB2 = 0
    TLBS = 20
    FDEL = 2
    LADDER = 1
    A1LATE = 0
    XA_AT = 7
    NOBP = 0
    LASTNT = 0
    KVNT = 0
def NAof(typ): return Cfg.NA_A if typ == 0 else Cfg.NA_B
SG_N1, SG_N2, SG_D, SG_SL, SG_K, SG_V = 24, 25, 26, 27, 28, 29

def OSC(): return ['', ' sc1', ' nt', ' sc0 sc1'][Cfg.OUTSC]
def srd(a, d, p, nbytes):
    a(f"s_mov_b32 s{d}, s{p}\ns_and_b32 s{d+1}, s{p+1}, 0xffff\ns_mov_b32 s{d+2}, {nbytes}\ns_mov_b32 s{d+3}, 0x20000")
def srd_sel(a, d, p0, p1, nbytes):
    a(f"""s_cselect_b32 s{d}, s{p0}, s{p1}
    s_cselect_b32 s{d+1}, s{p0+1}, s{p1+1}
    s_and_b32 s{d+1}, s{d+1}, 0xffff
    s_mov_b32 s{d+2}, {nbytes}
    s_mov_b32 s{d+3}, 0x20000""")
def R(b, n=4):
    return f"v[{b}:{b+n-1}]"
def S4(d):
    return f"s[{d}:{d+3}]"

def interleave(a, mfmas, fillers):
    n, m = len(mfmas), len(fillers)
    k = 0
    for i, mf in enumerate(mfmas):
        a(mf)
        want = min(m, ((i + 1) * m + n - 1) // n)
        while k < want:
            a(fillers[k]); k += 1
    while k < m:
        a(fillers[k]); k += 1

def stamp(a, i, cyc=False):
    if Cfg.stamps:
        a(f"{'s_memtime' if cyc else 's_memrealtime'} s[{S_ST+2*i}:{S_ST+2*i+1}]")
def dump_stamps(a, grp, n=16):
    if not Cfg.stamps: return
    a(f"""
    s_waitcnt lgkmcnt(0)
    s_lshl_b32 s14, s2, 3
    s_add_u32 s14, s14, s{S_WAVE}
    s_add_u32 s14, s14, {4*grp}
    s_lshl_b32 s14, s14, 6
    s_add_u32 s14, s14, {WS_STAMP}
    v_mov_b32 v2, 0
    """)
    for i in range(n):
        a(f"v_mov_b32 v3, s{S_ST+2*i}\nbuffer_store_dword v3, v2, {S4(SRD_WS)}, s14 offen offset:{4*i}")

class VM:
    def __init__(self, a): self.a = a; self.q = []
    def op(self, tag, text):
        if Cfg.NOLOAD and " lds" in text:
            text = "\n".join(l for l in text.split("\n") if " lds" not in l)
            if tag in ("pk", "po"): raise Exception
            self.a(text); return
        self.a(text); self.q.append(tag)
    def wait(self, tag, extra=""):
        idx = max(i for i, t in enumerate(self.q) if t == tag) if tag in self.q else -1
        n = len(self.q) - 1 - idx
        assert n <= 63, n
        self.a(f"s_waitcnt vmcnt({n}){extra}")
        self.q = self.q[idx + 1:]
    def drained(self): self.q = []

def poll_blocking(a, vaddr, soff, vt, name):
    l = a.newlabel(name)
    a(f"""
    s_mov_b32 s39, 0
    {l}:
    buffer_load_dword v{vt}, v{vaddr}, {S4(SRD_WS)}, s{soff} offen sc1
    s_add_u32 s39, s39, 1
    s_waitcnt vmcnt(0)
    v_cmp_ne_u32 vcc, s{S_TAG}, v{vt}
    s_cmp_ge_u32 s39, {POLL_LIMIT}
    s_cbranch_scc1 {l}_x
    s_cbranch_vccz {l}_x
    s_sleep {Cfg.SLEEP}
    s_branch {l}
    {l}_x:
    """)

def flag_store(a, sidx, base, vt0, vt1):
    a(f"""
    s_lshl_b32 s14, s{sidx}, {FS}
    s_add_u32 s14, s14, {base}
    v_mov_b32 v{vt0}, 0
    v_mov_b32 v{vt1}, s{S_TAG}
    s_mov_b64 exec, 1
    buffer_store_dword v{vt1}, v{vt0}, {S4(SRD_WS)}, s14 offen sc1
    s_mov_b64 exec, -1
    """)

def xfrag_addrs(a, vX0, vX1, t0, t1, sbase):
    a(f"""
    v_and_b32 v{t0}, 15, v{V_LANE}
    v_lshrrev_b32 v{t1}, 1, v{t0}
    v_lshrrev_b32 v{vX0}, 4, v{V_LANE}
    v_xor_b32 v{vX0}, v{vX0}, v{t1}
    v_lshlrev_b32 v{vX0}, 4, v{vX0}
    v_lshl_add_u32 v{vX0}, v{t0}, 7, v{vX0}
    v_add_u32 v{vX0}, s{sbase}, v{vX0}
    v_xor_b32 v{vX1}, 64, v{vX0}
    """)

def frontload(a, mfmas, fillers):
    k = 0
    for mf in mfmas:
        a(mf)
        for _ in range(Cfg.RPG):
            if k < len(fillers):
                a(fillers[k]); k += 1
    while k < len(fillers):
        a(fillers[k]); k += 1

import re as _re
def _rng(tok):
    m = _re.match(r"v\[(\d+):(\d+)\]", tok.strip())
    return set(range(int(m.group(1)), int(m.group(2)) + 1))
def ladder_step(a, mf, cur_reads, nxt_reads, extra, front=False):
    dst = [_rng(r.split(None, 1)[1].split(",")[0]) for r in cur_reads]
    n, m = len(mf), len(nxt_reads)
    issued, done, ke = 0, -1, 0
    for i, ins in enumerate(mf):
        ops = ins.split(None, 1)[1].split(", ")
        use = _rng(ops[1]) | _rng(ops[2])
        q = max(j for j, d in enumerate(dst) if d & use)
        if q > done:
            a(f"s_waitcnt lgkmcnt({min(15, len(cur_reads) - 1 - q + issued)})")
            done = q
        a(ins)
        want = min(m, i + 1) if front else min(m, ((i + 1) * m + n - 1) // n)
        if issued < want:
            a(nxt_reads[issued]); issued += 1
        elif ke < len(extra):
            a(extra[ke]); ke += 1
    while issued < m:
        a(nxt_reads[issued]); issued += 1
    while ke < len(extra):
        a(extra[ke]); ke += 1

def gemm_loop(a, name, n_iter, STAGE, NSLOT, reads, mfmas, addr_regs, sSlot, sCnt, sD, strict=False):
    l = a.newlabel(name)
    r0, r1, rs = addr_regs
    a(f"s_mov_b32 s{sCnt}, {n_iter}\n{l}:")
    pre = [f"s_add_u32 s{sSlot}, s{sSlot}, 1\ns_cmp_eq_u32 s{sSlot}, {NSLOT}",
           f"s_cselect_b32 s{sD}, {-(NSLOT-1)}, 1\ns_cselect_b32 s{sSlot}, 0, s{sSlot}", f"s_mul_i32 s{sD}, s{sD}, {STAGE}"]
    add = lambda rr: [f"v_add_u32 v{r}, s{sD}, v{r}" for r in rr]
    ladder_step(a, mfmas(0), reads(0, 0), reads(1, 1), pre + add(r0), front=strict)
    for f in add(rs): a(f)
    a("s_waitcnt lgkmcnt(0)\ns_barrier" if strict else "s_barrier")
    ladder_step(a, mfmas(1), reads(1, 1), [] if strict else reads(0, 0), add(r1) + [f"s_sub_u32 s{sCnt}, s{sCnt}, 1\ns_cmp_lg_u32 s{sCnt}, 0"])
    a(f"s_cbranch_scc1 {l}")

def g0_a1(a):
    STAGE = 37888
    vX0, vX1, vWa = 14, 15, 16
    t0, t1 = 17, 18
    FR, ACC = 24, 104
    a(f"s_lshr_b32 s14, s{S_WAVE}, 1\ns_lshl_b32 s14, s14, 13")
    xfrag_addrs(a, vX0, vX1, t0, t1, 14)
    a(f"""
    s_and_b32 s14, s{S_WAVE}, 1
    s_mul_i32 s14, s14, 168
    s_add_u32 s14, s14, 16384
    v_lshrrev_b32 v{t0}, 2, v{V_LANE}
    v_mul_u32_u24 v{t0}, 672, v{t0}
    v_and_b32 v{t1}, 3, v{V_LANE}
    v_lshl_add_u32 v{t0}, v{t1}, 3, v{t0}
    v_add_u32 v{vWa}, s14, v{t0}
    """)
    for i in range(96):
        a(f"v_mov_b32 v{ACC+i}, 0")
    def reads(ks, buf):
        b = FR + 40 * buf
        x = [f"ds_read_b128 {R(b + 4*T)}, v{vX1 if ks else vX0} offset:{2048*T}" for T in range(4)]
        w = []
        for ct in range(6):
            sg, pi = ct // 2, ct % 2
            for j in range(2):
                w.append(f"ds_read_b64_tr_b16 {R(b + 16 + 4*ct + 2*j, 2)}, v{vWa} offset:{(32*ks + j)*336 + (7*sg + 4*pi)*8}")
        return w[:2] + x + w[2:]
    def mfmas(buf):
        b = FR + 40 * buf
        return [f"v_mfma_f32_16x16x32_bf16 {R(ACC + (ct*4+T)*4)}, {R(b + 16 + 4*ct)}, {R(b + 4*T)}, {R(ACC + (ct*4+T)*4)}"
                for ct in range(6) for T in range(4)]
    a("s_mov_b32 s9, 0\ns_barrier")
    stamp(a, 1)
    for f in reads(0, 0): a(f)
    gemm_loop(a, "a1", 7, STAGE, 4, reads, mfmas, ([vX0], [vX1], [vWa]), 9, 10, 11)
    stamp(a, 2)
    a(f"""
    s_waitcnt lgkmcnt(0)
    s_mul_i32 s9, s7, 6
    s_and_b32 s14, s{S_WAVE}, 1
    s_mul_i32 s14, s14, 3
    s_add_u32 s9, s9, s14
    s_lshl_b32 s10, s6, 3
    s_lshr_b32 s14, s{S_WAVE}, 1
    s_lshl_b32 s14, s14, 2
    s_add_u32 s10, s10, s14
    s_lshl_b32 s10, s10, 10
    s_add_u32 s10, s10, {WS_QKV}
    v_lshlrev_b32 v{t0}, 4, v{V_LANE}
    s_mov_b32 s56, 0
    s_mov_b32 s57, 0xffff0000
    """)
    for sg in range(3):
        a(f"""
        s_add_u32 s11, s9, {sg}
        s_lshl_b32 s12, s11, 17
        s_add_u32 s12, s12, s10
        s_cmp_lt_u32 s11, 16
        s_cselect_b32 s60, {f32bits(C2)}, 1.0
        s_cselect_b32 s61, {f32bits(C2)}, 1.0
        s_sub_u32 s14, s11, 16
        s_cmp_lt_u32 s14, 16
        s_cselect_b32 s14, 0, 0x3f80
        v_mov_b32 v{t1}, s14
        """)
        for T in range(4):
            d0 = ACC + ((2*sg)*4 + T)*4
            d1 = ACC + ((2*sg+1)*4 + T)*4
            o = FR + 4*((sg*4 + T) % 8)
            for d in (d0, d0+2, d1, d1+2):
                a(f"v_pk_mul_f32 {R(d,2)}, {R(d,2)}, s[60:61]")
            a(f"""
            v_cvt_pk_bf16_f32 v{o}, v{d0}, v{d0+1}
            v_cvt_pk_bf16_f32 v{o+1}, v{d0+2}, v{d0+3}
            v_cvt_pk_bf16_f32 v{o+2}, v{d1}, v{d1+1}
            v_cvt_pk_bf16_f32 v{o+3}, v{d1+2}, v{d1+3}
            v_cndmask_b32 v{o+2}, v{o+2}, v{t1}, s[56:57]
            v_cndmask_b32 v{o+3}, v{o+3}, 0, s[56:57]
            buffer_store_dwordx4 {R(o)}, v{t0}, {S4(SRD_WS)}, s12 offen offset:{1024*T}{SC}
            """)
            if sg*4 + T + 1 == Cfg.BPPOS: a("s_barrier")
    a(f"""
    s_lshl_b32 s9, s7, 4
    s_add_u32 s9, s9, s6
    s_lshl_b32 s9, s9, 2
    s_add_u32 s9, s9, s{S_WAVE}
    """)

B_X0, B_X1, B_E0, B_E1 = 14, 15, 16, 21
B_FR, B_ACC = 24, 104

def g0_bs(a):
    STAGE = SLOT
    t0, t1 = 17, 18
    FR, ACC = B_FR, B_ACC
    a(f"s_lshl_b32 s14, s{S_WAVE}, 12\ns_add_u32 s14, s14, {2*SLOT}")
    xfrag_addrs(a, B_X0, B_X1, t0, t1, 14)
    a(f"""
    v_subrev_u32 v{B_E0}, s14, v{B_X0}
    v_add_u32 v{B_E0}, {2*SLOT + 16384}, v{B_E0}
    v_xor_b32 v{B_E1}, 64, v{B_E0}
    """)
    for i in range(56):
        a(f"v_mov_b32 v{ACC+i}, 0")
    def reads(ks, buf):
        b = FR + 36 * buf
        f = [f"ds_read_b128 {R(b + 4*T)}, v{B_X1 if ks else B_X0} offset:{2048*T}" for T in range(2)]
        f += [f"ds_read_b128 {R(b + 8 + 4*t)}, v{B_E1 if ks else B_E0} offset:{2048*t}" for t in range(7)]
        return f
    def mfmas(buf):
        b = FR + 36 * buf
        return [f"v_mfma_f32_16x16x32_bf16 {R(ACC + (t*2+T)*4)}, {R(b + 4*T)}, {R(b + 8 + 4*t)}, {R(ACC + (t*2+T)*4)}"
                for t in range(7) for T in range(2)]
    a("s_mov_b32 s9, 2\ns_barrier")
    stamp(a, 1)
    for f in reads(0, 0): a(f)
    gemm_loop(a, "bs", 7, STAGE, 5, reads, mfmas, ([B_X0, B_E0], [B_X1, B_E1], []), 9, 10, 11)
    stamp(a, 2)
    a(f"""
    s_waitcnt lgkmcnt(0)
    s_mul_i32 s9, s7, {AT_NB}
    s_lshl_b32 s10, s6, 2
    s_add_u32 s10, s10, s{S_WAVE}
    s_mul_i32 s10, s10, 7168
    s_add_u32 s9, s9, s10
    s_add_u32 s9, s9, {WS_AT}
    s_add_u32 s10, s9, 4096
    v_lshlrev_b32 v{t0}, 4, v{V_LANE}
    """)
    for t in range(7):
        d0 = ACC + (t*2)*4
        d1 = d0 + 4
        o = FR + 4*t
        a(f"""
        v_cvt_pk_bf16_f32 v{o}, v{d0}, v{d0+1}
        v_cvt_pk_bf16_f32 v{o+1}, v{d0+2}, v{d0+3}
        v_cvt_pk_bf16_f32 v{o+2}, v{d1}, v{d1+1}
        v_cvt_pk_bf16_f32 v{o+3}, v{d1+2}, v{d1+3}
        buffer_store_dwordx4 {R(o)}, v{t0}, {S4(SRD_WS)}, s{9 if t < 4 else 10} offen offset:{1024*(t%4)}{SC}
        """)
    a(f"""
    s_lshl_b32 s9, s7, 4
    s_add_u32 s9, s9, s6
    s_add_u32 s9, s9, 128
    s_lshl_b32 s9, s9, 2
    s_add_u32 s9, s9, s{S_WAVE}
    """)

S_MB, S_NB, S_KQ, S_H, S_J, S_RB64, S_CT = 96, 97, 98, 99, 100, 101, 63

def jobs2(a):
    a(f"""
    s_lshr_b32 s{S_KQ}, s{S_XCD}, 1
    s_and_b32 s{S_MB}, s{S_XCD}, 1
    s_lshl_b32 s{S_MB}, s{S_MB}, 3
    s_and_b32 s14, s{S_LOC}, 7
    s_add_u32 s{S_MB}, s{S_MB}, s14
    s_lshr_b32 s{S_NB}, s{S_LOC}, 3
    s_lshl_b32 s{S_H}, s{S_XCD}, 1
    s_lshr_b32 s14, s{S_LOC}, 4
    s_add_u32 s{S_H}, s{S_H}, s14
    s_and_b32 s{S_J}, s{S_LOC}, 15
    s_mul_i32 s14, s{S_LOC}, 37
    s_lshr_b32 s14, s14, 8
    s_mul_i32 s15, s14, 7
    s_sub_u32 s{S_CT}, s{S_LOC}, s15
    s_min_u32 s14, s14, 3
    s_lshl_b32 s{S_RB64}, s{S_XCD}, 2
    s_add_u32 s{S_RB64}, s{S_RB64}, s14
    """)

A_Q = 160
A_CM0, A_CM8 = 168, 184
A_NM = 200
A_O = 216
A_S0, A_S1 = 232, 60
A_KF = 76
A_P = 248
A_VF, A_VF2 = 40, 48
A_KA, A_VA0, A_VA1, A_QA = 96, 97, 98, 99
A_M0, A_M1, A_T0 = 56, 57, 58
SA_O, SA_F, SA_MASK, SA_ROLE, SA_Q = 16, 17, 18, 90, 23

def attn_setup(a):
    t0, t1 = 17, 18
    a(f"""
    v_and_b32 v{t0}, 31, v{V_LANE}
    v_lshrrev_b32 v{t1}, 5, v{V_LANE}
    v_lshlrev_b32 v{t1}, 2, v{t1}
    v_sub_u32 v{t0}, v{t0}, v{t1}
    v_mov_b32 v{t1}, {NEGBIG}
    """)
    for i in range(16):
        kk = 8*(i//4) + i % 4
        a(f"""
        v_cmp_gt_i32 vcc, {kk}, v{t0}
        s_nop 1
        v_cndmask_b32 v{A_CM0+i}, v{t1}, 0, vcc
        v_cndmask_b32 v{A_CM8+i}, 0, v{t1}, vcc
        """)
    a(f"""
    v_bfe_u32 v{t0}, v{V_LANE}, 4, 1
    v_lshrrev_b32 v{t1}, 5, v{V_LANE}
    v_lshlrev_b32 v{t0}, 10, v{t0}
    v_lshl_add_u32 v{t0}, v{t1}, 8, v{t0}
    v_and_b32 v{t1}, 15, v{V_LANE}
    v_lshl_add_u32 v{A_QA}, v{t1}, 4, v{t0}
    s_lshl_b32 s14, s{S_WAVE}, 11
    s_add_u32 s15, s14, s{SG_K}
    v_add_u32 v{A_KA}, s15, v{A_QA}
    v_bfe_u32 v{t0}, v{V_LANE}, 4, 1
    v_bfe_u32 v{t1}, v{V_LANE}, 1, 1
    v_lshl_add_u32 v{t0}, v{t0}, 1, v{t1}
    v_lshrrev_b32 v{t1}, 5, v{V_LANE}
    v_add_u32 v{t1}, v{t1}, v{t0}
    v_and_b32 v{t1}, 3, v{t1}
    v_lshlrev_b32 v{t1}, 6, v{t1}
    v_lshl_add_u32 v{t0}, v{t0}, 8, v{t1}
    v_bfe_u32 v{t1}, v{V_LANE}, 2, 2
    v_lshl_add_u32 v{t0}, v{t1}, 4, v{t0}
    v_and_b32 v{t1}, 1, v{V_LANE}
    v_lshl_add_u32 v{t0}, v{t1}, 3, v{t0}
    s_add_u32 s15, s14, s{SG_V}
    v_add_u32 v{A_VA0}, s15, v{t0}
    v_xor_b32 v{A_VA1}, 128, v{A_VA0}
    s_lshl_b32 s15, s{S_H}, 17
    s_add_u32 s14, s14, s15
    s_lshl_b32 s15, s{S_J}, 13
    s_add_u32 s14, s14, s15
    s_add_u32 s{SA_O}, s14, {WS_O}
    s_add_u32 s{SA_Q}, s14, {WS_QKV}
    s_lshl_b32 s{SA_F}, s{S_J}, 1
    s_lshr_b32 s14, s{S_WAVE}, 1
    s_add_u32 s{SA_F}, s{SA_F}, s14
    s_lshl_b32 s{SA_F}, s{SA_F}, 4
    s_add_u32 s{SA_F}, s{SA_F}, s{S_H}
    s_lshl_b32 s{SA_F}, s{SA_F}, 1
    s_and_b32 s14, s{S_WAVE}, 1
    s_add_u32 s{SA_F}, s{SA_F}, s14
    s_mov_b32 s{SA_MASK}, 0
    s_mov_b32 s{SA_MASK+1}, -1
    """)

def qload_ops():
    return [f"buffer_load_dwordx4 {R(A_Q)}, v{A_QA}, {S4(SRD_WS)}, s{SA_Q} offen{SC}",
            f"buffer_load_dwordx4 {R(A_Q+4)}, v{A_QA}, {S4(SRD_WS)}, s{SA_Q} offen offset:512{SC}"]

def g0_attention(a):
    S = [A_S0, A_S1]
    def kread(t):
        b = A_KF + 8 * (t % 2)
        return [f"ds_read_b128 {R(b + 4*m)}, v{A_KA} offset:{2048*t + 512*m}" for m in range(2)]
    def vread(t):
        b = A_VF if t % 2 == 0 else A_VF2
        return [f"ds_read_b64_tr_b16 {R(b + 4*m + 2*jj, 2)}, v{A_VA1 if jj else A_VA0} offset:{2048*t + 1024*m}" for m in range(2) for jj in range(2)]
    def qk(t, c):
        b = A_KF + 8 * (t % 2)
        s = R(S[t % 2], 16)
        return [f"v_mfma_f32_32x32x16_bf16 {s}, {R(b)}, {R(A_Q)}, {c}",
                f"v_mfma_f32_32x32x16_bf16 {s}, {R(b+4)}, {R(A_Q+4)}, {s}"]
    for f in kread(0) + kread(1): a(f)
    a(f"v_mov_b32 v{A_M0}, {NEGBIG}\nv_mov_b32 v{A_M1}, {NEGBIG}")
    a("s_waitcnt lgkmcnt(2)")
    def c1(t): return R(A_CM0, 16) if t == 0 else (R(A_CM8, 16) if t == 8 else "0")
    def maxes(t):
        s = S[t % 2]
        return [f"v_max3_f32 v{A_M0 if i % 2 == 0 else A_M1}, v{s+2*i}, v{s+2*i+1}, v{A_M0 if i % 2 == 0 else A_M1}" for i in range(8)]
    for f in qk(0, c1(0)): a(f)
    for t in range(9):
        if t + 1 <= 8:
            a("s_waitcnt lgkmcnt(0)")
            for f in qk(t + 1, c1(t + 1)): a(f)
        if t + 2 <= 8:
            for f in kread(t + 2): a(f)
        if t == 0: a("s_nop 7")
        if t == 8:
            for f in kread(0) + kread(1): a(f)
        for f in maxes(t): a(f)
    for f in vread(0): a(f)
    a(f"""
    v_max_f32 v{A_M0}, v{A_M0}, v{A_M1}
    v_mov_b32 v{A_M1}, v{A_M0}
    s_nop 1
    v_permlane32_swap_b32 v{A_M0}, v{A_M1}
    v_max_f32 v{A_M0}, v{A_M0}, v{A_M1}
    """)
    for i in range(16):
        a(f"v_sub_f32 v{A_CM0+i}, v{A_CM0+i}, v{A_M0}")
    def c2(t): return R(A_CM0, 16) if t == 0 else (R(A_CM8, 16) if t == 8 else R(A_NM, 16))
    a("s_waitcnt lgkmcnt(0)\ns_nop 0")
    q0 = qk(0, c2(0))
    a(q0[0])
    for i in range(8):
        a(f"v_sub_f32 v{A_NM+i}, 0, v{A_M0}")
    a(q0[1])
    for i in range(8, 16):
        a(f"v_sub_f32 v{A_NM+i}, 0, v{A_M0}")
    for i in range(16):
        a(f"v_sub_f32 v{A_CM8+i}, v{A_CM8+i}, v{A_M0}")
    O = R(A_O, 16)
    def pv(t, m):
        vb = A_VF if t % 2 == 0 else A_VF2
        c = "0" if (t == 0 and m == 0) else O
        return f"v_mfma_f32_32x32x16_bf16 {O}, {R(vb+4*m)}, {R(A_P+4*m)}, {c}"
    for t in range(9):
        s = S[t % 2]
        ex = [f"v_exp_f32 v{s+i}, v{s+i}" for i in range(16)]
        cv = [f"v_cvt_pk_bf16_f32 v{A_P+i}, v{s+2*i}, v{s+2*i+1}" for i in range(8)]
        nq = qk(t + 1, c2(t + 1)) if t + 1 <= 8 else [None, None]
        kr = kread(t + 2) if t + 2 <= 8 else []
        vr = vread(t + 1) if t + 1 <= 8 else []
        a(ex[0]); a(ex[1])
        if t > 0: a(pv(t - 1, 1))
        a(ex[2]); a(ex[3]); a(ex[4]); a(ex[5])
        a("s_waitcnt lgkmcnt(0)")
        if nq[0]: a(nq[0])
        a(ex[6]); a(ex[7]); a(ex[8])
        for f in cv[0:4]: a(f)
        if nq[1]: a(nq[1])
        for f in vr: a(f)
        a(ex[9]); a(ex[10]); a(ex[11])
        a(pv(t, 0))
        for f in kr: a(f)
        a(ex[12]); a(ex[13]); a(ex[14]); a(ex[15])
        a(cv[4]); a(cv[5]); a(cv[6]); a(cv[7])
    t0 = A_T0
    a(f"""
    v_lshrrev_b32 v{t0}, 5, v{V_LANE}
    v_lshl_add_u32 v{t0}, v{t0}, 8, v{A_QA}
    """)
    a(pv(8, 1))
    a(f"""
    s_nop 11
    v_mov_b32 v{A_M0}, v{A_O+12}
    v_mov_b32 v{A_M1}, v{A_O+12}
    s_nop 1
    v_permlane32_swap_b32 v{A_M0}, v{A_M1}
    v_rcp_f32 v{A_M1}, v{A_M1}
    s_nop 0
    """)
    for i in range(16):
        a(f"v_mul_f32 v{A_O+i}, v{A_O+i}, v{A_M1}")
    for i in range(8):
        a(f"v_cvt_pk_bf16_f32 v{A_P+i}, v{A_O+2*i}, v{A_O+2*i+1}")
    a(f"""
    v_cndmask_b32 v{A_P+6}, v{A_P+6}, 0, s[{SA_MASK}:{SA_MASK+1}]
    v_cndmask_b32 v{A_P+7}, v{A_P+7}, 0, s[{SA_MASK}:{SA_MASK+1}]
    buffer_store_dwordx4 {R(A_P)}, v{t0}, {S4(SRD_WS)}, s{SA_O} offen{SC}
    buffer_store_dwordx4 {R(A_P+4)}, v{t0}, {S4(SRD_WS)}, s{SA_O} offen offset:256{SC}
    """)

def ab_poll_addr(a, v, sreg, partner=False):
    _ab_poll_addr(a, v, sreg)
    if partner:
        a(f"v_lshrrev_b32 v17, 5, v{V_LANE}\nv_lshl_add_u32 v{v}, v17, {FS + 7}, v{v}")

def _ab_poll_addr(a, v, sreg):
    a(f"""
    s_lshr_b32 s15, s{S_KQ}, 1
    s_lshl_b32 s15, s15, 2
    s_add_u32 s15, s15, s{S_NB}
    s_lshl_b32 s15, s15, 4
    s_and_b32 s14, s{S_KQ}, 1
    s_lshl_b32 s14, s14, 3
    s_add_u32 s15, s15, s14
    s_add_u32 s15, s15, 128
    s_lshl_b32 s{sreg}, s15, {FS + 2}
    v_and_b32 v{v}, 31, v{V_LANE}
    v_lshlrev_b32 v{v}, {FS}, v{v}
    """)

def g0_program(a):
    FR, ACC = B_FR, B_ACC
    t0, t1 = 17, 18
    a(f"s_cmp_ge_u32 s{S_LOC}, 16\ns_cbranch_scc1 g0_p1b")
    na = NAof(0)
    a(f"""
    s_mov_b32 s{SG_N1}, {na - 1}
    s_mov_b32 s{SG_N2}, {16 - na - 1 - Cfg.FDEL}
    s_mov_b32 s{SG_D}, {(item_base(na + 2) - item_base(na)) & 0xffffffff}
    s_mov_b32 s{SG_SL}, {(na + 2 + 4) % 5}
    s_mov_b32 s{SG_K}, {item_base(na)}
    s_mov_b32 s{SG_V}, {item_base(na + 1)}
    """)
    g0_a1(a)
    a("s_branch g0_p1done\ng0_p1b:")
    na = NAof(1)
    a(f"""
    s_mov_b32 s{SG_N1}, {na - 1}
    s_mov_b32 s{SG_N2}, {16 - na - 1 - Cfg.FDEL}
    s_mov_b32 s{SG_D}, {(item_base(na + 2) - item_base(na)) & 0xffffffff}
    s_mov_b32 s{SG_SL}, {(na + 2 + 4) % 5}
    s_mov_b32 s{SG_K}, {item_base(na)}
    s_mov_b32 s{SG_V}, {item_base(na + 1)}
    """)
    g0_bs(a)
    a("g0_p1done:")
    stamp(a, 3)
    a(f"s_lshl_b32 s14, s{S_WAVE}, 12\ns_add_u32 s14, s14, {item_base(0)}")
    xfrag_addrs(a, B_X0, B_X1, t0, t1, 14)
    a(f"""
    v_lshlrev_b32 v{B_E0}, 4, v{V_LANE}
    v_add_u32 v{B_E0}, {item_base(0) + 16384}, v{B_E0}
    """)
    for i in range(56):
        a(f"v_mov_b32 v{ACC+i}, 0")
    a("s_waitcnt vmcnt(0)")
    flag_store(a, 9, WS_F1, t0, t1)
    stamp(a, 4)
    a(f"s_cmp_lt_u32 s{S_LOC}, 16\ns_cbranch_scc1 g0_t1\ns_barrier\ng0_t1:")
    attn_setup(a)
    a(f"s_cmp_lt_u32 s{S_LOC}, 16\ns_cbranch_scc1 g0_t2")
    a(f"s_cmp_lg_u32 s{S_WAVE}, 0\ns_cbranch_scc1 g0_nopoll")
    ab_poll_addr(a, t0, 56)
    poll_blocking(a, t0, 56, t1, "pab")
    a("g0_nopoll:\ns_barrier\ng0_t2:")
    def reads(ks, buf):
        b = FR + 36 * buf
        f = [f"ds_read_b128 {R(b + 4*T)}, v{B_X1 if ks else B_X0} offset:{2048*T}" for T in range(2)]
        f += [f"ds_read_b128 {R(b + 8 + 4*t)}, v{B_E0} offset:{7168*ks + 1024*t}" for t in range(7)]
        return f
    def mfmas(buf):
        b = FR + 36 * buf
        order = [(t, T) for t in range(7) for T in range(2)]
        if Cfg.MORD == 1: order = [(t, T) for T in range(2) for t in range(7)]
        if Cfg.MORD == 2: order = [(t, (T if t % 2 == 0 else 1 - T)) for t in range(7) for T in range(2)]
        return [f"v_mfma_f32_16x16x32_bf16 {R(ACC + (t*2+T)*4)}, {R(b + 8 + 4*t)}, {R(b + 4*T)}, {R(ACC + (t*2+T)*4)}"
                for t, T in order]
    AR = [B_X0, B_X1, B_E0]
    AR3 = ([B_X0], [B_X1], [B_E0])
    a("s_mov_b32 s8, 4\ns_barrier")
    stamp(a, 5)
    for f in reads(0, 0): a(f)
    gemm_loop(a, "bb1", f"s{SG_N1}", SLOT, 5, reads, mfmas, AR3, 8, 10, 11)
    for f in qload_ops(): a(f)
    gemm_loop(a, "bb1b", 1, SLOT, 5, reads, mfmas, AR3, 8, 10, 11, strict=True)
    stamp(a, 6)
    for r in AR:
        a(f"v_add_u32 v{r}, s{SG_D}, v{r}")
    a(f"s_mov_b32 s8, s{SG_SL}\ns_waitcnt vmcnt(0)")
    g0_attention(a)
    stamp(a, 7)
    a("s_barrier")
    for f in reads(0, 0): a(f)
    gemm_loop(a, "bb2", Cfg.FDEL, SLOT, 5, reads, mfmas, AR3, 8, 10, 11)
    a("s_waitcnt vmcnt(0)")
    flag_store(a, SA_F, WS_F2, t0, t1)
    gemm_loop(a, "bb3", f"s{SG_N2}", SLOT, 5, reads, mfmas, AR3, 8, 10, 11)
    ladder_step(a, mfmas(0), reads(0, 0), reads(1, 1), [])
    ladder_step(a, mfmas(1), reads(1, 1), [], [])
    stamp(a, 8)
    a(f"""
    s_waitcnt lgkmcnt(0)
    s_lshl_b32 s9, s{S_MB}, 2
    s_add_u32 s9, s9, s{S_NB}
    s_lshl_b32 s9, s9, 4
    s_lshl_b32 s10, s{S_KQ}, 2
    s_add_u32 s10, s10, s9
    s_add_u32 s10, s10, s{S_WAVE}
    s_lshl_b32 s10, s10, 13
    s_add_u32 s10, s10, {WS_PQ}
    s_add_u32 s11, s10, 4096
    v_lshlrev_b32 v{t0}, 4, v{V_LANE}
    """)
    PK = 24
    for T in range(2):
        def val(v): return ACC + ((v // 4)*2 + T)*4 + v % 4
        for i in range(4):
            o = PK + 4*(T*4 + i)
            for d in range(3):
                a(f"v_cvt_pk_bf16_f32 v{o+d}, v{val(7*i+2*d)}, v{val(7*i+2*d+1)}")
            a(f"v_cvt_pk_bf16_f32 v{o+3}, v{val(7*i+6)}, s{S_TAGF}")
            a(f"buffer_store_dwordx4 {R(o)}, v{t0}, {S4(SRD_WS)}, s{10+T} offen offset:{1024*i}{SC}")
    a("s_barrier")
    WF = 60
    DA = 104
    WA = 4
    OA = 12
    a(f"""
    v_lshrrev_b32 v{WA}, 4, v{V_LANE}
    v_lshlrev_b32 v{WA}, 3, v{WA}
    v_bfe_u32 v{t1}, v{V_LANE}, 2, 2
    v_add_u32 v{WA}, v{WA}, v{t1}
    v_lshlrev_b32 v{WA}, 7, v{WA}
    v_bfe_u32 v{t1}, v{V_LANE}, 3, 2
    v_lshl_add_u32 v{WA}, v{t1}, 5, v{WA}
    v_and_b32 v{t1}, 3, v{V_LANE}
    v_lshl_add_u32 v{WA}, v{t1}, 3, v{WA}
    v_add_u32 v{WA}, {item_base(18)}, v{WA}
    v_xor_b32 v{WA+1}, 32, v{WA}
    v_xor_b32 v{WA+2}, 64, v{WA}
    v_xor_b32 v{WA+3}, 96, v{WA}
    s_lshl_b32 s14, s{S_WAVE}, 10
    v_add_u32 v{OA}, s14, v{t0}
    s_mov_b32 s11, 16384
    v_add_u32 v{OA}, {item_base(20)}, v{OA}
    s_lshl_b32 s12, s{S_RB64}, 6
    s_lshl_b32 s15, s{S_WAVE}, 4
    s_add_u32 s12, s12, s15
    s_mul_i32 s12, s12, 1792
    s_lshl_b32 s15, s{S_CT}, 7
    s_add_u32 s12, s12, s15
    v_and_b32 v{t0}, 15, v{V_LANE}
    v_mul_u32_u24 v{t0}, 1792, v{t0}
    v_lshrrev_b32 v{t1}, 4, v{V_LANE}
    v_lshl_add_u32 v{t0}, v{t1}, 3, v{t0}
    """)
    for i in range(16): a(f"v_mov_b32 v{DA+i}, 0")
    stamp(a, 9)
    a(f"""
    s_barrier
    s_cmp_ge_u32 s{S_LOC}, 28
    s_cbranch_scc1 g0_done
    """)
    WF = 128
    def wread(hh, buf):
        b = WF + 20 * buf
        f = [f"ds_read_b128 {R(b + 16)}, v{OA} offset:{4096*hh}"]
        f += [f"ds_read_b64_tr_b16 {R(b + 4*tau + 2*jj, 2)}, v{WA + tau} offset:{4096*hh + 512*jj}" for tau in range(4) for jj in range(2)]
        return f
    def mf(buf):
        b = WF + 20 * buf
        return [f"v_mfma_f32_16x16x32_bf16 {R(DA + 4*tau)}, {R(b + 4*tau)}, {R(b + 16)}, {R(DA + 4*tau)}" for tau in range(4)]
    for f in wread(0, 0) + wread(1, 1): a(f)
    dW = item_base(19) - item_base(18) - 16384
    dO = item_base(21) - item_base(20) - 16384
    a(f"s_mov_b32 s10, 0\na3_loop:")
    for f in wread(2, 2): a(f)
    a("s_waitcnt lgkmcnt(15)\ns_waitcnt lgkmcnt(9)" if False else "s_waitcnt lgkmcnt(9)")
    interleave(a, mf(0) + mf(1), wread(3, 3) + [f"""s_cmp_eq_u32 s10, 1
    s_cselect_b32 s14, {dW & 0xffffffff}, 16384
    s_cselect_b32 s15, {dO & 0xffffffff}, 16384""".replace(", 16384", ", s11")] )
    for tau in range(4): a(f"v_add_u32 v{WA+tau}, s14, v{WA+tau}")
    a(f"v_add_u32 v{OA}, s15, v{OA}")
    for f in wread(0, 0): a(f)
    a("s_waitcnt lgkmcnt(9)")
    interleave(a, mf(2) + mf(3), wread(1, 1) + ["s_add_u32 s10, s10, 1\ns_cmp_lt_u32 s10, 4"])
    a("s_cbranch_scc1 a3_loop")
    a("s_nop 7")
    for tau in range(4):
        d = DA + 4*tau
        a(f"""
        v_cvt_pk_bf16_f32 v{60+2*tau}, v{d}, v{d+1}
        v_cvt_pk_bf16_f32 v{60+2*tau+1}, v{d+2}, v{d+3}
        buffer_store_dwordx2 {R(60+2*tau, 2)}, v{t0}, {S4(SRD_OUT)}, s12 offen offset:{32*tau}{OSC()}
        """)
    a("g0_done:")
    stamp(a, 10)
    if Cfg.stamps: a("s_waitcnt vmcnt(0)")
    stamp(a, 11)
    stamp(a, 15, True)
    dump_stamps(a, 0)
    a("s_endpgm")

def dma(vm, tag, m0base, m0imm, vaddr, srd_, soff, lanes=64, sc=""):
    pre, post = "s_nop 0", ""
    if lanes == 16: pre, post = "s_mov_b64 exec, 0xffff", "\ns_mov_b64 exec, -1"
    if lanes == 32: pre, post = "s_mov_b32 exec_hi, 0", "\ns_mov_b32 exec_hi, -1"
    vm.op(tag, f"s_add_u32 m0, s{m0base}, {m0imm}\n{pre}\nbuffer_load_dwordx4 v{vaddr}, {S4(srd_)}, s{soff} offen{sc} lds{post}")

def x_dma_addrs(a, vXd, srow, rowbytes, permute, t0, t1, t2):
    if not permute:
        a(f"v_lshrrev_b32 v{t0}, 3, v{V_LANE}")
        o1, o2 = 8, 16
    else:
        a(f"""v_lshrrev_b32 v{t0}, 5, v{V_LANE}
        v_bfe_u32 v{t1}, v{V_LANE}, 3, 2
        v_lshl_add_u32 v{t0}, v{t0}, 3, v{t1}""")
        o1, o2 = 16, 4
    a(f"""
    v_add_u32 v{t0}, s{srow}, v{t0}
    v_mul_u32_u24 v{t0}, {rowbytes}, v{t0}
    v_and_b32 v{t1}, 7, v{V_LANE}
    v_lshrrev_b32 v{t2}, 4, v{V_LANE}
    v_xor_b32 v{t1}, v{t1}, v{t2}
    v_lshl_add_u32 v{vXd}, v{t1}, 4, v{t0}
    v_xor_b32 v{t1}, 4, v{t1}
    v_lshl_add_u32 v{vXd+1}, v{t1}, 4, v{t0}
    v_add_u32 v{vXd+1}, {o1*rowbytes}, v{vXd+1}
    v_add_u32 v{vXd+2}, {o2*rowbytes}, v{vXd}
    v_add_u32 v{vXd+3}, {o2*rowbytes}, v{vXd+1}
    """)

V_TR = 100
def g1bar(a, b):
    a("s_barrier")
    if Cfg.stamps:
        if b > 0: a(f"s_waitcnt lgkmcnt(0)\nv_writelane_b32 v{V_TR}, s88, {b-1}")
        a("s_memrealtime s[88:89]")

class Stream:
    def __init__(self, a, vm):
        self.a, self.vm, self.ops, self.pos = a, vm, [], 0
        self.hook = None
    def add(self, tag, need, avail, emits):
        for e in emits: self.ops.append((tag, need, avail, e))
    def run_to(self, b, la, maxops=999):
        last_needed = max([i for i, o in enumerate(self.ops) if o[1] <= b] + [-1])
        while self.pos < len(self.ops):
            tag, need, avail, e = self.ops[self.pos]
            if avail >= b:
                assert self.pos > last_needed, (b, tag)
                break
            if self.pos > last_needed + la: break
            if self.pos > last_needed and maxops <= 0: break
            e(); self.pos += 1; maxops -= 1
        if self.hook: self.hook(); self.hook = None
        tags = [o[0] for o in self.ops[:last_needed + 1]]
        pend = [t for t in self.vm.q if t in set(tags)]
        if pend: self.vm.wait(pend[-1])

G_XD, G_WD, G_CD, G_L16, G_PK, G_PO, G_PT, G_VD, G_WO = 4, 8, 24, 28, 29, 30, 31, 32, 33
G_TA, G_DUM, G_PA = 36, 38, 39
def g1_bbig_setup(a):
    t0, t1, t2 = 17, 18, 19
    a(f"""
    s_lshl_b32 s15, s{S_MB}, 7
    s_lshl_b32 s14, s{S_WAVE}, 5
    s_add_u32 s15, s15, s14
    """)
    x_dma_addrs(a, G_CD, 15, 4096, False, t0, t1, t2)
    a(f"s_cmp_lt_u32 s{S_KQ}, 2")
    srd_sel(a, SRD_C, P_CR, P_CI, 2048 * 4096)
    a(f"""
    v_lshlrev_b32 v{G_L16}, 4, v{V_LANE}
    s_and_b32 s14, s{S_KQ}, 1
    s_lshl_b32 s7, s14, 11
    s_mul_i32 s6, s14, {32*7168}
    s_lshr_b32 s15, s{S_KQ}, 1
    s_lshl_b32 s15, s15, 2
    s_add_u32 s15, s15, s{S_NB}
    s_mul_i32 s15, s15, {AT_NB}
    s_add_u32 s6, s6, s15
    s_mul_i32 s15, s{S_WAVE}, 3584
    s_add_u32 s6, s6, s15
    s_add_u32 s6, s6, {WS_AT}
    s_add_u32 s61, s15, 16384
    s_lshl_b32 s60, s{S_WAVE}, 12
    s_lshl_b32 s62, s{S_WAVE}, 10
    s_and_b32 s11, s{S_LOC}, 7
    s_and_b32 s14, s{S_NB}, 1
    s_lshl_b32 s14, s14, 2
    s_add_u32 s11, s11, s14
    s_cmp_lt_u32 s{S_NB}, 2
    s_cselect_b32 s14, 2, 0
    s_add_u32 s11, s11, s14
    s_and_b32 s30, s{S_XCD}, {Cfg.SWAP}
    s_lshl_b32 s30, s30, 3
    s_xor_b32 s31, s30, 8
    {"s_and_b32 s11, s%d, 7" % S_LOC if Cfg.NOROT else ""}
    """)

def touch_setup(a):
    t0, t1, t2 = 17, 18, 19
    a(f"""
    s_lshl_b32 s15, s{S_MB}, 7
    s_lshl_b32 s14, s{S_WAVE}, 5
    s_add_u32 s15, s15, s14
    v_lshrrev_b32 v{t0}, 1, v{V_LANE}
    v_add_u32 v{t0}, s15, v{t0}
    v_lshlrev_b32 v{t0}, 12, v{t0}
    v_and_b32 v{t1}, 1, v{V_LANE}
    v_add_u32 v{t1}, s11, v{t1}
    v_and_b32 v{t2}, 7, v{t1}
    v_lshl_add_u32 v{G_TA}, v{t2}, 7, v{t0}
    v_add_u32 v{t1}, 2, v{t1}
    v_and_b32 v{t2}, 7, v{t1}
    v_lshl_add_u32 v{G_TA+1}, v{t2}, 7, v{t0}
    """)
def touch_ops(a, vm, off=0):
    nt = " nt" if Cfg.NT_TOUCH else ""
    return [(lambda i=i: vm.op("touch", f"buffer_load_dword v{G_DUM}, v{G_TA+i}, {S4(SRD_C)}, s7 offen offset:{off}{nt}")) for i in range(2)]

def stage_item(s): return s if s < Cfg.NA else s + 2
def x_ops(a, vm, s, nt=None):
    base = item_base(stage_item(s))
    if nt is None: nt = bool(Cfg.NT_TOUCH and (s < 2 or (s in (8, 9) and Cfg.NA == 8)))
    def mk(i):
        def e():
            if i == 0:
                a(f"s_add_u32 s14, s11, {s}\ns_and_b32 s14, s14, 7\ns_or_b32 s14, s14, s{30 + (s >> 3)}\ns_lshl_b32 s0, s14, 7\ns_add_u32 s0, s0, s7")
            dma(vm, ("x", s), 60, base + i*1024, G_CD + i, SRD_C, 0, sc=(" nt" if nt else ""))
        return e
    return [mk(i) for i in range(4)]
def e_ops(a, vm, s):
    base = item_base(stage_item(s))
    ent = " nt" if (Cfg.LASTNT and (s & 7) == 7) else ""
    def mk(i):
        def e():
            if i == 0:
                a(f"s_add_u32 s14, s11, {s}\ns_and_b32 s14, s14, 7\ns_or_b32 s14, s14, s{30 + (s >> 3)}\ns_mul_i32 s1, s14, 14336\ns_add_u32 s1, s1, s6")
            pre, post = ("s_nop 0", "") if i < 3 else ("s_mov_b32 exec_hi, 0", "\ns_mov_b32 exec_hi, -1")
            vm.op(("e", s), f"s_add_u32 m0, s61, {base}\n{pre}\nbuffer_load_dwordx4 v{G_L16}, {S4(SRD_WS)}, s1 offen offset:{1024*i}{SC}{ent} lds{post}")
        return e
    return [mk(i) for i in range(4)]

X_AVAIL = [4, 5, 6, 7, 7]

def g1_p1(a, typ):
    vXd, vWd = G_XD, G_WD
    t0, t1, t2, t3 = 17, 18, 19, 20
    sX, sW, sC, sT, sM0x, sM0w = 9, 10, 8, 11, 12, 13
    stepW = 64*2688 if typ == 0 else 128
    def sbase(c): return (c % 4) * 37888 if typ == 0 else ((c + 2) % 5) * SLOT
    nslot = 4 if typ == 0 else 5
    ntp = " nt" if Cfg.NT_P1 in (1, 2, 4) else ""
    def ntc(c): return " nt" if (Cfg.NT_P1 == 1 or (Cfg.NT_P1 == 2 and c < 2) or (Cfg.NT_P1 == 3 and c >= 5) or (Cfg.NT_P1 == 4 and (c >= 5 or c < 2))) else ""
    a(f"""
    s_lshl_b32 s{sT}, s6, 7
    s_lshl_b32 s14, s{S_WAVE}, 5
    s_add_u32 s{sT}, s{sT}, s14
    """)
    x_dma_addrs(a, vXd, sT, 896, typ == 1, t0, t1, t2)
    a(f"s_lshl_b32 s{sM0x}, s{S_WAVE}, 12\ns_lshl_b32 s{sX}, s{sC}, 7\ns_waitcnt lgkmcnt(0)")
    srd(a, SRD_X, P_AX if typ == 0 else P_BX, 2048 * 896)
    vm = VM(a)
    if typ == 0 and Cfg.A1LATE:
        epoch_load(a)
    stamp(a, 1)
    for i in range(4):
        dma(vm, ("p", 0), sM0x, sbase(0) + i*1024, vXd+i, SRD_X, sX, sc=ntp)
    if typ == 0:
        srd(a, SRD_W, P_WQKV, 448 * 2688)
        a(f"""
        s_mul_i32 s{sT}, s{S_WAVE}, {16*2688}
        s_mul_i32 s14, s7, 336
        s_add_u32 s{sT}, s{sT}, s14
        """)
        nw, wbytes = 6, 5376
        def waddr(i):
            a(f"""
            v_add_u32 v{t0}, {64*i}, v{V_LANE}
            v_mul_u32_u24 v{t1}, 3121, v{t0}
            v_lshrrev_b32 v{t1}, 16, v{t1}
            v_mul_u32_u24 v{t2}, 21, v{t1}
            v_sub_u32 v{t0}, v{t0}, v{t2}
            v_and_b32 v{t2}, 8, v{t1}
            v_and_b32 v{t3}, 1, v{t1}
            v_lshl_add_u32 v{t2}, v{t3}, 2, v{t2}
            v_bfe_u32 v{t3}, v{t1}, 1, 2
            v_add_u32 v{t2}, v{t2}, v{t3}
            v_mul_u32_u24 v{t2}, 2688, v{t2}
            v_lshl_add_u32 v{t2}, v{t0}, 4, v{t2}
            v_add_u32 v{vWd+i}, s{sT}, v{t2}
            """)
    else:
        a("s_cmp_lt_u32 s7, 4")
        srd_sel(a, SRD_W, P_DR, P_DI, 448 * 896)
        a(f"""
        s_and_b32 s{sT}, s7, 3
        s_mul_i32 s{sT}, s{sT}, 112
        s_mul_i32 s15, s{S_WAVE}, 28
        """)
        nw, wbytes = 4, 3584
        def waddr(i):
            a(f"""
            v_lshrrev_b32 v{t0}, 3, v{V_LANE}
            v_add3_u32 v{t0}, v{t0}, s15, {8*i}
            v_bfe_u32 v{t1}, v{t0}, 2, 2
            v_mul_u32_u24 v{t1}, 28, v{t1}
            v_lshrrev_b32 v{t2}, 4, v{t0}
            v_lshl_add_u32 v{t1}, v{t2}, 2, v{t1}
            v_and_b32 v{t2}, 3, v{t0}
            v_add3_u32 v{t1}, v{t1}, v{t2}, s{sT}
            v_mul_u32_u24 v{t1}, 896, v{t1}
            v_bfe_u32 v{t2}, v{t0}, 1, 3
            v_and_b32 v{t3}, 7, v{V_LANE}
            v_xor_b32 v{t2}, v{t2}, v{t3}
            v_lshl_add_u32 v{vWd+i}, v{t2}, 4, v{t1}
            """)
    a(f"""
    s_mul_i32 s{sM0w}, s{S_WAVE}, {wbytes}
    s_add_u32 s{sM0w}, s{sM0w}, 16384
    s_mul_i32 s{sW}, s{sC}, {stepW}
    """)
    def wl(i): return 64 if i < nw - 1 else (16 if typ == 0 else 32)
    for i in range(nw):
        waddr(i)
        dma(vm, ("p", 0), sM0w, sbase(0) + i*1024, vWd+i, SRD_W, sW, lanes=wl(i), sc=ntp)
    st = Stream(a, vm)
    st.add(("p", 0), 0, -1, [])
    def pops(c):
        ops = []
        def mkx(i):
            def e():
                if i == 0:
                    a(f"s_add_u32 s{sC}, s{sC}, 1\ns_cmp_eq_u32 s{sC}, 7\ns_cselect_b32 s{sC}, 0, s{sC}\ns_lshl_b32 s{sX}, s{sC}, 7\ns_mul_i32 s{sW}, s{sC}, {stepW}")
                dma(vm, ("p", c), sM0x, sbase(c) + i*1024, vXd+i, SRD_X, sX, sc=ntc(c))
            return e
        def mkw(i):
            return lambda: dma(vm, ("p", c), sM0w, sbase(c) + i*1024, vWd+i, SRD_W, sW, lanes=wl(i), sc=ntc(c))
        return [mkx(i) for i in range(4)] + [mkw(i) for i in range(nw)]
    tpos = Cfg.TPOS_A if typ == 0 else 77
    for c in range(1, 7):
        st.add(("p", c), c, (c - nslot + 2) if c >= nslot else -1, pops(c))
        if tpos == c: st.add("touch", c + 1 if c < 6 else 99, -1, touch_ops(a, vm))
    st.run_to(0, Cfg.LA0)
    jobs2(a)
    g1_bbig_setup(a)
    touch_setup(a)
    if tpos == 0:
        for e in touch_ops(a, vm): e()
    if not (typ == 0 and Cfg.A1LATE): epoch_load(a)
    srd(a, SRD_WS, P_WS, WS_SIZE)
    srd(a, SRD_OUT, P_OUT, 2048 * 1792)
    stamp(a, 2)
    vm.wait(("p", 0))
    g1bar(a, 0)
    for b in range(1, 7):
        st.run_to(b, Cfg.LA1 if b > 1 else Cfg.LAB1)
        g1bar(a, b)
    st.run_to(7, 99)
    assert st.pos == len(st.ops)
    return list(vm.q)

def epoch_load(a):
    a(f"""
    s_add_u32 s14, s{P_WS}, {WS_EPOCH}
    s_addc_u32 s15, s{P_WS+1}, 0
    s_load_dword s39, s[14:15], 0
    s_waitcnt lgkmcnt(0)
    s_mul_i32 s{S_TAG}, s39, 0x19660d
    s_add_u32 s{S_TAG}, s{S_TAG}, 0x3c6ef35f
    s_and_b32 s14, s{S_TAG}, 0xfff
    s_or_b32 s14, s14, 0x4000
    s_lshr_b32 s15, s39, 16
    s_cmp_eq_u32 s14, s15
    s_cselect_b32 s15, 0x1000, 0
    s_or_b32 s14, s14, s15
    s_lshl_b32 s{S_TAGF}, s14, 16
    """)

def g1_common_setup(a):
    t0, t1, t2 = 17, 18, 19
    a(f"""
    v_and_b32 v{t0}, 31, v{V_LANE}
    v_lshlrev_b32 v{G_PO}, {FS}, v{t0}
    s_lshl_b32 s13, s{S_RB64}, {FS + 5}
    s_add_u32 s13, s13, {WS_F2}
    v_lshrrev_b32 v{t0}, 3, v{V_LANE}
    v_mul_u32_u24 v{t0}, 896, v{t0}
    v_and_b32 v{t1}, 7, v{V_LANE}
    v_bfe_u32 v{t2}, v{V_LANE}, 4, 1
    v_lshlrev_b32 v{t2}, 1, v{t2}
    v_xor_b32 v{t1}, v{t1}, v{t2}
    v_lshl_add_u32 v{G_WO}, v{t1}, 4, v{t0}
    v_xor_b32 v{t1}, 4, v{t1}
    v_lshl_add_u32 v{G_WO+1}, v{t1}, 4, v{t0}
    v_mov_b32 v{t2}, 0x7ffffff0
    v_cmp_gt_u32 vcc, 32, v{V_LANE}
    s_mul_i32 s9, s{S_WAVE}, {28*896}
    s_lshl_b32 s14, s{S_CT}, 7
    v_cndmask_b32 v{G_WO+2}, v{t2}, v{G_WO+1}, vcc
    s_add_u32 s9, s9, s14
    """)
    srd(a, SRD_W, P_WO, 448 * 896)

def g1_kv_setup(a):
    t0, t1, t2 = 17, 18, 19
    for kind in range(3):
        a(f"""
        s_add_u32 s14, s{S_H}, {16*kind}
        s_mul_i32 s15, s14, 43
        s_lshr_b32 s15, s15, 8
        s_mul_i32 s12, s15, 6
        s_sub_u32 s14, s14, s12
        s_cmp_ge_u32 s14, 3
        s_cselect_b32 s14, 1, 0
        s_lshl_b32 s15, s15, 6
        s_add_u32 s{24+kind}, s15, s14
        """)
    a(f"""
    v_mov_b32 v{t0}, s26
    v_mov_b32 v{t1}, s25
    v_cmp_gt_u32 vcc, 16, v{V_LANE}
    v_mov_b32 v{t2}, s24
    s_nop 0
    v_cndmask_b32 v{t0}, v{t0}, v{t1}, vcc
    v_cmp_gt_u32 vcc, 8, v{V_LANE}
    v_bfe_u32 v{t1}, v{V_LANE}, 1, 2
    v_min_u32 v{t1}, 2, v{t1}
    v_cndmask_b32 v{t0}, v{t0}, v{t2}, vcc
    v_sub_u32 v{t1}, s{S_J}, v{t1}
    v_max_i32 v{t1}, 0, v{t1}
    v_lshl_add_u32 v{t0}, v{t1}, 2, v{t0}
    v_and_b32 v{t1}, 1, v{V_LANE}
    v_lshl_add_u32 v{t0}, v{t1}, 1, v{t0}
    v_lshlrev_b32 v{G_PK}, {FS}, v{t0}
    s_mov_b32 s12, {WS_F1}
    v_lshrrev_b32 v{t0}, 4, v{V_LANE}
    v_lshlrev_b32 v{t1}, 2, v{t0}
    v_sub_u32 v{t1}, v{V_LANE}, v{t1}
    v_and_b32 v{t1}, 15, v{t1}
    v_lshlrev_b32 v{t1}, 4, v{t1}
    v_lshl_add_u32 v{G_VD}, v{t0}, 8, v{t1}
    s_lshl_b32 s8, s{S_H}, 17
    s_add_u32 s8, s8, {WS_QKV + 16*131072}
    s_lshl_b32 s10, s{S_J}, 3
    s_add_u32 s10, s10, s{S_WAVE}
    s_sub_u32 s10, s10, 16
    """)

def g1_phase2(a, typ):
    NA = Cfg.NA = NAof(typ)
    t0, t1, t2, t3 = 17, 18, 19, 20
    vm = VM(a)
    stamp(a, 3)
    g1_common_setup(a)
    g1_kv_setup(a)
    nt = bool(Cfg.NT_TOUCH)
    def async_check(vaddr, soff, name):
        l = a.newlabel(name)
        a(f"v_cmp_ne_u32 vcc, s{S_TAG}, v{G_PT}\ns_cbranch_vccz {l}")
        poll_blocking(a, vaddr, soff, G_PT, name + "b")
        a(f"{l}:")
    if typ == 0: ab_poll_addr(a, G_PA, 34)
    def xpre():
        for st_ in range(Cfg.NXPRE):
            for e in x_ops(a, vm, st_): e()
    if typ == 0 and Cfg.XA_AT == 6: xpre()
    g1bar(a, 7)
    stamp(a, 4)
    if typ == 1 or not Cfg.NOBP: a("s_barrier")
    if typ == 0:
        vm.op("pa", f"buffer_load_dword v{G_PT}, v{G_PA}, {S4(SRD_WS)}, s34 offen sc1")
    if not (typ == 0 and Cfg.XA_AT == 6): xpre()
    if typ == 0:
        vm.wait("pa")
        async_check(G_PA, 34, "pa")
    else:
        a("s_barrier")
    if Cfg.stamps: a(f"s_waitcnt lgkmcnt(0)\nv_writelane_b32 v{V_TR}, s88, 7\ns_memrealtime s[88:89]")
    vm.q = []
    stamp(a, 5)
    st = Stream(a, vm)
    def need(s): return 9 + s if s < NA else 10 + s
    def free_after_item(n):
        if n < NA - 1: return 11 + n
        if n == NA - 1: return 9 + NA
        if n < NA + 2: return 10 + NA
        return 12 + (n - 2)
    def avail(n):
        if n >= 5: return free_after_item(n - 5)
        return 9 if (typ == 0 and Cfg.NOBP and n >= 3) else -1
    def kv_ops(which):
        base = item_base(NA + which)
        def mk(i):
            def e():
                a(f"""s_add_u32 s14, s10, {4*i}
                s_max_i32 s14, s14, 0
                s_lshl_b32 s14, s14, 10
                s_add_u32 s14, s14, s8""")
                if which: a(f"s_add_u32 s14, s14, {16*131072}")
                dma(vm, "kv", 62, base + 4096*i, G_VD if which else G_L16, SRD_WS, 14, sc=SC + (" nt" if Cfg.KVNT else ""))
            return e
        return [mk(i) for i in range(6)]
    def wo_ops(half):
        base = item_base(18 + half)
        def mk(i, qd):
            def e():
                a(f"s_add_u32 s14, s9, {((8*half + 4*i)*28 + 8*qd)*896}")
                dma(vm, "wo", 60, base + 16384*i + 1024*qd, G_WO + (2 if qd == 3 else qd % 2), SRD_W, 14)
            return e
        return [mk(i, qd) for i in range(2) for qd in range(4)]
    def touchB():
        if Cfg.TLB2:
            l = a.newlabel("tlb2")
            a(f"""
            s_cmp_lg_u32 s{S_WAVE}, 0
            s_cbranch_scc1 {l}
            v_lshlrev_b32 v{t0}, {Cfg.TLBS}, v{V_LANE}
            s_mov_b32 s14, {WS_O}
            buffer_load_dword v{G_DUM}, v{t0}, {S4(SRD_OUT)}, 0 offen sc1
            s_mov_b64 exec, {(1 << ((WS_STAMP - WS_O) >> Cfg.TLBS)) - 1}
            buffer_load_dword v{G_DUM}, v{t0}, {S4(SRD_WS)}, s14 offen sc1
            s_mov_b64 exec, -1
            {l}:
            """)
        if not Cfg.TCH: return
        if NA != 8:
            a("s_lshl_b32 s14, s31, 7\ns_add_u32 s14, s14, s7")
            vm.op("touch", f"buffer_load_dword v{G_DUM}, v{G_TA}, {S4(SRD_C)}, s14 offen")
        a(f"""
        s_and_b32 s14, s11, 7
        s_add_u32 s14, s14, s31
        s_mul_i32 s14, s14, 14336
        s_add_u32 s14, s14, s6
        v_lshlrev_b32 v{t0}, 7, v{V_LANE}
        s_mov_b64 exec, 0xfffffff
        """)
        vm.op("touch", f"buffer_load_dword v{G_DUM}, v{t0}, {S4(SRD_WS)}, s14 offen sc1")
        a(f"""
        s_lshl_b32 s14, s{S_LOC}, 2
        s_add_u32 s14, s14, s{S_WAVE}
        s_mul_i32 s14, s14, 3200
        s_mov_b64 exec, 0x1ffffff
        v_add_u32 v{t0}, s14, v{t0}
        """)
        if Cfg.WOT: vm.op("touch", f"buffer_load_dword v{G_DUM}, v{t0}, {S4(SRD_W)}, 0 offen{' nt' if Cfg.WOT == 2 else ''}")
        a("s_mov_b64 exec, -1")
    def epoch_bump():
        a(f"""
        s_cmp_lg_u32 s2, 0
        s_cbranch_scc1 eb_done
        s_cmp_lg_u32 s{S_WAVE}, 0
        s_cbranch_scc1 eb_done
        v_lshlrev_b32 v{t0}, {FS + 2}, v{V_LANE}
        s_mov_b32 s39, 0
        eb_loop:
        """)
        for i in range(4):
            a(f"s_mov_b32 s14, {WS_F1 + (256 << FS)*i}\nbuffer_load_dword v{40+i}, v{t0}, {S4(SRD_WS)}, s14 offen sc1")
        a(f"""
        s_add_u32 s39, s39, 1
        s_waitcnt vmcnt(0)
        v_xor_b32 v40, s{S_TAG}, v40
        v_xor_b32 v41, s{S_TAG}, v41
        v_xor_b32 v42, s{S_TAG}, v42
        v_xor_b32 v43, s{S_TAG}, v43
        v_or_b32 v40, v40, v41
        v_or3_b32 v40, v40, v42, v43
        v_cmp_ne_u32 vcc, 0, v40
        s_cmp_ge_u32 s39, {POLL_LIMIT}
        s_cbranch_scc1 eb_st
        s_cbranch_vccnz eb_loop
        eb_st:
        s_mov_b32 s14, {WS_EPOCH}
        v_mov_b32 v{t0}, 0
        v_mov_b32 v{t1}, s{S_TAG}
        s_mov_b64 exec, 1
        buffer_store_dword v{t1}, v{t0}, {S4(SRD_WS)}, s14 offen sc1
        s_mov_b64 exec, -1
        eb_done:
        """)
    kvb = 9 + NA - Cfg.KVL
    ob = 10 + Cfg.O_POLL + 1
    for s in range(16):
        n = stage_item(s)
        av = avail(n)
        if Cfg.HOLD and s >= 10: av = max(av, 10 + NA)
        if s == NA:
            st.add("kv", 9 + NA, max(avail(NA), kvb - 1), kv_ops(0))
            st.add("kv", 9 + NA, max(avail(NA + 1), kvb - 1), kv_ops(1))
            st.add("tb", 10 + NA, 9 + NA, [touchB])
        if s >= Cfg.NXPRE: st.add(("x", s), need(s), av, x_ops(a, vm, s))
        st.add(("e", s), need(s), av, e_ops(a, vm, s))
    st.add("wo", 27, avail(18), wo_ops(0))
    st.add("wo", 27, avail(19), wo_ops(1))
    def kv_patch():
        l = a.newlabel("nopatch")
        a(f"""
        s_cmp_ge_u32 s{S_J}, 2
        s_cbranch_scc1 {l}
        v_lshrrev_b32 v{t0}, 4, v{V_LANE}
        v_lshlrev_b32 v{t0}, 12, v{t0}
        v_and_b32 v{t1}, 15, v{V_LANE}
        v_lshl_add_u32 v{t0}, v{t1}, 4, v{t0}
        v_add_u32 v{t0}, s62, v{t0}
        v_add_u32 v{t0}, {item_base(NA)}, v{t0}
        v_mov_b32 v{t1}, 0xf14a
        s_cmp_eq_u32 s{S_J}, 0
        s_cselect_b32 exec_hi, -1, 0
        ds_write_b16 v{t0}, v{t1} offset:{3*256 + 8}
        s_mov_b32 exec_hi, -1
        s_waitcnt lgkmcnt(0)
        {l}:
        """)
    for b in range(9, 27):
        if b == kvb - 1: vm.op("pk", f"buffer_load_dword v{G_PT}, v{G_PK}, {S4(SRD_WS)}, s12 offen sc1")
        if b == ob - 1: vm.op("po", f"buffer_load_dword v{G_PT}, v{G_PO}, {S4(SRD_WS)}, s13 offen sc1")
        if b == kvb:
            vm.wait("pk"); async_check(G_PK, 12, "pk")
        if b == ob:
            vm.wait("po"); async_check(G_PO, 13, "po")
        la = Cfg.LA + Cfg.LAR * (b - 9)
        if b == 26: la = 99
        if b == 10 + NA and typ == 0: st.hook = epoch_bump
        st.run_to(b, la)
        if b == 9 + NA: kv_patch()
        g1bar(a, b)
        if b == 9: stamp(a, 6)
        if b == 9 + NA: stamp(a, 7)
    assert st.pos == len(st.ops)

def g1_program(a):
    t0, t1, t2, t3 = 17, 18, 19, 20
    a(f"s_cmp_ge_u32 s{S_LOC}, 16\ns_cbranch_scc1 g1_p1b")
    g1_p1(a, 0)
    g1_phase2(a, 0)
    a("s_branch g1_join\ng1_p1b:")
    g1_p1(a, 1)
    g1_phase2(a, 1)
    a("g1_join:")
    d21 = item_base(21) - item_base(20) - 8*4096
    a(f"s_lshl_b32 s10, s{S_RB64}, 12\ns_add_u32 s10, s10, s62\ns_add_u32 s10, s10, {WS_O}\ns_lshl_b32 s8, s{S_CT}, 1\ns_add_u32 s9, s62, {item_base(20)}\ns_mov_b32 s12, 16\ng1_ol:")
    a(f"""
    s_and_b32 s14, s8, 15
    s_lshl_b32 s15, s14, 12
    s_add_u32 s15, s15, s9
    s_cmp_ge_u32 s14, 8
    s_cselect_b32 s0, {d21 & 0xffffffff}, 0
    s_add_u32 m0, s15, s0
    s_lshl_b32 s14, s14, 17
    s_add_u32 s14, s14, s10
    buffer_load_dwordx4 v{G_L16}, {S4(SRD_WS)}, s14 offen{SC} lds
    s_add_u32 s8, s8, 1
    s_sub_u32 s12, s12, 1
    s_cmp_lg_u32 s12, 0
    s_cbranch_scc1 g1_ol
    """)
    vPa, vOut = 4, 5
    a(f"""
    s_lshl_b32 s9, s{S_MB}, 2
    s_add_u32 s9, s9, s{S_NB}
    s_lshl_b32 s9, s9, 4
    s_add_u32 s9, s9, s{S_KQ}
    s_lshl_b32 s8, s9, 13
    s_add_u32 s8, s8, {WS_PQ}
    s_lshl_b32 s14, s{S_WAVE}, 11
    s_add_u32 s8, s8, s14
    s_add_u32 s9, s8, 32768
    s_add_u32 s10, s8, 65536
    s_add_u32 s11, s8, 98304
    s_lshl_b32 s12, s{S_MB}, 7
    s_lshl_b32 s14, s{S_KQ}, 5
    s_add_u32 s12, s12, s14
    s_lshr_b32 s14, s{S_WAVE}, 1
    s_lshl_b32 s14, s14, 4
    s_add_u32 s12, s12, s14
    s_mul_i32 s12, s12, 1792
    s_mul_i32 s14, s{S_NB}, 224
    s_add_u32 s12, s12, s14
    s_and_b32 s14, s{S_WAVE}, 1
    s_mul_i32 s14, s14, 28
    s_add_u32 s12, s12, s14
    s_add_u32 s12, s12, 896
    v_and_b32 v{t0}, 15, v{V_LANE}
    v_mul_u32_u24 v{t0}, 1792, v{t0}
    v_lshrrev_b32 v{t1}, 4, v{V_LANE}
    v_mul_u32_u24 v{t1}, 56, v{t1}
    v_add_u32 v{vOut}, v{t0}, v{t1}
    s_mov_b32 s60, 0xffff0000
    """)
    D = 40
    def ploads():
        for q in range(4):
            for i in range(2):
                a(f"buffer_load_dwordx4 {R(D + 8*q + 4*i)}, v{G_L16}, {S4(SRD_WS)}, s{8+q} offen offset:{1024*i}{SC}")
    ploads()
    a("s_waitcnt vmcnt(8)")
    g1bar(a, 27)
    if Cfg.stamps: a(f"s_waitcnt lgkmcnt(0)\nv_writelane_b32 v{V_TR}, s88, 27")
    stamp(a, 8)
    a("s_mov_b32 s39, 0\ns_branch g1_pp1\ng1_pp:")
    ploads()
    a(f"g1_pp1:\ns_add_u32 s39, s39, 1\ns_waitcnt vmcnt(0)")
    a(f"v_xor_b32 v{t0}, s{S_TAGF}, v{D+3}")
    for n in range(1, 8):
        a(f"v_xor_b32 v{t1}, s{S_TAGF}, v{D+4*n+3}\nv_or_b32 v{t0}, v{t0}, v{t1}")
    a(f"""
    v_cmp_le_u32 vcc, 0x10000, v{t0}
    s_cmp_ge_u32 s39, {POLL_LIMIT}
    s_cbranch_scc1 g1_ppx
    s_cbranch_vccz g1_ppx
    s_sleep {Cfg.SLEEP}
    s_branch g1_pp
    g1_ppx:
    """)
    stamp(a, 9)
    SUM = 104
    lo = 80
    for i in range(2):
        for d in range(4):
            r = [D + 8*q + 4*i + d for q in range(4)]
            for half in range(2 if d < 3 else 1):
                for q in range(4):
                    a(f"v_lshlrev_b32 v{lo+q}, 16, v{r[q]}" if half == 0 else f"v_and_b32 v{lo+q}, s60, v{r[q]}")
                a(f"v_add_f32 v{lo}, v{lo}, v{lo+1}\nv_add_f32 v{lo+2}, v{lo+2}, v{lo+3}\nv_sub_f32 v{SUM + 7*i + 2*d + half}, v{lo}, v{lo+2}")
    for n in range(7):
        a(f"v_cvt_pk_bf16_f32 v{88+n}, v{SUM+2*n}, v{SUM+2*n+1}")
    a(f"""
    buffer_store_dwordx4 {R(88)}, v{vOut}, {S4(SRD_OUT)}, s12 offen{OSC()}
    buffer_store_dwordx3 {R(92,3)}, v{vOut}, {S4(SRD_OUT)}, s12 offen offset:16{OSC()}
    g1_done:
    """)
    stamp(a, 10)
    if Cfg.stamps: a("s_waitcnt vmcnt(0)")
    stamp(a, 11)
    stamp(a, 15, True)
    dump_stamps(a, 1)
    if Cfg.stamps:
        a(f"""
        s_lshl_b32 s14, s2, 2
        s_add_u32 s14, s14, s{S_WAVE}
        s_lshl_b32 s14, s14, 8
        s_add_u32 s14, s14, {WS_STAMP + 0x40000}
        v_lshlrev_b32 v2, 2, v{V_LANE}
        buffer_store_dword v{V_TR}, v2, {S4(SRD_WS)}, s14 offen
        """)
    a("s_endpgm")

def build():
    a = Asm()
    kernel_begin(a, K)
    a(f"""
    s_cmp_ge_u32 s2, 256
    s_cbranch_scc1 k_end
    s_load_dwordx16 s[16:31], s[0:1], 0
    s_load_dwordx4 s[32:35], s[0:1], 64
    s_load_dwordx2 s[36:37], s[0:1], 80
    v_and_b32 v{V_LANE}, 63, v0
    v_lshrrev_b32 v2, 6, v0
    s_and_b32 s{S_XCD}, s2, 7
    v_readfirstlane_b32 s15, v2
    s_lshr_b32 s{S_LOC}, s2, 3
    """)
    stamp(a, 0); stamp(a, 14, True)
    a(f"""
    s_and_b32 s6, s{S_XCD}, 3
    s_lshl_b32 s6, s6, 2
    s_and_b32 s14, s{S_LOC}, 3
    s_add_u32 s6, s6, s14
    s_lshr_b32 s7, s{S_XCD}, 2
    s_lshl_b32 s7, s7, 2
    s_bfe_u32 s13, s{S_LOC}, 0x20002
    s_add_u32 s7, s7, s13
    s_add_u32 s8, s14, s13
    s_lshl_b32 s8, s8, 1
    s_cmp_ge_u32 s8, 7
    s_cselect_b32 s14, 7, 0
    s_sub_u32 s8, s8, s14
    s_and_b32 s{S_WAVE}, s15, 3
    s_cmp_lt_u32 s15, 4
    s_cbranch_scc1 g0_entry
    """)
    if Cfg.PRIO0 == 2: a("s_setprio 1")
    g1_program(a)
    a("g0_entry:")
    if Cfg.CODEW:
        a(f"""
        s_cmp_lg_u32 s{S_WAVE}, 0
        s_cbranch_scc1 cw_done
        s_getpc_b64 s[40:41]
        cw_pc:
        s_sub_u32 s40, s40, cw_pc-{K}
        s_subb_u32 s41, s41, 0
        s_lshl_b32 s14, s{S_LOC}, 10
        v_lshlrev_b32 v2, 7, v{V_LANE}
        v_add_u32 v2, s14, v2
        v_min_u32 v2, k_end-{K}, v2
        s_mov_b64 exec, 0xff
        global_load_dword v3, v2, s[40:41]
        s_mov_b64 exec, -1
        cw_done:
        """)
    if Cfg.PRIO0 == 1: a("s_setprio 1")
    jobs2(a)
    a("s_waitcnt lgkmcnt(0)")
    srd(a, SRD_WS, P_WS, WS_SIZE)
    srd(a, SRD_OUT, P_OUT, 2048 * 1792)
    epoch_load(a)
    if Cfg.TLBW:
        a(f"s_cmp_lt_u32 s{S_KQ}, 2")
        srd_sel(a, SRD_X, P_CR, P_CI, 2048 * 4096)
        srd(a, SRD_W, P_WO, 448 * 896)
        a(f"""
        v_lshlrev_b32 v2, {Cfg.TLBS}, v{V_LANE}
        s_cmp_lg_u32 s{S_WAVE}, 0
        s_cbranch_scc1 tlb_done
        buffer_load_dword v3, v2, {S4(SRD_WS)}, 0 offen sc1
        buffer_load_dword v3, v2, {S4(SRD_X)}, 0 offen
        buffer_load_dword v3, v2, {S4(SRD_OUT)}, 0 offen sc1
        buffer_load_dword v3, v2, {S4(SRD_W)}, 0 offen
        tlb_done:
        """)
    g0_program(a)
    a("k_end:\ns_endpgm")
    txt = a.text()
    return file_text_single(txt)

def file_text_single(body):
    h = HEADER_DOC + f"; @launch grid=(256,1,1) block=(512,1,1) lds={LDS_TOTAL}\n"
    return h + '.amdgcn_target "amdgcn-amd-amdhsa--gfx950"\n.text\n' + body + '.section .rodata,"a"\n' + descriptor(K, 256)

if __name__ == "__main__":
    out = sys.argv[1] if len(sys.argv) > 1 else "k3.s"
    Cfg.stamps = "stamps" in sys.argv
    for arg in sys.argv[2:]:
        if "=" in arg:
            k, v = arg.split("="); setattr(Cfg, k, int(v))
    open(out, "w").write(build())
```

```python
import sys, math, struct
from asmlib import *

NAME = "concat_heads__sliding_block__spectral_fnet__prompt"
K = NAME + "_kernel"

WS_F1, WS_F2, WS_F3, WS_EPOCH = 0x0, 0x20000, 0x40000, 0x60000
WS_QKV = 0x100000
WS_AT = 0x800000
AT_NB = 64 * 7168
WS_O = 0xC00000
WS_PQ = 0xE00000
WS_STAMP = 0x1700000
WS_SIZE = 0x1800000

C2 = (28 ** -0.5) * math.log2(math.e)
def f32bits(x):
    return struct.unpack("<I", struct.pack("<f", x))[0]
NEGBIG = f32bits(-1e30)

S_WAVE, S_XCD, S_LOC = 3, 4, 5
P_AX, P_WQKV, P_WO, P_BX, P_CR, P_CI, P_DR, P_DI, P_OUT, P_DBG, P_WS = 16, 18, 20, 22, 24, 26, 28, 30, 32, 34, 36
S_TAG = 38
S_TAGF = 35
SRD_X, SRD_W, SRD_WS, SRD_OUT = 40, 44, 48, 52
S_ST = 64
V_LANE = 1
SC = " sc1"
POLL_LIMIT = 20000

SLOT = 32768
LDS_TOTAL = 5 * SLOT
def item_base(n): return ((n + 4) % 5) * SLOT
FS = 4
SRD_C = 56

class Cfg:
    stamps = False
    NA_A = 8
    NA_B = 8
    KVL = 3
    LA = 12
    LAR = 0
    LA1 = 12
    LA0 = 10
    NXPRE = 2
    O_POLL = 15
    SLEEP = 4
    NT_TOUCH = 0
    NT_P1 = 0
    NT_WO = 0
    TPOS_A = 77
    RPG = 1
    NOCOMP = 0
    NOLOAD = 0
    NA = None
    SWAP = 0
    NTX = 2
    WOT = 1
    ALLNT = 0
    NOROT = 0
    TCH = 1
    HOLD = 0
    BPPOS = 12
    CODEW = 0
    DBGOUT = -1
    LAB1 = 12
    MORD = 0
    AGPR = 0
    OUTSC = 0
    PRIO0 = 0
    TLBW = 1
    TLB2 = 0
    TLBS = 20
    FDEL = 2
    LADDER = 1
    A1LATE = 0
    XA_AT = 7
    NOBP = 0
    LASTNT = 0
    KVNT = 0
def NAof(typ): return Cfg.NA_A if typ == 0 else Cfg.NA_B
SG_N1, SG_N2, SG_D, SG_SL, SG_K, SG_V = 24, 25, 26, 27, 28, 29

def OSC(): return ['', ' sc1', ' nt', ' sc0 sc1'][Cfg.OUTSC]
def srd(a, d, p, nbytes):
    a(f"s_mov_b32 s{d}, s{p}\ns_and_b32 s{d+1}, s{p+1}, 0xffff\ns_mov_b32 s{d+2}, {nbytes}\ns_mov_b32 s{d+3}, 0x20000")
def srd_sel(a, d, p0, p1, nbytes):
    a(f"""s_cselect_b32 s{d}, s{p0}, s{p1}
    s_cselect_b32 s{d+1}, s{p0+1}, s{p1+1}
    s_and_b32 s{d+1}, s{d+1}, 0xffff
    s_mov_b32 s{d+2}, {nbytes}
    s_mov_b32 s{d+3}, 0x20000""")
def R(b, n=4):
    return f"v[{b}:{b+n-1}]"
def S4(d):
    return f"s[{d}:{d+3}]"

def interleave(a, mfmas, fillers):
    n, m = len(mfmas), len(fillers)
    k = 0
    for i, mf in enumerate(mfmas):
        a(mf)
        want = min(m, ((i + 1) * m + n - 1) // n)
        while k < want:
            a(fillers[k]); k += 1
    while k < m:
        a(fillers[k]); k += 1

def stamp(a, i, cyc=False):
    if Cfg.stamps:
        a(f"{'s_memtime' if cyc else 's_memrealtime'} s[{S_ST+2*i}:{S_ST+2*i+1}]")
def dump_stamps(a, grp, n=16):
    if not Cfg.stamps: return
    a(f"""
    s_waitcnt lgkmcnt(0)
    s_lshl_b32 s14, s2, 3
    s_add_u32 s14, s14, s{S_WAVE}
    s_add_u32 s14, s14, {4*grp}
    s_lshl_b32 s14, s14, 6
    s_add_u32 s14, s14, {WS_STAMP}
    v_mov_b32 v2, 0
    """)
    for i in range(n):
        a(f"v_mov_b32 v3, s{S_ST+2*i}\nbuffer_store_dword v3, v2, {S4(SRD_WS)}, s14 offen offset:{4*i}")

class VM:
    def __init__(self, a): self.a = a; self.q = []
    def op(self, tag, text):
        if Cfg.NOLOAD and " lds" in text:
            text = "\n".join(l for l in text.split("\n") if " lds" not in l)
            if tag in ("pk", "po"): raise Exception
            self.a(text); return
        self.a(text); self.q.append(tag)
    def wait(self, tag, extra=""):
        idx = max(i for i, t in enumerate(self.q) if t == tag) if tag in self.q else -1
        n = len(self.q) - 1 - idx
        assert n <= 63, n
        self.a(f"s_waitcnt vmcnt({n}){extra}")
        self.q = self.q[idx + 1:]
    def drained(self): self.q = []

def poll_blocking(a, vaddr, soff, vt, name):
    l = a.newlabel(name)
    a(f"""
    s_mov_b32 s39, 0
    {l}:
    buffer_load_dword v{vt}, v{vaddr}, {S4(SRD_WS)}, s{soff} offen sc1
    s_add_u32 s39, s39, 1
    s_waitcnt vmcnt(0)
    v_cmp_ne_u32 vcc, s{S_TAG}, v{vt}
    s_cmp_ge_u32 s39, {POLL_LIMIT}
    s_cbranch_scc1 {l}_x
    s_cbranch_vccz {l}_x
    s_sleep {Cfg.SLEEP}
    s_branch {l}
    {l}_x:
    """)

def flag_store(a, sidx, base, vt0, vt1):
    a(f"""
    s_lshl_b32 s14, s{sidx}, {FS}
    s_add_u32 s14, s14, {base}
    v_mov_b32 v{vt0}, 0
    v_mov_b32 v{vt1}, s{S_TAG}
    s_mov_b64 exec, 1
    buffer_store_dword v{vt1}, v{vt0}, {S4(SRD_WS)}, s14 offen sc1
    s_mov_b64 exec, -1
    """)

def xfrag_addrs(a, vX0, vX1, t0, t1, sbase):
    a(f"""
    v_and_b32 v{t0}, 15, v{V_LANE}
    v_lshrrev_b32 v{t1}, 1, v{t0}
    v_lshrrev_b32 v{vX0}, 4, v{V_LANE}
    v_xor_b32 v{vX0}, v{vX0}, v{t1}
    v_lshlrev_b32 v{vX0}, 4, v{vX0}
    v_lshl_add_u32 v{vX0}, v{t0}, 7, v{vX0}
    v_add_u32 v{vX0}, s{sbase}, v{vX0}
    v_xor_b32 v{vX1}, 64, v{vX0}
    """)

def frontload(a, mfmas, fillers):
    k = 0
    for mf in mfmas:
        a(mf)
        for _ in range(Cfg.RPG):
            if k < len(fillers):
                a(fillers[k]); k += 1
    while k < len(fillers):
        a(fillers[k]); k += 1

import re as _re
def _rng(tok):
    m = _re.match(r"v\[(\d+):(\d+)\]", tok.strip())
    return set(range(int(m.group(1)), int(m.group(2)) + 1))
def ladder_step(a, mf, cur_reads, nxt_reads, extra, front=False):
    dst = [_rng(r.split(None, 1)[1].split(",")[0]) for r in cur_reads]
    n, m = len(mf), len(nxt_reads)
    issued, done, ke = 0, -1, 0
    for i, ins in enumerate(mf):
        ops = ins.split(None, 1)[1].split(", ")
        use = _rng(ops[1]) | _rng(ops[2])
        q = max(j for j, d in enumerate(dst) if d & use)
        if q > done:
            a(f"s_waitcnt lgkmcnt({min(15, len(cur_reads) - 1 - q + issued)})")
            done = q
        a(ins)
        want = min(m, i + 1) if front else min(m, ((i + 1) * m + n - 1) // n)
        if issued < want:
            a(nxt_reads[issued]); issued += 1
        elif ke < len(extra):
            a(extra[ke]); ke += 1
    while issued < m:
        a(nxt_reads[issued]); issued += 1
    while ke < len(extra):
        a(extra[ke]); ke += 1

def gemm_loop(a, name, n_iter, STAGE, NSLOT, reads, mfmas, addr_regs, sSlot, sCnt, sD, strict=False):
    l = a.newlabel(name)
    r0, r1, rs = addr_regs
    a(f"s_mov_b32 s{sCnt}, {n_iter}\n{l}:")
    pre = [f"s_add_u32 s{sSlot}, s{sSlot}, 1\ns_cmp_eq_u32 s{sSlot}, {NSLOT}",
           f"s_cselect_b32 s{sD}, {-(NSLOT-1)}, 1\ns_cselect_b32 s{sSlot}, 0, s{sSlot}", f"s_mul_i32 s{sD}, s{sD}, {STAGE}"]
    add = lambda rr: [f"v_add_u32 v{r}, s{sD}, v{r}" for r in rr]
    ladder_step(a, mfmas(0), reads(0, 0), reads(1, 1), pre + add(r0), front=strict)
    for f in add(rs): a(f)
    a("s_waitcnt lgkmcnt(0)\ns_barrier" if strict else "s_barrier")
    ladder_step(a, mfmas(1), reads(1, 1), [] if strict else reads(0, 0), add(r1) + [f"s_sub_u32 s{sCnt}, s{sCnt}, 1\ns_cmp_lg_u32 s{sCnt}, 0"])
    a(f"s_cbranch_scc1 {l}")

def g0_a1(a):
    STAGE = 37888
    vX0, vX1, vWa = 14, 15, 16
    t0, t1 = 17, 18
    FR, ACC = 24, 104
    a(f"s_lshr_b32 s14, s{S_WAVE}, 1\ns_lshl_b32 s14, s14, 13")
    xfrag_addrs(a, vX0, vX1, t0, t1, 14)
    a(f"""
    s_and_b32 s14, s{S_WAVE}, 1
    s_mul_i32 s14, s14, 168
    s_add_u32 s14, s14, 16384
    v_lshrrev_b32 v{t0}, 2, v{V_LANE}
    v_mul_u32_u24 v{t0}, 672, v{t0}
    v_and_b32 v{t1}, 3, v{V_LANE}
    v_lshl_add_u32 v{t0}, v{t1}, 3, v{t0}
    v_add_u32 v{vWa}, s14, v{t0}
    """)
    for i in range(96):
        a(f"v_mov_b32 v{ACC+i}, 0")
    def reads(ks, buf):
        b = FR + 40 * buf
        x = [f"ds_read_b128 {R(b + 4*T)}, v{vX1 if ks else vX0} offset:{2048*T}" for T in range(4)]
        w = []
        for ct in range(6):
            sg, pi = ct // 2, ct % 2
            for j in range(2):
                w.append(f"ds_read_b64_tr_b16 {R(b + 16 + 4*ct + 2*j, 2)}, v{vWa} offset:{(32*ks + j)*336 + (7*sg + 4*pi)*8}")
        return w[:2] + x + w[2:]
    def mfmas(buf):
        b = FR + 40 * buf
        return [f"v_mfma_f32_16x16x32_bf16 {R(ACC + (ct*4+T)*4)}, {R(b + 16 + 4*ct)}, {R(b + 4*T)}, {R(ACC + (ct*4+T)*4)}"
                for ct in range(6) for T in range(4)]
    a("s_mov_b32 s9, 0\ns_barrier")
    stamp(a, 1)
    for f in reads(0, 0): a(f)
    gemm_loop(a, "a1", 7, STAGE, 4, reads, mfmas, ([vX0], [vX1], [vWa]), 9, 10, 11)
    stamp(a, 2)
    a(f"""
    s_waitcnt lgkmcnt(0)
    s_mul_i32 s9, s7, 6
    s_and_b32 s14, s{S_WAVE}, 1
    s_mul_i32 s14, s14, 3
    s_add_u32 s9, s9, s14
    s_lshl_b32 s10, s6, 3
    s_lshr_b32 s14, s{S_WAVE}, 1
    s_lshl_b32 s14, s14, 2
    s_add_u32 s10, s10, s14
    s_lshl_b32 s10, s10, 10
    s_add_u32 s10, s10, {WS_QKV}
    v_lshlrev_b32 v{t0}, 4, v{V_LANE}
    s_mov_b32 s56, 0
    s_mov_b32 s57, 0xffff0000
    """)
    for sg in range(3):
        a(f"""
        s_add_u32 s11, s9, {sg}
        s_lshl_b32 s12, s11, 17
        s_add_u32 s12, s12, s10
        s_cmp_lt_u32 s11, 16
        s_cselect_b32 s60, {f32bits(C2)}, 1.0
        s_cselect_b32 s61, {f32bits(C2)}, 1.0
        s_sub_u32 s14, s11, 16
        s_cmp_lt_u32 s14, 16
        s_cselect_b32 s14, 0, 0x3f80
        v_mov_b32 v{t1}, s14
        """)
        for T in range(4):
            d0 = ACC + ((2*sg)*4 + T)*4
            d1 = ACC + ((2*sg+1)*4 + T)*4
            o = FR + 4*((sg*4 + T) % 8)
            for d in (d0, d0+2, d1, d1+2):
                a(f"v_pk_mul_f32 {R(d,2)}, {R(d,2)}, s[60:61]")
            a(f"""
            v_cvt_pk_bf16_f32 v{o}, v{d0}, v{d0+1}
            v_cvt_pk_bf16_f32 v{o+1}, v{d0+2}, v{d0+3}
            v_cvt_pk_bf16_f32 v{o+2}, v{d1}, v{d1+1}
            v_cvt_pk_bf16_f32 v{o+3}, v{d1+2}, v{d1+3}
            v_cndmask_b32 v{o+2}, v{o+2}, v{t1}, s[56:57]
            v_cndmask_b32 v{o+3}, v{o+3}, 0, s[56:57]
            buffer_store_dwordx4 {R(o)}, v{t0}, {S4(SRD_WS)}, s12 offen offset:{1024*T}{SC}
            """)
            if sg*4 + T + 1 == Cfg.BPPOS: a("s_barrier")
    a(f"""
    s_lshl_b32 s9, s7, 4
    s_add_u32 s9, s9, s6
    s_lshl_b32 s9, s9, 2
    s_add_u32 s9, s9, s{S_WAVE}
    """)

B_X0, B_X1, B_E0, B_E1 = 14, 15, 16, 21
B_FR, B_ACC = 24, 104

def g0_bs(a):
    STAGE = SLOT
    t0, t1 = 17, 18
    FR, ACC = B_FR, B_ACC
    a(f"s_lshl_b32 s14, s{S_WAVE}, 12\ns_add_u32 s14, s14, {2*SLOT}")
    xfrag_addrs(a, B_X0, B_X1, t0, t1, 14)
    a(f"""
    v_subrev_u32 v{B_E0}, s14, v{B_X0}
    v_add_u32 v{B_E0}, {2*SLOT + 16384}, v{B_E0}
    v_xor_b32 v{B_E1}, 64, v{B_E0}
    """)
    for i in range(56):
        a(f"v_mov_b32 v{ACC+i}, 0")
    def reads(ks, buf):
        b = FR + 36 * buf
        f = [f"ds_read_b128 {R(b + 4*T)}, v{B_X1 if ks else B_X0} offset:{2048*T}" for T in range(2)]
        f += [f"ds_read_b128 {R(b + 8 + 4*t)}, v{B_E1 if ks else B_E0} offset:{2048*t}" for t in range(7)]
        return f
    def mfmas(buf):
        b = FR + 36 * buf
        return [f"v_mfma_f32_16x16x32_bf16 {R(ACC + (t*2+T)*4)}, {R(b + 4*T)}, {R(b + 8 + 4*t)}, {R(ACC + (t*2+T)*4)}"
                for t in range(7) for T in range(2)]
    a("s_mov_b32 s9, 2\ns_barrier")
    stamp(a, 1)
    for f in reads(0, 0): a(f)
    gemm_loop(a, "bs", 7, STAGE, 5, reads, mfmas, ([B_X0, B_E0], [B_X1, B_E1], []), 9, 10, 11)
    stamp(a, 2)
    a(f"""
    s_waitcnt lgkmcnt(0)
    s_mul_i32 s9, s7, {AT_NB}
    s_lshl_b32 s10, s6, 2
    s_add_u32 s10, s10, s{S_WAVE}
    s_mul_i32 s10, s10, 7168
    s_add_u32 s9, s9, s10
    s_add_u32 s9, s9, {WS_AT}
    s_add_u32 s10, s9, 4096
    v_lshlrev_b32 v{t0}, 4, v{V_LANE}
    """)
    for t in range(7):
        d0 = ACC + (t*2)*4
        d1 = d0 + 4
        o = FR + 4*t
        a(f"""
        v_cvt_pk_bf16_f32 v{o}, v{d0}, v{d0+1}
        v_cvt_pk_bf16_f32 v{o+1}, v{d0+2}, v{d0+3}
        v_cvt_pk_bf16_f32 v{o+2}, v{d1}, v{d1+1}
        v_cvt_pk_bf16_f32 v{o+3}, v{d1+2}, v{d1+3}
        buffer_store_dwordx4 {R(o)}, v{t0}, {S4(SRD_WS)}, s{9 if t < 4 else 10} offen offset:{1024*(t%4)}{SC}
        """)
    a(f"""
    s_lshl_b32 s9, s7, 4
    s_add_u32 s9, s9, s6
    s_add_u32 s9, s9, 128
    s_lshl_b32 s9, s9, 2
    s_add_u32 s9, s9, s{S_WAVE}
    """)

S_MB, S_NB, S_KQ, S_H, S_J, S_RB64, S_CT = 96, 97, 98, 99, 100, 101, 63

def jobs2(a):
    a(f"""
    s_lshr_b32 s{S_KQ}, s{S_XCD}, 1
    s_and_b32 s{S_MB}, s{S_XCD}, 1
    s_lshl_b32 s{S_MB}, s{S_MB}, 3
    s_and_b32 s14, s{S_LOC}, 7
    s_add_u32 s{S_MB}, s{S_MB}, s14
    s_lshr_b32 s{S_NB}, s{S_LOC}, 3
    s_lshl_b32 s{S_H}, s{S_XCD}, 1
    s_lshr_b32 s14, s{S_LOC}, 4
    s_add_u32 s{S_H}, s{S_H}, s14
    s_and_b32 s{S_J}, s{S_LOC}, 15
    s_mul_i32 s14, s{S_LOC}, 37
    s_lshr_b32 s14, s14, 8
    s_mul_i32 s15, s14, 7
    s_sub_u32 s{S_CT}, s{S_LOC}, s15
    s_min_u32 s14, s14, 3
    s_lshl_b32 s{S_RB64}, s{S_XCD}, 2
    s_add_u32 s{S_RB64}, s{S_RB64}, s14
    """)

A_Q = 160
A_CM0, A_CM8 = 168, 184
A_NM = 200
A_O = 216
A_S0, A_S1 = 232, 60
A_KF = 76
A_P = 248
A_VF, A_VF2 = 40, 48
A_KA, A_VA0, A_VA1, A_QA = 96, 97, 98, 99
A_M0, A_M1, A_T0 = 56, 57, 58
SA_O, SA_F, SA_MASK, SA_ROLE, SA_Q = 16, 17, 18, 90, 23

def attn_setup(a):
    t0, t1 = 17, 18
    a(f"""
    v_and_b32 v{t0}, 31, v{V_LANE}
    v_lshrrev_b32 v{t1}, 5, v{V_LANE}
    v_lshlrev_b32 v{t1}, 2, v{t1}
    v_sub_u32 v{t0}, v{t0}, v{t1}
    v_mov_b32 v{t1}, {NEGBIG}
    """)
    for i in range(16):
        kk = 8*(i//4) + i % 4
        a(f"""
        v_cmp_gt_i32 vcc, {kk}, v{t0}
        s_nop 1
        v_cndmask_b32 v{A_CM0+i}, v{t1}, 0, vcc
        v_cndmask_b32 v{A_CM8+i}, 0, v{t1}, vcc
        """)
    a(f"""
    v_bfe_u32 v{t0}, v{V_LANE}, 4, 1
    v_lshrrev_b32 v{t1}, 5, v{V_LANE}
    v_lshlrev_b32 v{t0}, 10, v{t0}
    v_lshl_add_u32 v{t0}, v{t1}, 8, v{t0}
    v_and_b32 v{t1}, 15, v{V_LANE}
    v_lshl_add_u32 v{A_QA}, v{t1}, 4, v{t0}
    s_lshl_b32 s14, s{S_WAVE}, 11
    s_add_u32 s15, s14, s{SG_K}
    v_add_u32 v{A_KA}, s15, v{A_QA}
    v_bfe_u32 v{t0}, v{V_LANE}, 4, 1
    v_bfe_u32 v{t1}, v{V_LANE}, 1, 1
    v_lshl_add_u32 v{t0}, v{t0}, 1, v{t1}
    v_lshrrev_b32 v{t1}, 5, v{V_LANE}
    v_add_u32 v{t1}, v{t1}, v{t0}
    v_and_b32 v{t1}, 3, v{t1}
    v_lshlrev_b32 v{t1}, 6, v{t1}
    v_lshl_add_u32 v{t0}, v{t0}, 8, v{t1}
    v_bfe_u32 v{t1}, v{V_LANE}, 2, 2
    v_lshl_add_u32 v{t0}, v{t1}, 4, v{t0}
    v_and_b32 v{t1}, 1, v{V_LANE}
    v_lshl_add_u32 v{t0}, v{t1}, 3, v{t0}
    s_add_u32 s15, s14, s{SG_V}
    v_add_u32 v{A_VA0}, s15, v{t0}
    v_xor_b32 v{A_VA1}, 128, v{A_VA0}
    s_lshl_b32 s15, s{S_H}, 17
    s_add_u32 s14, s14, s15
    s_lshl_b32 s15, s{S_J}, 13
    s_add_u32 s14, s14, s15
    s_add_u32 s{SA_O}, s14, {WS_O}
    s_add_u32 s{SA_Q}, s14, {WS_QKV}
    s_lshl_b32 s{SA_F}, s{S_J}, 1
    s_lshr_b32 s14, s{S_WAVE}, 1
    s_add_u32 s{SA_F}, s{SA_F}, s14
    s_lshl_b32 s{SA_F}, s{SA_F}, 4
    s_add_u32 s{SA_F}, s{SA_F}, s{S_H}
    s_lshl_b32 s{SA_F}, s{SA_F}, 1
    s_and_b32 s14, s{S_WAVE}, 1
    s_add_u32 s{SA_F}, s{SA_F}, s14
    s_mov_b32 s{SA_MASK}, 0
    s_mov_b32 s{SA_MASK+1}, -1
    """)

def qload_ops():
    return [f"buffer_load_dwordx4 {R(A_Q)}, v{A_QA}, {S4(SRD_WS)}, s{SA_Q} offen{SC}",
            f"buffer_load_dwordx4 {R(A_Q+4)}, v{A_QA}, {S4(SRD_WS)}, s{SA_Q} offen offset:512{SC}"]

def g0_attention(a):
    S = [A_S0, A_S1]
    def kread(t):
        b = A_KF + 8 * (t % 2)
        return [f"ds_read_b128 {R(b + 4*m)}, v{A_KA} offset:{2048*t + 512*m}" for m in range(2)]
    def vread(t):
        b = A_VF if t % 2 == 0 else A_VF2
        return [f"ds_read_b64_tr_b16 {R(b + 4*m + 2*jj, 2)}, v{A_VA1 if jj else A_VA0} offset:{2048*t + 1024*m}" for m in range(2) for jj in range(2)]
    def qk(t, c):
        b = A_KF + 8 * (t % 2)
        s = R(S[t % 2], 16)
        return [f"v_mfma_f32_32x32x16_bf16 {s}, {R(b)}, {R(A_Q)}, {c}",
                f"v_mfma_f32_32x32x16_bf16 {s}, {R(b+4)}, {R(A_Q+4)}, {s}"]
    for f in kread(0) + kread(1): a(f)
    a(f"v_mov_b32 v{A_M0}, {NEGBIG}\nv_mov_b32 v{A_M1}, {NEGBIG}")
    a("s_waitcnt lgkmcnt(2)")
    def c1(t): return R(A_CM0, 16) if t == 0 else (R(A_CM8, 16) if t == 8 else "0")
    def maxes(t):
        s = S[t % 2]
        return [f"v_max3_f32 v{A_M0 if i % 2 == 0 else A_M1}, v{s+2*i}, v{s+2*i+1}, v{A_M0 if i % 2 == 0 else A_M1}" for i in range(8)]
    for f in qk(0, c1(0)): a(f)
    for t in range(9):
        if t + 1 <= 8:
            a("s_waitcnt lgkmcnt(0)")
            for f in qk(t + 1, c1(t + 1)): a(f)
        if t + 2 <= 8:
            for f in kread(t + 2): a(f)
        if t == 0: a("s_nop 7")
        if t == 8:
            for f in kread(0) + kread(1): a(f)
        for f in maxes(t): a(f)
    for f in vread(0): a(f)
    a(f"""
    v_max_f32 v{A_M0}, v{A_M0}, v{A_M1}
    v_mov_b32 v{A_M1}, v{A_M0}
    s_nop 1
    v_permlane32_swap_b32 v{A_M0}, v{A_M1}
    v_max_f32 v{A_M0}, v{A_M0}, v{A_M1}
    """)
    for i in range(16):
        a(f"v_sub_f32 v{A_CM0+i}, v{A_CM0+i}, v{A_M0}")
    def c2(t): return R(A_CM0, 16) if t == 0 else (R(A_CM8, 16) if t == 8 else R(A_NM, 16))
    a("s_waitcnt lgkmcnt(0)\ns_nop 0")
    q0 = qk(0, c2(0))
    a(q0[0])
    for i in range(8):
        a(f"v_sub_f32 v{A_NM+i}, 0, v{A_M0}")
    a(q0[1])
    for i in range(8, 16):
        a(f"v_sub_f32 v{A_NM+i}, 0, v{A_M0}")
    for i in range(16):
        a(f"v_sub_f32 v{A_CM8+i}, v{A_CM8+i}, v{A_M0}")
    O = R(A_O, 16)
    def pv(t, m):
        vb = A_VF if t % 2 == 0 else A_VF2
        c = "0" if (t == 0 and m == 0) else O
        return f"v_mfma_f32_32x32x16_bf16 {O}, {R(vb+4*m)}, {R(A_P+4*m)}, {c}"
    for t in range(9):
        s = S[t % 2]
        ex = [f"v_exp_f32 v{s+i}, v{s+i}" for i in range(16)]
        cv = [f"v_cvt_pk_bf16_f32 v{A_P+i}, v{s+2*i}, v{s+2*i+1}" for i in range(8)]
        nq = qk(t + 1, c2(t + 1)) if t + 1 <= 8 else [None, None]
        kr = kread(t + 2) if t + 2 <= 8 else []
        vr = vread(t + 1) if t + 1 <= 8 else []
        a(ex[0]); a(ex[1])
        if t > 0: a(pv(t - 1, 1))
        a(ex[2]); a(ex[3]); a(ex[4]); a(ex[5])
        a("s_waitcnt lgkmcnt(0)")
        if nq[0]: a(nq[0])
        a(ex[6]); a(ex[7]); a(ex[8])
        for f in cv[0:4]: a(f)
        if nq[1]: a(nq[1])
        for f in vr: a(f)
        a(ex[9]); a(ex[10]); a(ex[11])
        a(pv(t, 0))
        for f in kr: a(f)
        a(ex[12]); a(ex[13]); a(ex[14]); a(ex[15])
        a(cv[4]); a(cv[5]); a(cv[6]); a(cv[7])
    t0 = A_T0
    a(f"""
    v_lshrrev_b32 v{t0}, 5, v{V_LANE}
    v_lshl_add_u32 v{t0}, v{t0}, 8, v{A_QA}
    """)
    a(pv(8, 1))
    a(f"""
    s_nop 11
    v_mov_b32 v{A_M0}, v{A_O+12}
    v_mov_b32 v{A_M1}, v{A_O+12}
    s_nop 1
    v_permlane32_swap_b32 v{A_M0}, v{A_M1}
    v_rcp_f32 v{A_M1}, v{A_M1}
    s_nop 0
    """)
    for i in range(16):
        a(f"v_mul_f32 v{A_O+i}, v{A_O+i}, v{A_M1}")
    for i in range(8):
        a(f"v_cvt_pk_bf16_f32 v{A_P+i}, v{A_O+2*i}, v{A_O+2*i+1}")
    a(f"""
    v_cndmask_b32 v{A_P+6}, v{A_P+6}, 0, s[{SA_MASK}:{SA_MASK+1}]
    v_cndmask_b32 v{A_P+7}, v{A_P+7}, 0, s[{SA_MASK}:{SA_MASK+1}]
    buffer_store_dwordx4 {R(A_P)}, v{t0}, {S4(SRD_WS)}, s{SA_O} offen{SC}
    buffer_store_dwordx4 {R(A_P+4)}, v{t0}, {S4(SRD_WS)}, s{SA_O} offen offset:256{SC}
    """)

def ab_poll_addr(a, v, sreg, partner=False):
    _ab_poll_addr(a, v, sreg)
    if partner:
        a(f"v_lshrrev_b32 v17, 5, v{V_LANE}\nv_lshl_add_u32 v{v}, v17, {FS + 7}, v{v}")

def _ab_poll_addr(a, v, sreg):
    a(f"""
    s_lshr_b32 s15, s{S_KQ}, 1
    s_lshl_b32 s15, s15, 2
    s_add_u32 s15, s15, s{S_NB}
    s_lshl_b32 s15, s15, 4
    s_and_b32 s14, s{S_KQ}, 1
    s_lshl_b32 s14, s14, 3
    s_add_u32 s15, s15, s14
    s_add_u32 s15, s15, 128
    s_lshl_b32 s{sreg}, s15, {FS + 2}
    v_and_b32 v{v}, 31, v{V_LANE}
    v_lshlrev_b32 v{v}, {FS}, v{v}
    """)

def g0_program(a):
    FR, ACC = B_FR, B_ACC
    t0, t1 = 17, 18
    a(f"s_cmp_ge_u32 s{S_LOC}, 16\ns_cbranch_scc1 g0_p1b")
    na = NAof(0)
    a(f"""
    s_mov_b32 s{SG_N1}, {na - 1}
    s_mov_b32 s{SG_N2}, {16 - na - 1 - Cfg.FDEL}
    s_mov_b32 s{SG_D}, {(item_base(na + 2) - item_base(na)) & 0xffffffff}
    s_mov_b32 s{SG_SL}, {(na + 2 + 4) % 5}
    s_mov_b32 s{SG_K}, {item_base(na)}
    s_mov_b32 s{SG_V}, {item_base(na + 1)}
    """)
    g0_a1(a)
    a("s_branch g0_p1done\ng0_p1b:")
    na = NAof(1)
    a(f"""
    s_mov_b32 s{SG_N1}, {na - 1}
    s_mov_b32 s{SG_N2}, {16 - na - 1 - Cfg.FDEL}
    s_mov_b32 s{SG_D}, {(item_base(na + 2) - item_base(na)) & 0xffffffff}
    s_mov_b32 s{SG_SL}, {(na + 2 + 4) % 5}
    s_mov_b32 s{SG_K}, {item_base(na)}
    s_mov_b32 s{SG_V}, {item_base(na + 1)}
    """)
    g0_bs(a)
    a("g0_p1done:")
    stamp(a, 3)
    a(f"s_lshl_b32 s14, s{S_WAVE}, 12\ns_add_u32 s14, s14, {item_base(0)}")
    xfrag_addrs(a, B_X0, B_X1, t0, t1, 14)
    a(f"""
    v_lshlrev_b32 v{B_E0}, 4, v{V_LANE}
    v_add_u32 v{B_E0}, {item_base(0) + 16384}, v{B_E0}
    """)
    for i in range(56):
        a(f"v_mov_b32 v{ACC+i}, 0")
    a("s_waitcnt vmcnt(0)")
    flag_store(a, 9, WS_F1, t0, t1)
    stamp(a, 4)
    a(f"s_cmp_lt_u32 s{S_LOC}, 16\ns_cbranch_scc1 g0_t1\ns_barrier\ng0_t1:")
    attn_setup(a)
    a(f"s_cmp_lt_u32 s{S_LOC}, 16\ns_cbranch_scc1 g0_t2")
    a(f"s_cmp_lg_u32 s{S_WAVE}, 0\ns_cbranch_scc1 g0_nopoll")
    ab_poll_addr(a, t0, 56)
    poll_blocking(a, t0, 56, t1, "pab")
    a("g0_nopoll:\ns_barrier\ng0_t2:")
    def reads(ks, buf):
        b = FR + 36 * buf
        f = [f"ds_read_b128 {R(b + 4*T)}, v{B_X1 if ks else B_X0} offset:{2048*T}" for T in range(2)]
        f += [f"ds_read_b128 {R(b + 8 + 4*t)}, v{B_E0} offset:{7168*ks + 1024*t}" for t in range(7)]
        return f
    def mfmas(buf):
        b = FR + 36 * buf
        order = [(t, T) for t in range(7) for T in range(2)]
        if Cfg.MORD == 1: order = [(t, T) for T in range(2) for t in range(7)]
        if Cfg.MORD == 2: order = [(t, (T if t % 2 == 0 else 1 - T)) for t in range(7) for T in range(2)]
        return [f"v_mfma_f32_16x16x32_bf16 {R(ACC + (t*2+T)*4)}, {R(b + 8 + 4*t)}, {R(b + 4*T)}, {R(ACC + (t*2+T)*4)}"
                for t, T in order]
    AR = [B_X0, B_X1, B_E0]
    AR3 = ([B_X0], [B_X1], [B_E0])
    a("s_mov_b32 s8, 4\ns_barrier")
    stamp(a, 5)
    for f in reads(0, 0): a(f)
    gemm_loop(a, "bb1", f"s{SG_N1}", SLOT, 5, reads, mfmas, AR3, 8, 10, 11)
    for f in qload_ops(): a(f)
    gemm_loop(a, "bb1b", 1, SLOT, 5, reads, mfmas, AR3, 8, 10, 11, strict=True)
    stamp(a, 6)
    for r in AR:
        a(f"v_add_u32 v{r}, s{SG_D}, v{r}")
    a(f"s_mov_b32 s8, s{SG_SL}\ns_waitcnt vmcnt(0)")
    g0_attention(a)
    stamp(a, 7)
    a("s_barrier")
    for f in reads(0, 0): a(f)
    gemm_loop(a, "bb2", Cfg.FDEL, SLOT, 5, reads, mfmas, AR3, 8, 10, 11)
    a("s_waitcnt vmcnt(0)")
    flag_store(a, SA_F, WS_F2, t0, t1)
    gemm_loop(a, "bb3", f"s{SG_N2}", SLOT, 5, reads, mfmas, AR3, 8, 10, 11)
    ladder_step(a, mfmas(0), reads(0, 0), reads(1, 1), [])
    ladder_step(a, mfmas(1), reads(1, 1), [], [])
    stamp(a, 8)
    a(f"""
    s_waitcnt lgkmcnt(0)
    s_lshl_b32 s9, s{S_MB}, 2
    s_add_u32 s9, s9, s{S_NB}
    s_lshl_b32 s9, s9, 4
    s_lshl_b32 s10, s{S_KQ}, 2
    s_add_u32 s10, s10, s9
    s_add_u32 s10, s10, s{S_WAVE}
    s_lshl_b32 s10, s10, 13
    s_add_u32 s10, s10, {WS_PQ}
    s_add_u32 s11, s10, 4096
    v_lshlrev_b32 v{t0}, 4, v{V_LANE}
    """)
    PK = 24
    for T in range(2):
        def val(v): return ACC + ((v // 4)*2 + T)*4 + v % 4
        for i in range(4):
            o = PK + 4*(T*4 + i)
            for d in range(3):
                a(f"v_cvt_pk_bf16_f32 v{o+d}, v{val(7*i+2*d)}, v{val(7*i+2*d+1)}")
            a(f"v_cvt_pk_bf16_f32 v{o+3}, v{val(7*i+6)}, s{S_TAGF}")
            a(f"buffer_store_dwordx4 {R(o)}, v{t0}, {S4(SRD_WS)}, s{10+T} offen offset:{1024*i}{SC}")
    a("s_barrier")
    WF = 60
    DA = 104
    WA = 4
    OA = 12
    a(f"""
    v_lshrrev_b32 v{WA}, 4, v{V_LANE}
    v_lshlrev_b32 v{WA}, 3, v{WA}
    v_bfe_u32 v{t1}, v{V_LANE}, 2, 2
    v_add_u32 v{WA}, v{WA}, v{t1}
    v_lshlrev_b32 v{WA}, 7, v{WA}
    v_bfe_u32 v{t1}, v{V_LANE}, 3, 2
    v_lshl_add_u32 v{WA}, v{t1}, 5, v{WA}
    v_and_b32 v{t1}, 3, v{V_LANE}
    v_lshl_add_u32 v{WA}, v{t1}, 3, v{WA}
    v_add_u32 v{WA}, {item_base(18)}, v{WA}
    v_xor_b32 v{WA+1}, 32, v{WA}
    v_xor_b32 v{WA+2}, 64, v{WA}
    v_xor_b32 v{WA+3}, 96, v{WA}
    s_lshl_b32 s14, s{S_WAVE}, 10
    v_add_u32 v{OA}, s14, v{t0}
    s_mov_b32 s11, 16384
    v_add_u32 v{OA}, {item_base(20)}, v{OA}
    s_lshl_b32 s12, s{S_RB64}, 6
    s_lshl_b32 s15, s{S_WAVE}, 4
    s_add_u32 s12, s12, s15
    s_mul_i32 s12, s12, 1792
    s_lshl_b32 s15, s{S_CT}, 7
    s_add_u32 s12, s12, s15
    v_and_b32 v{t0}, 15, v{V_LANE}
    v_mul_u32_u24 v{t0}, 1792, v{t0}
    v_lshrrev_b32 v{t1}, 4, v{V_LANE}
    v_lshl_add_u32 v{t0}, v{t1}, 3, v{t0}
    """)
    for i in range(16): a(f"v_mov_b32 v{DA+i}, 0")
    stamp(a, 9)
    a(f"""
    s_barrier
    s_cmp_ge_u32 s{S_LOC}, 28
    s_cbranch_scc1 g0_done
    """)
    WF = 128
    def wread(hh, buf):
        b = WF + 20 * buf
        f = [f"ds_read_b128 {R(b + 16)}, v{OA} offset:{4096*hh}"]
        f += [f"ds_read_b64_tr_b16 {R(b + 4*tau + 2*jj, 2)}, v{WA + tau} offset:{4096*hh + 512*jj}" for tau in range(4) for jj in range(2)]
        return f
    def mf(buf):
        b = WF + 20 * buf
        return [f"v_mfma_f32_16x16x32_bf16 {R(DA + 4*tau)}, {R(b + 4*tau)}, {R(b + 16)}, {R(DA + 4*tau)}" for tau in range(4)]
    for f in wread(0, 0) + wread(1, 1): a(f)
    dW = item_base(19) - item_base(18) - 16384
    dO = item_base(21) - item_base(20) - 16384
    a(f"s_mov_b32 s10, 0\na3_loop:")
    for f in wread(2, 2): a(f)
    a("s_waitcnt lgkmcnt(15)\ns_waitcnt lgkmcnt(9)" if False else "s_waitcnt lgkmcnt(9)")
    interleave(a, mf(0) + mf(1), wread(3, 3) + [f"""s_cmp_eq_u32 s10, 1
    s_cselect_b32 s14, {dW & 0xffffffff}, 16384
    s_cselect_b32 s15, {dO & 0xffffffff}, 16384""".replace(", 16384", ", s11")] )
    for tau in range(4): a(f"v_add_u32 v{WA+tau}, s14, v{WA+tau}")
    a(f"v_add_u32 v{OA}, s15, v{OA}")
    for f in wread(0, 0): a(f)
    a("s_waitcnt lgkmcnt(9)")
    interleave(a, mf(2) + mf(3), wread(1, 1) + ["s_add_u32 s10, s10, 1\ns_cmp_lt_u32 s10, 4"])
    a("s_cbranch_scc1 a3_loop")
    a("s_nop 7")
    for tau in range(4):
        d = DA + 4*tau
        a(f"""
        v_cvt_pk_bf16_f32 v{60+2*tau}, v{d}, v{d+1}
        v_cvt_pk_bf16_f32 v{60+2*tau+1}, v{d+2}, v{d+3}
        buffer_store_dwordx2 {R(60+2*tau, 2)}, v{t0}, {S4(SRD_OUT)}, s12 offen offset:{32*tau}{OSC()}
        """)
    a("g0_done:")
    stamp(a, 10)
    if Cfg.stamps: a("s_waitcnt vmcnt(0)")
    stamp(a, 11)
    stamp(a, 15, True)
    dump_stamps(a, 0)
    if Cfg.DBGOUT >= 0:
        a(f"""
        s_cmp_lg_u32 s2, {Cfg.DBGOUT}
        s_cbranch_scc1 dbg_done
        s_cmp_lg_u32 s{S_WAVE}, 0
        s_cbranch_scc1 dbg_done
        s_load_dwordx2 s[40:41], s[0:1], 72
        s_waitcnt lgkmcnt(0)
        s_and_b32 s41, s41, 0xffff
        s_mov_b32 s42, 256
        s_mov_b32 s43, 0x20000
        v_mov_b32 v2, 0
        """)
        for i in range(12):
            a(f"s_sub_u32 s14, s{S_ST+2*i}, s{S_ST}\nv_mov_b32 v3, s14\nbuffer_store_dword v3, v2, s[40:43], 0 offen offset:{4*i}")
        a(f"s_sub_u32 s14, s{S_ST+30}, s{S_ST+28}\nv_mov_b32 v3, s14\nbuffer_store_dword v3, v2, s[40:43], 0 offen offset:48")
        a("dbg_done:")
    a("s_endpgm")

def dma(vm, tag, m0base, m0imm, vaddr, srd_, soff, lanes=64, sc=""):
    pre, post = "s_nop 0", ""
    if lanes == 16: pre, post = "s_mov_b64 exec, 0xffff", "\ns_mov_b64 exec, -1"
    if lanes == 32: pre, post = "s_mov_b32 exec_hi, 0", "\ns_mov_b32 exec_hi, -1"
    vm.op(tag, f"s_add_u32 m0, s{m0base}, {m0imm}\n{pre}\nbuffer_load_dwordx4 v{vaddr}, {S4(srd_)}, s{soff} offen{sc} lds{post}")

def x_dma_addrs(a, vXd, srow, rowbytes, permute, t0, t1, t2):
    if not permute:
        a(f"v_lshrrev_b32 v{t0}, 3, v{V_LANE}")
        o1, o2 = 8, 16
    else:
        a(f"""v_lshrrev_b32 v{t0}, 5, v{V_LANE}
        v_bfe_u32 v{t1}, v{V_LANE}, 3, 2
        v_lshl_add_u32 v{t0}, v{t0}, 3, v{t1}""")
        o1, o2 = 16, 4
    a(f"""
    v_add_u32 v{t0}, s{srow}, v{t0}
    v_mul_u32_u24 v{t0}, {rowbytes}, v{t0}
    v_and_b32 v{t1}, 7, v{V_LANE}
    v_lshrrev_b32 v{t2}, 4, v{V_LANE}
    v_xor_b32 v{t1}, v{t1}, v{t2}
    v_lshl_add_u32 v{vXd}, v{t1}, 4, v{t0}
    v_xor_b32 v{t1}, 4, v{t1}
    v_lshl_add_u32 v{vXd+1}, v{t1}, 4, v{t0}
    v_add_u32 v{vXd+1}, {o1*rowbytes}, v{vXd+1}
    v_add_u32 v{vXd+2}, {o2*rowbytes}, v{vXd}
    v_add_u32 v{vXd+3}, {o2*rowbytes}, v{vXd+1}
    """)

V_TR = 100
def g1bar(a, b):
    a("s_barrier")
    if Cfg.stamps:
        if b > 0: a(f"s_waitcnt lgkmcnt(0)\nv_writelane_b32 v{V_TR}, s88, {b-1}")
        a("s_memrealtime s[88:89]")

class Stream:
    def __init__(self, a, vm):
        self.a, self.vm, self.ops, self.pos = a, vm, [], 0
        self.hook = None
    def add(self, tag, need, avail, emits):
        for e in emits: self.ops.append((tag, need, avail, e))
    def run_to(self, b, la, maxops=999):
        last_needed = max([i for i, o in enumerate(self.ops) if o[1] <= b] + [-1])
        while self.pos < len(self.ops):
            tag, need, avail, e = self.ops[self.pos]
            if avail >= b:
                assert self.pos > last_needed, (b, tag)
                break
            if self.pos > last_needed + la: break
            if self.pos > last_needed and maxops <= 0: break
            e(); self.pos += 1; maxops -= 1
        if self.hook: self.hook(); self.hook = None
        tags = [o[0] for o in self.ops[:last_needed + 1]]
        pend = [t for t in self.vm.q if t in set(tags)]
        if pend: self.vm.wait(pend[-1])

G_XD, G_WD, G_CD, G_L16, G_PK, G_PO, G_PT, G_VD, G_WO = 4, 8, 24, 28, 29, 30, 31, 32, 33
G_TA, G_DUM, G_PA = 36, 38, 39
def g1_bbig_setup(a):
    t0, t1, t2 = 17, 18, 19
    a(f"""
    s_lshl_b32 s15, s{S_MB}, 7
    s_lshl_b32 s14, s{S_WAVE}, 5
    s_add_u32 s15, s15, s14
    """)
    x_dma_addrs(a, G_CD, 15, 4096, False, t0, t1, t2)
    a(f"s_cmp_lt_u32 s{S_KQ}, 2")
    srd_sel(a, SRD_C, P_CR, P_CI, 2048 * 4096)
    a(f"""
    v_lshlrev_b32 v{G_L16}, 4, v{V_LANE}
    s_and_b32 s14, s{S_KQ}, 1
    s_lshl_b32 s7, s14, 11
    s_mul_i32 s6, s14, {32*7168}
    s_lshr_b32 s15, s{S_KQ}, 1
    s_lshl_b32 s15, s15, 2
    s_add_u32 s15, s15, s{S_NB}
    s_mul_i32 s15, s15, {AT_NB}
    s_add_u32 s6, s6, s15
    s_mul_i32 s15, s{S_WAVE}, 3584
    s_add_u32 s6, s6, s15
    s_add_u32 s6, s6, {WS_AT}
    s_add_u32 s61, s15, 16384
    s_lshl_b32 s60, s{S_WAVE}, 12
    s_lshl_b32 s62, s{S_WAVE}, 10
    s_and_b32 s11, s{S_LOC}, 7
    s_and_b32 s14, s{S_NB}, 1
    s_lshl_b32 s14, s14, 2
    s_add_u32 s11, s11, s14
    s_cmp_lt_u32 s{S_NB}, 2
    s_cselect_b32 s14, 2, 0
    s_add_u32 s11, s11, s14
    s_and_b32 s30, s{S_XCD}, {Cfg.SWAP}
    s_lshl_b32 s30, s30, 3
    s_xor_b32 s31, s30, 8
    {"s_and_b32 s11, s%d, 7" % S_LOC if Cfg.NOROT else ""}
    """)

def touch_setup(a):
    t0, t1, t2 = 17, 18, 19
    a(f"""
    s_lshl_b32 s15, s{S_MB}, 7
    s_lshl_b32 s14, s{S_WAVE}, 5
    s_add_u32 s15, s15, s14
    v_lshrrev_b32 v{t0}, 1, v{V_LANE}
    v_add_u32 v{t0}, s15, v{t0}
    v_lshlrev_b32 v{t0}, 12, v{t0}
    v_and_b32 v{t1}, 1, v{V_LANE}
    v_add_u32 v{t1}, s11, v{t1}
    v_and_b32 v{t2}, 7, v{t1}
    v_lshl_add_u32 v{G_TA}, v{t2}, 7, v{t0}
    v_add_u32 v{t1}, 2, v{t1}
    v_and_b32 v{t2}, 7, v{t1}
    v_lshl_add_u32 v{G_TA+1}, v{t2}, 7, v{t0}
    """)
def touch_ops(a, vm, off=0):
    nt = " nt" if Cfg.NT_TOUCH else ""
    return [(lambda i=i: vm.op("touch", f"buffer_load_dword v{G_DUM}, v{G_TA+i}, {S4(SRD_C)}, s7 offen offset:{off}{nt}")) for i in range(2)]

def stage_item(s): return s if s < Cfg.NA else s + 2
def x_ops(a, vm, s, nt=None):
    base = item_base(stage_item(s))
    if nt is None: nt = bool(Cfg.NT_TOUCH and (s < 2 or (s in (8, 9) and Cfg.NA == 8)))
    def mk(i):
        def e():
            if i == 0:
                a(f"s_add_u32 s14, s11, {s}\ns_and_b32 s14, s14, 7\ns_or_b32 s14, s14, s{30 + (s >> 3)}\ns_lshl_b32 s0, s14, 7\ns_add_u32 s0, s0, s7")
            dma(vm, ("x", s), 60, base + i*1024, G_CD + i, SRD_C, 0, sc=(" nt" if nt else ""))
        return e
    return [mk(i) for i in range(4)]
def e_ops(a, vm, s):
    base = item_base(stage_item(s))
    ent = " nt" if (Cfg.LASTNT and (s & 7) == 7) else ""
    def mk(i):
        def e():
            if i == 0:
                a(f"s_add_u32 s14, s11, {s}\ns_and_b32 s14, s14, 7\ns_or_b32 s14, s14, s{30 + (s >> 3)}\ns_mul_i32 s1, s14, 14336\ns_add_u32 s1, s1, s6")
            pre, post = ("s_nop 0", "") if i < 3 else ("s_mov_b32 exec_hi, 0", "\ns_mov_b32 exec_hi, -1")
            vm.op(("e", s), f"s_add_u32 m0, s61, {base}\n{pre}\nbuffer_load_dwordx4 v{G_L16}, {S4(SRD_WS)}, s1 offen offset:{1024*i}{SC}{ent} lds{post}")
        return e
    return [mk(i) for i in range(4)]

X_AVAIL = [4, 5, 6, 7, 7]

def g1_p1(a, typ):
    vXd, vWd = G_XD, G_WD
    t0, t1, t2, t3 = 17, 18, 19, 20
    sX, sW, sC, sT, sM0x, sM0w = 9, 10, 8, 11, 12, 13
    stepW = 64*2688 if typ == 0 else 128
    def sbase(c): return (c % 4) * 37888 if typ == 0 else ((c + 2) % 5) * SLOT
    nslot = 4 if typ == 0 else 5
    ntp = " nt" if Cfg.NT_P1 in (1, 2, 4) else ""
    def ntc(c): return " nt" if (Cfg.NT_P1 == 1 or (Cfg.NT_P1 == 2 and c < 2) or (Cfg.NT_P1 == 3 and c >= 5) or (Cfg.NT_P1 == 4 and (c >= 5 or c < 2))) else ""
    a(f"""
    s_lshl_b32 s{sT}, s6, 7
    s_lshl_b32 s14, s{S_WAVE}, 5
    s_add_u32 s{sT}, s{sT}, s14
    """)
    x_dma_addrs(a, vXd, sT, 896, typ == 1, t0, t1, t2)
    a(f"s_lshl_b32 s{sM0x}, s{S_WAVE}, 12\ns_lshl_b32 s{sX}, s{sC}, 7\ns_waitcnt lgkmcnt(0)")
    srd(a, SRD_X, P_AX if typ == 0 else P_BX, 2048 * 896)
    vm = VM(a)
    if typ == 0 and Cfg.A1LATE:
        epoch_load(a)
    stamp(a, 1)
    for i in range(4):
        dma(vm, ("p", 0), sM0x, sbase(0) + i*1024, vXd+i, SRD_X, sX, sc=ntp)
    if typ == 0:
        srd(a, SRD_W, P_WQKV, 448 * 2688)
        a(f"""
        s_mul_i32 s{sT}, s{S_WAVE}, {16*2688}
        s_mul_i32 s14, s7, 336
        s_add_u32 s{sT}, s{sT}, s14
        """)
        nw, wbytes = 6, 5376
        def waddr(i):
            a(f"""
            v_add_u32 v{t0}, {64*i}, v{V_LANE}
            v_mul_u32_u24 v{t1}, 3121, v{t0}
            v_lshrrev_b32 v{t1}, 16, v{t1}
            v_mul_u32_u24 v{t2}, 21, v{t1}
            v_sub_u32 v{t0}, v{t0}, v{t2}
            v_and_b32 v{t2}, 8, v{t1}
            v_and_b32 v{t3}, 1, v{t1}
            v_lshl_add_u32 v{t2}, v{t3}, 2, v{t2}
            v_bfe_u32 v{t3}, v{t1}, 1, 2
            v_add_u32 v{t2}, v{t2}, v{t3}
            v_mul_u32_u24 v{t2}, 2688, v{t2}
            v_lshl_add_u32 v{t2}, v{t0}, 4, v{t2}
            v_add_u32 v{vWd+i}, s{sT}, v{t2}
            """)
    else:
        a("s_cmp_lt_u32 s7, 4")
        srd_sel(a, SRD_W, P_DR, P_DI, 448 * 896)
        a(f"""
        s_and_b32 s{sT}, s7, 3
        s_mul_i32 s{sT}, s{sT}, 112
        s_mul_i32 s15, s{S_WAVE}, 28
        """)
        nw, wbytes = 4, 3584
        def waddr(i):
            a(f"""
            v_lshrrev_b32 v{t0}, 3, v{V_LANE}
            v_add3_u32 v{t0}, v{t0}, s15, {8*i}
            v_bfe_u32 v{t1}, v{t0}, 2, 2
            v_mul_u32_u24 v{t1}, 28, v{t1}
            v_lshrrev_b32 v{t2}, 4, v{t0}
            v_lshl_add_u32 v{t1}, v{t2}, 2, v{t1}
            v_and_b32 v{t2}, 3, v{t0}
            v_add3_u32 v{t1}, v{t1}, v{t2}, s{sT}
            v_mul_u32_u24 v{t1}, 896, v{t1}
            v_bfe_u32 v{t2}, v{t0}, 1, 3
            v_and_b32 v{t3}, 7, v{V_LANE}
            v_xor_b32 v{t2}, v{t2}, v{t3}
            v_lshl_add_u32 v{vWd+i}, v{t2}, 4, v{t1}
            """)
    a(f"""
    s_mul_i32 s{sM0w}, s{S_WAVE}, {wbytes}
    s_add_u32 s{sM0w}, s{sM0w}, 16384
    s_mul_i32 s{sW}, s{sC}, {stepW}
    """)
    def wl(i): return 64 if i < nw - 1 else (16 if typ == 0 else 32)
    for i in range(nw):
        waddr(i)
        dma(vm, ("p", 0), sM0w, sbase(0) + i*1024, vWd+i, SRD_W, sW, lanes=wl(i), sc=ntp)
    st = Stream(a, vm)
    st.add(("p", 0), 0, -1, [])
    def pops(c):
        ops = []
        def mkx(i):
            def e():
                if i == 0:
                    a(f"s_add_u32 s{sC}, s{sC}, 1\ns_cmp_eq_u32 s{sC}, 7\ns_cselect_b32 s{sC}, 0, s{sC}\ns_lshl_b32 s{sX}, s{sC}, 7\ns_mul_i32 s{sW}, s{sC}, {stepW}")
                dma(vm, ("p", c), sM0x, sbase(c) + i*1024, vXd+i, SRD_X, sX, sc=ntc(c))
            return e
        def mkw(i):
            return lambda: dma(vm, ("p", c), sM0w, sbase(c) + i*1024, vWd+i, SRD_W, sW, lanes=wl(i), sc=ntc(c))
        return [mkx(i) for i in range(4)] + [mkw(i) for i in range(nw)]
    tpos = Cfg.TPOS_A if typ == 0 else 77
    for c in range(1, 7):
        st.add(("p", c), c, (c - nslot + 2) if c >= nslot else -1, pops(c))
        if tpos == c: st.add("touch", c + 1 if c < 6 else 99, -1, touch_ops(a, vm))
    st.run_to(0, Cfg.LA0)
    jobs2(a)
    g1_bbig_setup(a)
    touch_setup(a)
    if tpos == 0:
        for e in touch_ops(a, vm): e()
    if not (typ == 0 and Cfg.A1LATE): epoch_load(a)
    srd(a, SRD_WS, P_WS, WS_SIZE)
    srd(a, SRD_OUT, P_OUT, 2048 * 1792)
    stamp(a, 2)
    vm.wait(("p", 0))
    g1bar(a, 0)
    for b in range(1, 7):
        st.run_to(b, Cfg.LA1 if b > 1 else Cfg.LAB1)
        g1bar(a, b)
    st.run_to(7, 99)
    assert st.pos == len(st.ops)
    return list(vm.q)

def epoch_load(a):
    a(f"""
    s_add_u32 s14, s{P_WS}, {WS_EPOCH}
    s_addc_u32 s15, s{P_WS+1}, 0
    s_load_dword s39, s[14:15], 0
    s_waitcnt lgkmcnt(0)
    s_mul_i32 s{S_TAG}, s39, 0x19660d
    s_add_u32 s{S_TAG}, s{S_TAG}, 0x3c6ef35f
    s_and_b32 s14, s{S_TAG}, 0xfff
    s_or_b32 s14, s14, 0x4000
    s_lshr_b32 s15, s39, 16
    s_cmp_eq_u32 s14, s15
    s_cselect_b32 s15, 0x1000, 0
    s_or_b32 s14, s14, s15
    s_lshl_b32 s{S_TAGF}, s14, 16
    """)

def g1_common_setup(a):
    t0, t1, t2 = 17, 18, 19
    a(f"""
    v_and_b32 v{t0}, 31, v{V_LANE}
    v_lshlrev_b32 v{G_PO}, {FS}, v{t0}
    s_lshl_b32 s13, s{S_RB64}, {FS + 5}
    s_add_u32 s13, s13, {WS_F2}
    v_lshrrev_b32 v{t0}, 3, v{V_LANE}
    v_mul_u32_u24 v{t0}, 896, v{t0}
    v_and_b32 v{t1}, 7, v{V_LANE}
    v_bfe_u32 v{t2}, v{V_LANE}, 4, 1
    v_lshlrev_b32 v{t2}, 1, v{t2}
    v_xor_b32 v{t1}, v{t1}, v{t2}
    v_lshl_add_u32 v{G_WO}, v{t1}, 4, v{t0}
    v_xor_b32 v{t1}, 4, v{t1}
    v_lshl_add_u32 v{G_WO+1}, v{t1}, 4, v{t0}
    v_mov_b32 v{t2}, 0x7ffffff0
    v_cmp_gt_u32 vcc, 32, v{V_LANE}
    s_mul_i32 s9, s{S_WAVE}, {28*896}
    s_lshl_b32 s14, s{S_CT}, 7
    v_cndmask_b32 v{G_WO+2}, v{t2}, v{G_WO+1}, vcc
    s_add_u32 s9, s9, s14
    """)
    srd(a, SRD_W, P_WO, 448 * 896)

def g1_kv_setup(a):
    t0, t1, t2 = 17, 18, 19
    for kind in range(3):
        a(f"""
        s_add_u32 s14, s{S_H}, {16*kind}
        s_mul_i32 s15, s14, 43
        s_lshr_b32 s15, s15, 8
        s_mul_i32 s12, s15, 6
        s_sub_u32 s14, s14, s12
        s_cmp_ge_u32 s14, 3
        s_cselect_b32 s14, 1, 0
        s_lshl_b32 s15, s15, 6
        s_add_u32 s{24+kind}, s15, s14
        """)
    a(f"""
    v_mov_b32 v{t0}, s26
    v_mov_b32 v{t1}, s25
    v_cmp_gt_u32 vcc, 16, v{V_LANE}
    v_mov_b32 v{t2}, s24
    s_nop 0
    v_cndmask_b32 v{t0}, v{t0}, v{t1}, vcc
    v_cmp_gt_u32 vcc, 8, v{V_LANE}
    v_bfe_u32 v{t1}, v{V_LANE}, 1, 2
    v_min_u32 v{t1}, 2, v{t1}
    v_cndmask_b32 v{t0}, v{t0}, v{t2}, vcc
    v_sub_u32 v{t1}, s{S_J}, v{t1}
    v_max_i32 v{t1}, 0, v{t1}
    v_lshl_add_u32 v{t0}, v{t1}, 2, v{t0}
    v_and_b32 v{t1}, 1, v{V_LANE}
    v_lshl_add_u32 v{t0}, v{t1}, 1, v{t0}
    v_lshlrev_b32 v{G_PK}, {FS}, v{t0}
    s_mov_b32 s12, {WS_F1}
    v_lshrrev_b32 v{t0}, 4, v{V_LANE}
    v_lshlrev_b32 v{t1}, 2, v{t0}
    v_sub_u32 v{t1}, v{V_LANE}, v{t1}
    v_and_b32 v{t1}, 15, v{t1}
    v_lshlrev_b32 v{t1}, 4, v{t1}
    v_lshl_add_u32 v{G_VD}, v{t0}, 8, v{t1}
    s_lshl_b32 s8, s{S_H}, 17
    s_add_u32 s8, s8, {WS_QKV + 16*131072}
    s_lshl_b32 s10, s{S_J}, 3
    s_add_u32 s10, s10, s{S_WAVE}
    s_sub_u32 s10, s10, 16
    """)

def g1_phase2(a, typ):
    NA = Cfg.NA = NAof(typ)
    t0, t1, t2, t3 = 17, 18, 19, 20
    vm = VM(a)
    stamp(a, 3)
    g1_common_setup(a)
    g1_kv_setup(a)
    nt = bool(Cfg.NT_TOUCH)
    def async_check(vaddr, soff, name):
        l = a.newlabel(name)
        a(f"v_cmp_ne_u32 vcc, s{S_TAG}, v{G_PT}\ns_cbranch_vccz {l}")
        poll_blocking(a, vaddr, soff, G_PT, name + "b")
        a(f"{l}:")
    if typ == 0: ab_poll_addr(a, G_PA, 34)
    def xpre():
        for st_ in range(Cfg.NXPRE):
            for e in x_ops(a, vm, st_): e()
    if typ == 0 and Cfg.XA_AT == 6: xpre()
    g1bar(a, 7)
    stamp(a, 4)
    if typ == 1 or not Cfg.NOBP: a("s_barrier")
    if typ == 0:
        vm.op("pa", f"buffer_load_dword v{G_PT}, v{G_PA}, {S4(SRD_WS)}, s34 offen sc1")
    if not (typ == 0 and Cfg.XA_AT == 6): xpre()
    if typ == 0:
        vm.wait("pa")
        async_check(G_PA, 34, "pa")
    else:
        a("s_barrier")
    if Cfg.stamps: a(f"s_waitcnt lgkmcnt(0)\nv_writelane_b32 v{V_TR}, s88, 7\ns_memrealtime s[88:89]")
    vm.q = []
    stamp(a, 5)
    st = Stream(a, vm)
    def need(s): return 9 + s if s < NA else 10 + s
    def free_after_item(n):
        if n < NA - 1: return 11 + n
        if n == NA - 1: return 9 + NA
        if n < NA + 2: return 10 + NA
        return 12 + (n - 2)
    def avail(n):
        if n >= 5: return free_after_item(n - 5)
        return 9 if (typ == 0 and Cfg.NOBP and n >= 3) else -1
    def kv_ops(which):
        base = item_base(NA + which)
        def mk(i):
            def e():
                a(f"""s_add_u32 s14, s10, {4*i}
                s_max_i32 s14, s14, 0
                s_lshl_b32 s14, s14, 10
                s_add_u32 s14, s14, s8""")
                if which: a(f"s_add_u32 s14, s14, {16*131072}")
                dma(vm, "kv", 62, base + 4096*i, G_VD if which else G_L16, SRD_WS, 14, sc=SC + (" nt" if Cfg.KVNT else ""))
            return e
        return [mk(i) for i in range(6)]
    def wo_ops(half):
        base = item_base(18 + half)
        def mk(i, qd):
            def e():
                a(f"s_add_u32 s14, s9, {((8*half + 4*i)*28 + 8*qd)*896}")
                dma(vm, "wo", 60, base + 16384*i + 1024*qd, G_WO + (2 if qd == 3 else qd % 2), SRD_W, 14)
            return e
        return [mk(i, qd) for i in range(2) for qd in range(4)]
    def touchB():
        if Cfg.TLB2:
            l = a.newlabel("tlb2")
            a(f"""
            s_cmp_lg_u32 s{S_WAVE}, 0
            s_cbranch_scc1 {l}
            v_lshlrev_b32 v{t0}, {Cfg.TLBS}, v{V_LANE}
            s_mov_b32 s14, {WS_O}
            buffer_load_dword v{G_DUM}, v{t0}, {S4(SRD_OUT)}, 0 offen sc1
            s_mov_b64 exec, {(1 << ((WS_STAMP - WS_O) >> Cfg.TLBS)) - 1}
            buffer_load_dword v{G_DUM}, v{t0}, {S4(SRD_WS)}, s14 offen sc1
            s_mov_b64 exec, -1
            {l}:
            """)
        if not Cfg.TCH: return
        if NA != 8:
            a("s_lshl_b32 s14, s31, 7\ns_add_u32 s14, s14, s7")
            vm.op("touch", f"buffer_load_dword v{G_DUM}, v{G_TA}, {S4(SRD_C)}, s14 offen")
        a(f"""
        s_and_b32 s14, s11, 7
        s_add_u32 s14, s14, s31
        s_mul_i32 s14, s14, 14336
        s_add_u32 s14, s14, s6
        v_lshlrev_b32 v{t0}, 7, v{V_LANE}
        s_mov_b64 exec, 0xfffffff
        """)
        vm.op("touch", f"buffer_load_dword v{G_DUM}, v{t0}, {S4(SRD_WS)}, s14 offen sc1")
        a(f"""
        s_lshl_b32 s14, s{S_LOC}, 2
        s_add_u32 s14, s14, s{S_WAVE}
        s_mul_i32 s14, s14, 3200
        s_mov_b64 exec, 0x1ffffff
        v_add_u32 v{t0}, s14, v{t0}
        """)
        if Cfg.WOT: vm.op("touch", f"buffer_load_dword v{G_DUM}, v{t0}, {S4(SRD_W)}, 0 offen{' nt' if Cfg.WOT == 2 else ''}")
        a("s_mov_b64 exec, -1")
    def epoch_bump():
        a(f"""
        s_cmp_lg_u32 s2, 0
        s_cbranch_scc1 eb_done
        s_cmp_lg_u32 s{S_WAVE}, 0
        s_cbranch_scc1 eb_done
        v_lshlrev_b32 v{t0}, {FS + 2}, v{V_LANE}
        s_mov_b32 s39, 0
        eb_loop:
        """)
        for i in range(4):
            a(f"s_mov_b32 s14, {WS_F1 + (256 << FS)*i}\nbuffer_load_dword v{40+i}, v{t0}, {S4(SRD_WS)}, s14 offen sc1")
        a(f"""
        s_add_u32 s39, s39, 1
        s_waitcnt vmcnt(0)
        v_xor_b32 v40, s{S_TAG}, v40
        v_xor_b32 v41, s{S_TAG}, v41
        v_xor_b32 v42, s{S_TAG}, v42
        v_xor_b32 v43, s{S_TAG}, v43
        v_or_b32 v40, v40, v41
        v_or3_b32 v40, v40, v42, v43
        v_cmp_ne_u32 vcc, 0, v40
        s_cmp_ge_u32 s39, {POLL_LIMIT}
        s_cbranch_scc1 eb_st
        s_cbranch_vccnz eb_loop
        eb_st:
        s_mov_b32 s14, {WS_EPOCH}
        v_mov_b32 v{t0}, 0
        v_mov_b32 v{t1}, s{S_TAG}
        s_mov_b64 exec, 1
        buffer_store_dword v{t1}, v{t0}, {S4(SRD_WS)}, s14 offen sc1
        s_mov_b64 exec, -1
        eb_done:
        """)
    kvb = 9 + NA - Cfg.KVL
    ob = 10 + Cfg.O_POLL + 1
    for s in range(16):
        n = stage_item(s)
        av = avail(n)
        if Cfg.HOLD and s >= 10: av = max(av, 10 + NA)
        if s == NA:
            st.add("kv", 9 + NA, max(avail(NA), kvb - 1), kv_ops(0))
            st.add("kv", 9 + NA, max(avail(NA + 1), kvb - 1), kv_ops(1))
            st.add("tb", 10 + NA, 9 + NA, [touchB])
        if s >= Cfg.NXPRE: st.add(("x", s), need(s), av, x_ops(a, vm, s))
        st.add(("e", s), need(s), av, e_ops(a, vm, s))
    st.add("wo", 27, avail(18), wo_ops(0))
    st.add("wo", 27, avail(19), wo_ops(1))
    def kv_patch():
        l = a.newlabel("nopatch")
        a(f"""
        s_cmp_ge_u32 s{S_J}, 2
        s_cbranch_scc1 {l}
        v_lshrrev_b32 v{t0}, 4, v{V_LANE}
        v_lshlrev_b32 v{t0}, 12, v{t0}
        v_and_b32 v{t1}, 15, v{V_LANE}
        v_lshl_add_u32 v{t0}, v{t1}, 4, v{t0}
        v_add_u32 v{t0}, s62, v{t0}
        v_add_u32 v{t0}, {item_base(NA)}, v{t0}
        v_mov_b32 v{t1}, 0xf14a
        s_cmp_eq_u32 s{S_J}, 0
        s_cselect_b32 exec_hi, -1, 0
        ds_write_b16 v{t0}, v{t1} offset:{3*256 + 8}
        s_mov_b32 exec_hi, -1
        s_waitcnt lgkmcnt(0)
        {l}:
        """)
    for b in range(9, 27):
        if b == kvb - 1: vm.op("pk", f"buffer_load_dword v{G_PT}, v{G_PK}, {S4(SRD_WS)}, s12 offen sc1")
        if b == ob - 1: vm.op("po", f"buffer_load_dword v{G_PT}, v{G_PO}, {S4(SRD_WS)}, s13 offen sc1")
        if b == kvb:
            vm.wait("pk"); async_check(G_PK, 12, "pk")
        if b == ob:
            vm.wait("po"); async_check(G_PO, 13, "po")
        la = Cfg.LA + Cfg.LAR * (b - 9)
        if b == 26: la = 99
        if b == 10 + NA and typ == 0: st.hook = epoch_bump
        st.run_to(b, la)
        if b == 9 + NA: kv_patch()
        g1bar(a, b)
        if b == 9: stamp(a, 6)
        if b == 9 + NA: stamp(a, 7)
    assert st.pos == len(st.ops)

def g1_program(a):
    t0, t1, t2, t3 = 17, 18, 19, 20
    a(f"s_cmp_ge_u32 s{S_LOC}, 16\ns_cbranch_scc1 g1_p1b")
    g1_p1(a, 0)
    g1_phase2(a, 0)
    a("s_branch g1_join\ng1_p1b:")
    g1_p1(a, 1)
    g1_phase2(a, 1)
    a("g1_join:")
    d21 = item_base(21) - item_base(20) - 8*4096
    a(f"s_lshl_b32 s10, s{S_RB64}, 12\ns_add_u32 s10, s10, s62\ns_add_u32 s10, s10, {WS_O}\ns_lshl_b32 s8, s{S_CT}, 1\ns_add_u32 s9, s62, {item_base(20)}\ns_mov_b32 s12, 16\ng1_ol:")
    a(f"""
    s_and_b32 s14, s8, 15
    s_lshl_b32 s15, s14, 12
    s_add_u32 s15, s15, s9
    s_cmp_ge_u32 s14, 8
    s_cselect_b32 s0, {d21 & 0xffffffff}, 0
    s_add_u32 m0, s15, s0
    s_lshl_b32 s14, s14, 17
    s_add_u32 s14, s14, s10
    buffer_load_dwordx4 v{G_L16}, {S4(SRD_WS)}, s14 offen{SC} lds
    s_add_u32 s8, s8, 1
    s_sub_u32 s12, s12, 1
    s_cmp_lg_u32 s12, 0
    s_cbranch_scc1 g1_ol
    """)
    vPa, vOut = 4, 5
    a(f"""
    s_lshl_b32 s9, s{S_MB}, 2
    s_add_u32 s9, s9, s{S_NB}
    s_lshl_b32 s9, s9, 4
    s_add_u32 s9, s9, s{S_KQ}
    s_lshl_b32 s8, s9, 13
    s_add_u32 s8, s8, {WS_PQ}
    s_lshl_b32 s14, s{S_WAVE}, 11
    s_add_u32 s8, s8, s14
    s_add_u32 s9, s8, 32768
    s_add_u32 s10, s8, 65536
    s_add_u32 s11, s8, 98304
    s_lshl_b32 s12, s{S_MB}, 7
    s_lshl_b32 s14, s{S_KQ}, 5
    s_add_u32 s12, s12, s14
    s_lshr_b32 s14, s{S_WAVE}, 1
    s_lshl_b32 s14, s14, 4
    s_add_u32 s12, s12, s14
    s_mul_i32 s12, s12, 1792
    s_mul_i32 s14, s{S_NB}, 224
    s_add_u32 s12, s12, s14
    s_and_b32 s14, s{S_WAVE}, 1
    s_mul_i32 s14, s14, 28
    s_add_u32 s12, s12, s14
    s_add_u32 s12, s12, 896
    v_and_b32 v{t0}, 15, v{V_LANE}
    v_mul_u32_u24 v{t0}, 1792, v{t0}
    v_lshrrev_b32 v{t1}, 4, v{V_LANE}
    v_mul_u32_u24 v{t1}, 56, v{t1}
    v_add_u32 v{vOut}, v{t0}, v{t1}
    s_mov_b32 s60, 0xffff0000
    """)
    D = 40
    def ploads():
        for q in range(4):
            for i in range(2):
                a(f"buffer_load_dwordx4 {R(D + 8*q + 4*i)}, v{G_L16}, {S4(SRD_WS)}, s{8+q} offen offset:{1024*i}{SC}")
    ploads()
    a("s_waitcnt vmcnt(8)")
    g1bar(a, 27)
    if Cfg.stamps: a(f"s_waitcnt lgkmcnt(0)\nv_writelane_b32 v{V_TR}, s88, 27")
    stamp(a, 8)
    a("s_mov_b32 s39, 0\ns_branch g1_pp1\ng1_pp:")
    ploads()
    a(f"g1_pp1:\ns_add_u32 s39, s39, 1\ns_waitcnt vmcnt(0)")
    a(f"v_xor_b32 v{t0}, s{S_TAGF}, v{D+3}")
    for n in range(1, 8):
        a(f"v_xor_b32 v{t1}, s{S_TAGF}, v{D+4*n+3}\nv_or_b32 v{t0}, v{t0}, v{t1}")
    a(f"""
    v_cmp_le_u32 vcc, 0x10000, v{t0}
    s_cmp_ge_u32 s39, {POLL_LIMIT}
    s_cbranch_scc1 g1_ppx
    s_cbranch_vccz g1_ppx
    s_sleep {Cfg.SLEEP}
    s_branch g1_pp
    g1_ppx:
    """)
    stamp(a, 9)
    SUM = 104
    lo = 80
    for i in range(2):
        for d in range(4):
            r = [D + 8*q + 4*i + d for q in range(4)]
            for half in range(2 if d < 3 else 1):
                for q in range(4):
                    a(f"v_lshlrev_b32 v{lo+q}, 16, v{r[q]}" if half == 0 else f"v_and_b32 v{lo+q}, s60, v{r[q]}")
                a(f"v_add_f32 v{lo}, v{lo}, v{lo+1}\nv_add_f32 v{lo+2}, v{lo+2}, v{lo+3}\nv_sub_f32 v{SUM + 7*i + 2*d + half}, v{lo}, v{lo+2}")
    for n in range(7):
        a(f"v_cvt_pk_bf16_f32 v{88+n}, v{SUM+2*n}, v{SUM+2*n+1}")
    a(f"""
    buffer_store_dwordx4 {R(88)}, v{vOut}, {S4(SRD_OUT)}, s12 offen{OSC()}
    buffer_store_dwordx3 {R(92,3)}, v{vOut}, {S4(SRD_OUT)}, s12 offen offset:16{OSC()}
    g1_done:
    """)
    stamp(a, 10)
    if Cfg.stamps: a("s_waitcnt vmcnt(0)")
    stamp(a, 11)
    stamp(a, 15, True)
    dump_stamps(a, 1)
    if Cfg.stamps:
        a(f"""
        s_lshl_b32 s14, s2, 2
        s_add_u32 s14, s14, s{S_WAVE}
        s_lshl_b32 s14, s14, 8
        s_add_u32 s14, s14, {WS_STAMP + 0x40000}
        v_lshlrev_b32 v2, 2, v{V_LANE}
        buffer_store_dword v{V_TR}, v2, {S4(SRD_WS)}, s14 offen
        """)
    a("s_endpgm")

def build():
    a = Asm()
    kernel_begin(a, K)
    a(f"""
    s_cmp_ge_u32 s2, 256
    s_cbranch_scc1 k_end
    s_load_dwordx16 s[16:31], s[0:1], 0
    s_load_dwordx4 s[32:35], s[0:1], 64
    s_load_dwordx2 s[36:37], s[0:1], 80
    v_and_b32 v{V_LANE}, 63, v0
    v_lshrrev_b32 v2, 6, v0
    s_and_b32 s{S_XCD}, s2, 7
    v_readfirstlane_b32 s15, v2
    s_lshr_b32 s{S_LOC}, s2, 3
    """)
    stamp(a, 0); stamp(a, 14, True)
    a(f"""
    s_and_b32 s6, s{S_XCD}, 3
    s_lshl_b32 s6, s6, 2
    s_and_b32 s14, s{S_LOC}, 3
    s_add_u32 s6, s6, s14
    s_lshr_b32 s7, s{S_XCD}, 2
    s_lshl_b32 s7, s7, 2
    s_bfe_u32 s13, s{S_LOC}, 0x20002
    s_add_u32 s7, s7, s13
    s_add_u32 s8, s14, s13
    s_lshl_b32 s8, s8, 1
    s_cmp_ge_u32 s8, 7
    s_cselect_b32 s14, 7, 0
    s_sub_u32 s8, s8, s14
    s_and_b32 s{S_WAVE}, s15, 3
    s_cmp_lt_u32 s15, 4
    s_cbranch_scc1 g0_entry
    """)
    if Cfg.PRIO0 == 2: a("s_setprio 1")
    g1_program(a)
    a("g0_entry:")
    if Cfg.CODEW:
        a(f"""
        s_cmp_lg_u32 s{S_WAVE}, 0
        s_cbranch_scc1 cw_done
        s_getpc_b64 s[40:41]
        cw_pc:
        s_sub_u32 s40, s40, cw_pc-{K}
        s_subb_u32 s41, s41, 0
        s_lshl_b32 s14, s{S_LOC}, 10
        v_lshlrev_b32 v2, 7, v{V_LANE}
        v_add_u32 v2, s14, v2
        v_min_u32 v2, k_end-{K}, v2
        s_mov_b64 exec, 0xff
        global_load_dword v3, v2, s[40:41]
        s_mov_b64 exec, -1
        cw_done:
        """)
    if Cfg.PRIO0 == 1: a("s_setprio 1")
    jobs2(a)
    a("s_waitcnt lgkmcnt(0)")
    srd(a, SRD_WS, P_WS, WS_SIZE)
    srd(a, SRD_OUT, P_OUT, 2048 * 1792)
    epoch_load(a)
    if Cfg.TLBW:
        a(f"s_cmp_lt_u32 s{S_KQ}, 2")
        srd_sel(a, SRD_X, P_CR, P_CI, 2048 * 4096)
        srd(a, SRD_W, P_WO, 448 * 896)
        a(f"""
        v_lshlrev_b32 v2, {Cfg.TLBS}, v{V_LANE}
        s_cmp_lg_u32 s{S_WAVE}, 0
        s_cbranch_scc1 tlb_done
        buffer_load_dword v3, v2, {S4(SRD_WS)}, 0 offen sc1
        buffer_load_dword v3, v2, {S4(SRD_X)}, 0 offen
        buffer_load_dword v3, v2, {S4(SRD_OUT)}, 0 offen sc1
        buffer_load_dword v3, v2, {S4(SRD_W)}, 0 offen
        tlb_done:
        """)
    g0_program(a)
    a("k_end:\ns_endpgm")
    txt = a.text()
    return file_text_single(txt)

def file_text_single(body):
    h = HEADER_DOC + f"; @launch grid=(256,1,1) block=(512,1,1) lds={LDS_TOTAL}\n"
    return h + '.amdgcn_target "amdgcn-amd-amdhsa--gfx950"\n.text\n' + body + '.section .rodata,"a"\n' + descriptor(K, 256)

if __name__ == "__main__":
    out = sys.argv[1] if len(sys.argv) > 1 else "k3.s"
    Cfg.stamps = "stamps" in sys.argv
    for arg in sys.argv[2:]:
        if "=" in arg:
            k, v = arg.split("="); setattr(Cfg, k, int(v))
    open(out, "w").write(build())
```

```python
import sys, math, struct
from asmlib import *

NAME = "concat_heads__sliding_block__spectral_fnet__prompt"
K = NAME + "_kernel"

WS_F1, WS_F2, WS_F3, WS_EPOCH = 0x0, 0x20000, 0x40000, 0x60000
WS_QKV = 0x100000
WS_AT = 0x800000
AT_NB = 64 * 7168
WS_O = 0xC00000
WS_PQ = 0xE00000
WS_STAMP = 0x1700000
WS_SIZE = 0x1800000

C2 = (28 ** -0.5) * math.log2(math.e)
def f32bits(x):
    return struct.unpack("<I", struct.pack("<f", x))[0]
NEGBIG = f32bits(-1e30)

S_WAVE, S_XCD, S_LOC = 3, 4, 5
P_AX, P_WQKV, P_WO, P_BX, P_CR, P_CI, P_DR, P_DI, P_OUT, P_DBG, P_WS = 16, 18, 20, 22, 24, 26, 28, 30, 32, 34, 36
S_TAG = 38
S_TAGF = 35
SRD_X, SRD_W, SRD_WS, SRD_OUT = 40, 44, 48, 52
S_ST = 64
V_LANE = 1
SC = " sc1"
POLL_LIMIT = 20000

SLOT = 32768
LDS_TOTAL = 5 * SLOT
def item_base(n): return ((n + 4) % 5) * SLOT
FS = 4
SRD_C = 56

class Cfg:
    stamps = False
    NA_A = 8
    NA_B = 8
    KVL = 3
    LA = 12
    LAR = 0
    LA1 = 16
    LA0 = 10
    NXPRE = 2
    O_POLL = 15
    SLEEP = 4
    NT_TOUCH = 0
    NT_P1 = 0
    NT_WO = 0
    TPOS_A = 77
    RPG = 1
    NOCOMP = 0
    NOLOAD = 0
    NA = None
    SWAP = 0
    NTX = 2
    WOT = 1
    ALLNT = 0
    NOROT = 0
    TCH = 1
    HOLD = 0
    BPPOS = 12
    CODEW = 0
    OWN = 1
    SPLITO = 0
    AP1 = 1
    OTCH = 0
    WIDE = 1
    DBGOUT = -1
    LAB1 = 12
    MORD = 0
    AGPR = 0
    OUTSC = 0
    PRIO0 = 0
    TLBW = 1
    TLB2 = 0
    TLBS = 20
    FDEL = 2
    LADDER = 1
    A1LATE = 0
    XA_AT = 6
    HELP = 0
    NOBP = 0
    LASTNT = 0
    KVNT = 0
def NAof(typ): return Cfg.NA_A if typ == 0 else Cfg.NA_B
SG_N1, SG_N2, SG_D, SG_SL, SG_K, SG_V = 24, 25, 26, 27, 28, 29

def OSC(): return ['', ' sc1', ' nt', ' sc0 sc1'][Cfg.OUTSC]
def srd(a, d, p, nbytes):
    a(f"s_mov_b32 s{d}, s{p}\ns_and_b32 s{d+1}, s{p+1}, 0xffff\ns_mov_b32 s{d+2}, {nbytes}\ns_mov_b32 s{d+3}, 0x20000")
def srd_sel(a, d, p0, p1, nbytes):
    a(f"""s_cselect_b32 s{d}, s{p0}, s{p1}
    s_cselect_b32 s{d+1}, s{p0+1}, s{p1+1}
    s_and_b32 s{d+1}, s{d+1}, 0xffff
    s_mov_b32 s{d+2}, {nbytes}
    s_mov_b32 s{d+3}, 0x20000""")
def R(b, n=4):
    return f"v[{b}:{b+n-1}]"
def S4(d):
    return f"s[{d}:{d+3}]"

def interleave(a, mfmas, fillers):
    n, m = len(mfmas), len(fillers)
    k = 0
    for i, mf in enumerate(mfmas):
        a(mf)
        want = min(m, ((i + 1) * m + n - 1) // n)
        while k < want:
            a(fillers[k]); k += 1
    while k < m:
        a(fillers[k]); k += 1

def stamp(a, i, cyc=False):
    if Cfg.stamps:
        a(f"{'s_memtime' if cyc else 's_memrealtime'} s[{S_ST+2*i}:{S_ST+2*i+1}]")
def dump_stamps(a, grp, n=16):
    if not Cfg.stamps: return
    a(f"""
    s_waitcnt lgkmcnt(0)
    s_lshl_b32 s14, s2, 3
    s_add_u32 s14, s14, s{S_WAVE}
    s_add_u32 s14, s14, {4*grp}
    s_lshl_b32 s14, s14, 6
    s_add_u32 s14, s14, {WS_STAMP}
    v_mov_b32 v2, 0
    """)
    for i in range(n):
        a(f"v_mov_b32 v3, s{S_ST+2*i}\nbuffer_store_dword v3, v2, {S4(SRD_WS)}, s14 offen offset:{4*i}")

class VM:
    def __init__(self, a): self.a = a; self.q = []
    def op(self, tag, text):
        if Cfg.NOLOAD and " lds" in text:
            text = "\n".join(l for l in text.split("\n") if " lds" not in l)
            if tag in ("pk", "po"): raise Exception
            self.a(text); return
        self.a(text); self.q.append(tag)
    def wait(self, tag, extra=""):
        idx = max(i for i, t in enumerate(self.q) if t == tag) if tag in self.q else -1
        n = len(self.q) - 1 - idx
        assert n <= 63, n
        self.a(f"s_waitcnt vmcnt({n}){extra}")
        self.q = self.q[idx + 1:]
    def drained(self): self.q = []

def poll_blocking(a, vaddr, soff, vt, name):
    l = a.newlabel(name)
    a(f"""
    s_mov_b32 s39, 0
    {l}:
    buffer_load_dword v{vt}, v{vaddr}, {S4(SRD_WS)}, s{soff} offen sc1
    s_add_u32 s39, s39, 1
    s_waitcnt vmcnt(0)
    v_cmp_ne_u32 vcc, s{S_TAG}, v{vt}
    s_cmp_ge_u32 s39, {POLL_LIMIT}
    s_cbranch_scc1 {l}_x
    s_cbranch_vccz {l}_x
    s_sleep {Cfg.SLEEP}
    s_branch {l}
    {l}_x:
    """)

def flag_store(a, sidx, base, vt0, vt1):
    a(f"""
    s_lshl_b32 s14, s{sidx}, {FS}
    s_add_u32 s14, s14, {base}
    v_mov_b32 v{vt0}, 0
    v_mov_b32 v{vt1}, s{S_TAG}
    s_mov_b64 exec, 1
    buffer_store_dword v{vt1}, v{vt0}, {S4(SRD_WS)}, s14 offen sc1
    s_mov_b64 exec, -1
    """)

def xfrag_addrs(a, vX0, vX1, t0, t1, sbase):
    a(f"""
    v_and_b32 v{t0}, 15, v{V_LANE}
    v_lshrrev_b32 v{t1}, 1, v{t0}
    v_lshrrev_b32 v{vX0}, 4, v{V_LANE}
    v_xor_b32 v{vX0}, v{vX0}, v{t1}
    v_lshlrev_b32 v{vX0}, 4, v{vX0}
    v_lshl_add_u32 v{vX0}, v{t0}, 7, v{vX0}
    v_add_u32 v{vX0}, s{sbase}, v{vX0}
    v_xor_b32 v{vX1}, 64, v{vX0}
    """)

def frontload(a, mfmas, fillers):
    k = 0
    for mf in mfmas:
        a(mf)
        for _ in range(Cfg.RPG):
            if k < len(fillers):
                a(fillers[k]); k += 1
    while k < len(fillers):
        a(fillers[k]); k += 1

import re as _re
def _rng(tok):
    m = _re.match(r"v\[(\d+):(\d+)\]", tok.strip())
    return set(range(int(m.group(1)), int(m.group(2)) + 1))
def ladder_step(a, mf, cur_reads, nxt_reads, extra, front=False):
    dst = [_rng(r.split(None, 1)[1].split(",")[0]) for r in cur_reads]
    n, m = len(mf), len(nxt_reads)
    issued, done, ke = 0, -1, 0
    for i, ins in enumerate(mf):
        ops = ins.split(None, 1)[1].split(", ")
        use = _rng(ops[1]) | _rng(ops[2])
        q = max(j for j, d in enumerate(dst) if d & use)
        if q > done:
            a(f"s_waitcnt lgkmcnt({min(15, len(cur_reads) - 1 - q + issued)})")
            done = q
        a(ins)
        want = min(m, i + 1) if front else min(m, ((i + 1) * m + n - 1) // n)
        if issued < want:
            while issued < want:
                a(nxt_reads[issued]); issued += 1
        elif ke < len(extra):
            a(extra[ke]); ke += 1
    while issued < m:
        a(nxt_reads[issued]); issued += 1
    while ke < len(extra):
        a(extra[ke]); ke += 1

def gemm_loop(a, name, n_iter, STAGE, NSLOT, reads, mfmas, addr_regs, sSlot, sCnt, sD, strict=False):
    l = a.newlabel(name)
    r0, r1, rs = addr_regs
    a(f"s_mov_b32 s{sCnt}, {n_iter}\n{l}:")
    pre = [f"s_add_u32 s{sSlot}, s{sSlot}, 1\ns_cmp_eq_u32 s{sSlot}, {NSLOT}",
           f"s_cselect_b32 s{sD}, {-(NSLOT-1)}, 1\ns_cselect_b32 s{sSlot}, 0, s{sSlot}", f"s_mul_i32 s{sD}, s{sD}, {STAGE}"]
    add = lambda rr: [f"v_add_u32 v{r}, s{sD}, v{r}" for r in rr]
    ladder_step(a, mfmas(0), reads(0, 0), reads(1, 1), pre + add(r0), front=strict)
    for f in add(rs): a(f)
    a("s_waitcnt lgkmcnt(0)\ns_barrier" if strict else "s_barrier")
    ladder_step(a, mfmas(1), reads(1, 1), [] if strict else reads(0, 0), add(r1) + [f"s_sub_u32 s{sCnt}, s{sCnt}, 1\ns_cmp_lg_u32 s{sCnt}, 0"])
    a(f"s_cbranch_scc1 {l}")

def g0_a1(a):
    STAGE = 37888
    vX0, vX1, vWa = 14, 15, 16
    t0, t1 = 17, 18
    FR, ACC = 24, 104
    a(f"s_lshr_b32 s14, s{S_WAVE}, 1\ns_lshl_b32 s14, s14, 13")
    xfrag_addrs(a, vX0, vX1, t0, t1, 14)
    a(f"""
    s_and_b32 s14, s{S_WAVE}, 1
    s_mul_i32 s14, s14, 168
    s_add_u32 s14, s14, 16384
    v_lshrrev_b32 v{t0}, 2, v{V_LANE}
    v_mul_u32_u24 v{t0}, 672, v{t0}
    v_and_b32 v{t1}, 3, v{V_LANE}
    v_lshl_add_u32 v{t0}, v{t1}, 3, v{t0}
    v_add_u32 v{vWa}, s14, v{t0}
    """)
    for i in range(96):
        a(f"v_mov_b32 v{ACC+i}, 0")
    def reads(ks, buf):
        b = FR + 40 * buf
        x = [f"ds_read_b128 {R(b + 4*T)}, v{vX1 if ks else vX0} offset:{2048*T}" for T in range(4)]
        w = []
        for ct in range(6):
            sg, pi = ct // 2, ct % 2
            for j in range(2):
                w.append(f"ds_read_b64_tr_b16 {R(b + 16 + 4*ct + 2*j, 2)}, v{vWa} offset:{(32*ks + j)*336 + (7*sg + 4*pi)*8}")
        return w[:2] + x + w[2:]
    def mfmas(buf):
        b = FR + 40 * buf
        return [f"v_mfma_f32_16x16x32_bf16 {R(ACC + (ct*4+T)*4)}, {R(b + 16 + 4*ct)}, {R(b + 4*T)}, {R(ACC + (ct*4+T)*4)}"
                for ct in range(6) for T in range(4)]
    a("s_mov_b32 s9, 0\ns_barrier")
    stamp(a, 1)
    for f in reads(0, 0): a(f)
    gemm_loop(a, "a1", 7, STAGE, 4, reads, mfmas, ([vX0], [vX1], [vWa]), 9, 10, 11)
    stamp(a, 2)
    a(f"""
    s_waitcnt lgkmcnt(0)
    s_mul_i32 s9, s7, 6
    s_and_b32 s14, s{S_WAVE}, 1
    s_mul_i32 s14, s14, 3
    s_add_u32 s9, s9, s14
    s_lshl_b32 s10, s6, 3
    s_lshr_b32 s14, s{S_WAVE}, 1
    s_lshl_b32 s14, s14, 2
    s_add_u32 s10, s10, s14
    s_lshl_b32 s10, s10, 10
    s_add_u32 s10, s10, {WS_QKV}
    v_lshlrev_b32 v{t0}, 4, v{V_LANE}
    s_mov_b32 s56, 0
    s_mov_b32 s57, 0xffff0000
    """)
    for sg in range(3):
        a(f"""
        s_add_u32 s11, s9, {sg}
        s_lshl_b32 s12, s11, 17
        s_add_u32 s12, s12, s10
        s_cmp_lt_u32 s11, 16
        s_cselect_b32 s60, {f32bits(C2)}, 1.0
        s_cselect_b32 s61, {f32bits(C2)}, 1.0
        s_sub_u32 s14, s11, 16
        s_cmp_lt_u32 s14, 16
        s_cselect_b32 s14, 0, 0x3f80
        v_mov_b32 v{t1}, s14
        """)
        for T in range(4):
            d0 = ACC + ((2*sg)*4 + T)*4
            d1 = ACC + ((2*sg+1)*4 + T)*4
            o = FR + 4*((sg*4 + T) % 8)
            for d in (d0, d0+2, d1, d1+2):
                a(f"v_pk_mul_f32 {R(d,2)}, {R(d,2)}, s[60:61]")
            a(f"""
            v_cvt_pk_bf16_f32 v{o}, v{d0}, v{d0+1}
            v_cvt_pk_bf16_f32 v{o+1}, v{d0+2}, v{d0+3}
            v_cvt_pk_bf16_f32 v{o+2}, v{d1}, v{d1+1}
            v_cvt_pk_bf16_f32 v{o+3}, v{d1+2}, v{d1+3}
            v_cndmask_b32 v{o+2}, v{o+2}, v{t1}, s[56:57]
            v_cndmask_b32 v{o+3}, v{o+3}, 0, s[56:57]
            buffer_store_dwordx4 {R(o)}, v{t0}, {S4(SRD_WS)}, s12 offen offset:{1024*T}{SC}
            """)
            if sg*4 + T + 1 == Cfg.BPPOS: a("s_barrier")
    a(f"""
    s_lshl_b32 s9, s7, 4
    s_add_u32 s9, s9, s6
    s_lshl_b32 s9, s9, 2
    s_add_u32 s9, s9, s{S_WAVE}
    """)

B_X0, B_X1, B_E0, B_E1 = 14, 15, 16, 21
B_FR, B_ACC = 24, 104

def g0_bs(a):
    STAGE = SLOT
    t0, t1 = 17, 18
    FR, ACC = B_FR, B_ACC
    a(f"s_lshl_b32 s14, s{S_WAVE}, 12\ns_add_u32 s14, s14, {2*SLOT}")
    xfrag_addrs(a, B_X0, B_X1, t0, t1, 14)
    a(f"""
    v_subrev_u32 v{B_E0}, s14, v{B_X0}
    v_add_u32 v{B_E0}, {2*SLOT + 16384}, v{B_E0}
    v_xor_b32 v{B_E1}, 64, v{B_E0}
    """)
    for i in range(56):
        a(f"v_mov_b32 v{ACC+i}, 0")
    def reads(ks, buf):
        b = FR + 36 * buf
        f = [f"ds_read_b128 {R(b + 4*T)}, v{B_X1 if ks else B_X0} offset:{2048*T}" for T in range(2)]
        f += [f"ds_read_b128 {R(b + 8 + 4*t)}, v{B_E1 if ks else B_E0} offset:{2048*t}" for t in range(7)]
        return f
    def mfmas(buf):
        b = FR + 36 * buf
        return [f"v_mfma_f32_16x16x32_bf16 {R(ACC + (t*2+T)*4)}, {R(b + 4*T)}, {R(b + 8 + 4*t)}, {R(ACC + (t*2+T)*4)}"
                for t in range(7) for T in range(2)]
    a("s_mov_b32 s9, 2\ns_barrier")
    stamp(a, 1)
    for f in reads(0, 0): a(f)
    gemm_loop(a, "bs", 7, STAGE, 5, reads, mfmas, ([B_X0, B_E0], [B_X1, B_E1], []), 9, 10, 11)
    stamp(a, 2)
    a(f"""
    s_waitcnt lgkmcnt(0)
    s_mul_i32 s9, s7, {AT_NB}
    s_lshl_b32 s10, s6, 2
    s_add_u32 s10, s10, s{S_WAVE}
    s_mul_i32 s10, s10, 7168
    s_add_u32 s9, s9, s10
    s_add_u32 s9, s9, {WS_AT}
    s_add_u32 s10, s9, 4096
    v_lshlrev_b32 v{t0}, 4, v{V_LANE}
    """)
    for t in range(7):
        d0 = ACC + (t*2)*4
        d1 = d0 + 4
        o = FR + 4*t
        a(f"""
        v_cvt_pk_bf16_f32 v{o}, v{d0}, v{d0+1}
        v_cvt_pk_bf16_f32 v{o+1}, v{d0+2}, v{d0+3}
        v_cvt_pk_bf16_f32 v{o+2}, v{d1}, v{d1+1}
        v_cvt_pk_bf16_f32 v{o+3}, v{d1+2}, v{d1+3}
        buffer_store_dwordx4 {R(o)}, v{t0}, {S4(SRD_WS)}, s{9 if t < 4 else 10} offen offset:{1024*(t%4)}{SC}
        """)
    a(f"""
    s_lshl_b32 s9, s7, 4
    s_add_u32 s9, s9, s6
    s_add_u32 s9, s9, 128
    s_lshl_b32 s9, s9, 2
    s_add_u32 s9, s9, s{S_WAVE}
    """)

S_MB, S_NB, S_KQ, S_H, S_J, S_RB64, S_CT = 96, 97, 98, 99, 100, 101, 63

def jobs2(a):
    a(f"""
    s_lshr_b32 s{S_KQ}, s{S_XCD}, 1
    s_and_b32 s{S_MB}, s{S_XCD}, 1
    s_lshl_b32 s{S_MB}, s{S_MB}, 3
    s_and_b32 s14, s{S_LOC}, 7
    s_add_u32 s{S_MB}, s{S_MB}, s14
    s_lshr_b32 s{S_NB}, s{S_LOC}, 3
    s_lshl_b32 s{S_H}, s{S_XCD}, 1
    s_lshr_b32 s14, s{S_LOC}, 4
    s_add_u32 s{S_H}, s{S_H}, s14
    s_and_b32 s{S_J}, s{S_LOC}, 15
    s_mul_i32 s14, s{S_LOC}, 37
    s_lshr_b32 s14, s14, 8
    s_mul_i32 s15, s14, 7
    s_sub_u32 s{S_CT}, s{S_LOC}, s15
    s_min_u32 s14, s14, 3
    s_lshl_b32 s{S_RB64}, s{S_XCD}, 2
    s_add_u32 s{S_RB64}, s{S_RB64}, s14
    """)

A_Q = 160
A_CM0, A_CM8 = 168, 184
A_NM = 200
A_O = 216
A_S0, A_S1 = 232, 60
A_KF = 76
A_P = 248
A_VF, A_VF2 = 40, 48
A_KA, A_VA0, A_VA1, A_QA = 96, 97, 98, 99
A_M0, A_M1, A_T0 = 56, 57, 58
SA_O, SA_F, SA_MASK, SA_ROLE, SA_Q = 16, 17, 18, 90, 23

def attn_setup(a):
    t0, t1 = 17, 18
    a(f"""
    v_and_b32 v{t0}, 31, v{V_LANE}
    v_lshrrev_b32 v{t1}, 5, v{V_LANE}
    v_lshlrev_b32 v{t1}, 2, v{t1}
    v_sub_u32 v{t0}, v{t0}, v{t1}
    v_mov_b32 v{t1}, {NEGBIG}
    """)
    for i in range(16):
        kk = 8*(i//4) + i % 4
        a(f"""
        v_cmp_gt_i32 vcc, {kk}, v{t0}
        s_nop 1
        v_cndmask_b32 v{A_CM0+i}, v{t1}, 0, vcc
        v_cndmask_b32 v{A_CM8+i}, 0, v{t1}, vcc
        """)
    a(f"""
    v_bfe_u32 v{t0}, v{V_LANE}, 4, 1
    v_lshrrev_b32 v{t1}, 5, v{V_LANE}
    v_lshlrev_b32 v{t0}, 10, v{t0}
    v_lshl_add_u32 v{t0}, v{t1}, 8, v{t0}
    v_and_b32 v{t1}, 15, v{V_LANE}
    v_lshl_add_u32 v{A_QA}, v{t1}, 4, v{t0}
    s_lshl_b32 s14, s{S_WAVE}, 11
    s_add_u32 s15, s14, s{SG_K}
    v_add_u32 v{A_KA}, s15, v{A_QA}
    v_bfe_u32 v{t0}, v{V_LANE}, 4, 1
    v_bfe_u32 v{t1}, v{V_LANE}, 1, 1
    v_lshl_add_u32 v{t0}, v{t0}, 1, v{t1}
    v_lshrrev_b32 v{t1}, 5, v{V_LANE}
    v_add_u32 v{t1}, v{t1}, v{t0}
    v_and_b32 v{t1}, 3, v{t1}
    v_lshlrev_b32 v{t1}, 6, v{t1}
    v_lshl_add_u32 v{t0}, v{t0}, 8, v{t1}
    v_bfe_u32 v{t1}, v{V_LANE}, 2, 2
    v_lshl_add_u32 v{t0}, v{t1}, 4, v{t0}
    v_and_b32 v{t1}, 1, v{V_LANE}
    v_lshl_add_u32 v{t0}, v{t1}, 3, v{t0}
    s_add_u32 s15, s14, s{SG_V}
    v_add_u32 v{A_VA0}, s15, v{t0}
    v_xor_b32 v{A_VA1}, 128, v{A_VA0}
    s_lshl_b32 s15, s{S_H}, 17
    s_add_u32 s14, s14, s15
    s_lshl_b32 s15, s{S_J}, 13
    s_add_u32 s14, s14, s15
    s_add_u32 s{SA_O}, s14, {WS_O}
    s_add_u32 s{SA_Q}, s14, {WS_QKV}
    s_lshl_b32 s{SA_F}, s{S_J}, 1
    s_lshr_b32 s14, s{S_WAVE}, 1
    s_add_u32 s{SA_F}, s{SA_F}, s14
    s_lshl_b32 s{SA_F}, s{SA_F}, 4
    s_add_u32 s{SA_F}, s{SA_F}, s{S_H}
    s_lshl_b32 s{SA_F}, s{SA_F}, 1
    s_and_b32 s14, s{S_WAVE}, 1
    s_add_u32 s{SA_F}, s{SA_F}, s14
    s_mov_b32 s{SA_MASK}, 0
    s_mov_b32 s{SA_MASK+1}, -1
    """)

def qload_ops():
    return [f"buffer_load_dwordx4 {R(A_Q)}, v{A_QA}, {S4(SRD_WS)}, s{SA_Q} offen{SC}",
            f"buffer_load_dwordx4 {R(A_Q+4)}, v{A_QA}, {S4(SRD_WS)}, s{SA_Q} offen offset:512{SC}"]

def g0_attention(a):
    S = [A_S0, A_S1]
    def kread(t):
        b = A_KF + 8 * (t % 2)
        return [f"ds_read_b128 {R(b + 4*m)}, v{A_KA} offset:{2048*t + 512*m}" for m in range(2)]
    def vread(t):
        b = A_VF if t % 2 == 0 else A_VF2
        return [f"ds_read_b64_tr_b16 {R(b + 4*m + 2*jj, 2)}, v{A_VA1 if jj else A_VA0} offset:{2048*t + 1024*m}" for m in range(2) for jj in range(2)]
    def qk(t, c):
        b = A_KF + 8 * (t % 2)
        s = R(S[t % 2], 16)
        return [f"v_mfma_f32_32x32x16_bf16 {s}, {R(b)}, {R(A_Q)}, {c}",
                f"v_mfma_f32_32x32x16_bf16 {s}, {R(b+4)}, {R(A_Q+4)}, {s}"]
    def c1(t): return R(A_CM0, 16) if t == 0 else (R(A_CM8, 16) if t == 8 else "0")
    def c2(t): return R(A_CM0, 16) if t == 0 else (R(A_CM8, 16) if t == 8 else R(A_NM, 16))
    S3 = [A_S0, A_S1, A_O]
    KB = [A_KF, A_KF + 8, 24, 32]
    def kread1(t): return [f"ds_read_b128 {R(KB[t % 4] + 4*m)}, v{A_KA} offset:{2048*t + 512*m}" for m in range(2)]
    def qk1(t):
        b, s_ = KB[t % 4], R(S3[t % 3], 16)
        return [f"v_mfma_f32_32x32x16_bf16 {s_}, {R(b)}, {R(A_Q)}, {c1(t)}", f"v_mfma_f32_32x32x16_bf16 {s_}, {R(b+4)}, {R(A_Q+4)}, {s_}"]
    def maxes(t):
        s_ = S3[t % 3]
        return [f"v_max3_f32 v{A_M0 if i % 2 == 0 else A_M1}, v{s_+2*i}, v{s_+2*i+1}, v{A_M0 if i % 2 == 0 else A_M1}" for i in range(8)]
    for t in range(3):
        for f in kread1(t): a(f)
    a(f"v_mov_b32 v{A_M0}, {NEGBIG}\nv_mov_b32 v{A_M1}, {NEGBIG}")
    for it in range(11):
        tq, tm = it, it - 2
        q = qk1(tq) if tq <= 8 else [None, None]
        mx = maxes(tm) if tm >= 0 else []
        rd = kread1(tq + 3) if tq + 3 <= 8 else []
        if tq == 9: rd = kread(0) + kread(1)
        if tq == 10: rd = vread(0)
        if tq <= 8: a(f"s_waitcnt lgkmcnt({2 * (min(8, tq + 2) - tq)})")
        if q[0]: a(q[0])
        if tq >= 9:
            for f in rd: a(f)
            rd = []
        for f in mx[:4]: a(f)
        for f in rd[:1]: a(f)
        if q[1]: a(q[1])
        for f in mx[4:]: a(f)
        for f in rd[1:]: a(f)
        if it == 1: a("s_nop 4")
    a(f"""
    v_max_f32 v{A_M0}, v{A_M0}, v{A_M1}
    v_mov_b32 v{A_M1}, v{A_M0}
    s_nop 1
    v_permlane32_swap_b32 v{A_M0}, v{A_M1}
    v_max_f32 v{A_M0}, v{A_M0}, v{A_M1}
    v_sub_f32 v{A_NM}, 0, v{A_M0}
    v_sub_f32 v{A_NM+1}, 0, v{A_M0}
    """)
    for i in range(8):
        a(f"v_pk_add_f32 {R(A_CM0+2*i,2)}, {R(A_CM0+2*i,2)}, {R(A_NM,2)}")
    a("s_waitcnt lgkmcnt(0)\ns_nop 0")
    q0 = qk(0, c2(0))
    a(q0[0])
    for i in range(1, 8):
        a(f"v_pk_mov_b32 {R(A_NM+2*i,2)}, {R(A_NM,2)}, {R(A_NM,2)}")
    a(q0[1])
    for i in range(8):
        a(f"v_pk_add_f32 {R(A_CM8+2*i,2)}, {R(A_CM8+2*i,2)}, {R(A_NM,2)}")
    a("s_nop 3")
    O = R(A_O, 16)
    def pv(t, m):
        vb = A_VF if t % 2 == 0 else A_VF2
        c = "0" if (t == 0 and m == 0) else O
        return f"v_mfma_f32_32x32x16_bf16 {O}, {R(vb+4*m)}, {R(A_P+4*m)}, {c}"
    for t in range(9):
        s = S[t % 2]
        ex = [f"v_exp_f32 v{s+i}, v{s+i}" for i in range(16)]
        cv = [f"v_cvt_pk_bf16_f32 v{A_P+i}, v{s+2*i}, v{s+2*i+1}" for i in range(8)]
        nq = qk(t + 1, c2(t + 1)) if t + 1 <= 8 else [None, None]
        kr = kread(t + 2) if t + 2 <= 8 else []
        vr = vread(t + 1) if t + 1 <= 8 else []
        a(ex[0]); a(ex[1])
        if t > 0: a(pv(t - 1, 1))
        a(ex[2]); a(ex[3]); a(ex[4]); a(ex[5])
        a("s_waitcnt lgkmcnt(0)")
        if nq[0]: a(nq[0])
        a(ex[6]); a(ex[7]); a(ex[8])
        for f in cv[0:4]: a(f)
        if nq[1]: a(nq[1])
        for f in vr: a(f)
        a(ex[9]); a(ex[10]); a(ex[11])
        a(pv(t, 0))
        for f in kr: a(f)
        a(ex[12]); a(ex[13]); a(ex[14]); a(ex[15])
        a(cv[4]); a(cv[5]); a(cv[6]); a(cv[7])
    t0 = A_T0
    a(f"""
    v_lshrrev_b32 v{t0}, 5, v{V_LANE}
    v_lshl_add_u32 v{t0}, v{t0}, 8, v{A_QA}
    """)
    a(pv(8, 1))
    a(f"""
    s_nop 11
    v_mov_b32 v{A_M0}, v{A_O+12}
    v_mov_b32 v{A_M1}, v{A_O+12}
    s_nop 1
    v_permlane32_swap_b32 v{A_M0}, v{A_M1}
    v_rcp_f32 v{A_M1}, v{A_M1}
    s_nop 0
    v_mov_b32 v{A_M0}, v{A_M1}
    """)
    for i in range(8):
        a(f"v_pk_mul_f32 {R(A_O+2*i,2)}, {R(A_O+2*i,2)}, {R(A_M0,2)}")
    for i in range(8):
        a(f"v_cvt_pk_bf16_f32 v{A_P+i}, v{A_O+2*i}, v{A_O+2*i+1}")
    a(f"""
    v_cndmask_b32 v{A_P+6}, v{A_P+6}, 0, s[{SA_MASK}:{SA_MASK+1}]
    v_cndmask_b32 v{A_P+7}, v{A_P+7}, 0, s[{SA_MASK}:{SA_MASK+1}]
    buffer_store_dwordx4 {R(A_P)}, v{t0}, {S4(SRD_WS)}, s{SA_O} offen{SC}
    buffer_store_dwordx4 {R(A_P+4)}, v{t0}, {S4(SRD_WS)}, s{SA_O} offen offset:256{SC}
    """)

def ab_poll_addr(a, v, sreg, partner=False):
    _ab_poll_addr(a, v, sreg)
    if partner:
        a(f"v_lshrrev_b32 v17, 5, v{V_LANE}\nv_lshl_add_u32 v{v}, v17, {FS + 7}, v{v}")

def _ab_poll_addr(a, v, sreg):
    a(f"""
    s_lshr_b32 s15, s{S_KQ}, 1
    s_lshl_b32 s15, s15, 2
    s_add_u32 s15, s15, s{S_NB}
    s_lshl_b32 s15, s15, 4
    s_and_b32 s14, s{S_KQ}, 1
    s_lshl_b32 s14, s14, 3
    s_add_u32 s15, s15, s14
    s_add_u32 s15, s15, 128
    s_lshl_b32 s{sreg}, s15, {FS + 2}
    v_and_b32 v{v}, 31, v{V_LANE}
    v_lshlrev_b32 v{v}, {FS}, v{v}
    """)

def g0_program(a):
    FR, ACC = B_FR, B_ACC
    t0, t1 = 17, 18
    a(f"s_cmp_ge_u32 s{S_LOC}, 16\ns_cbranch_scc1 g0_p1b")
    na = NAof(0)
    a(f"""
    s_mov_b32 s{SG_N1}, {na - 1}
    s_mov_b32 s{SG_N2}, {16 - na - 1 - Cfg.FDEL}
    s_mov_b32 s{SG_D}, {(item_base(na + 2) - item_base(na)) & 0xffffffff}
    s_mov_b32 s{SG_SL}, {(na + 2 + 4) % 5}
    s_mov_b32 s{SG_K}, {item_base(na)}
    s_mov_b32 s{SG_V}, {item_base(na + 1)}
    """)
    g0_a1(a)
    a("s_branch g0_p1done\ng0_p1b:")
    na = NAof(1)
    a(f"""
    s_mov_b32 s{SG_N1}, {na - 1}
    s_mov_b32 s{SG_N2}, {16 - na - 1 - Cfg.FDEL}
    s_mov_b32 s{SG_D}, {(item_base(na + 2) - item_base(na)) & 0xffffffff}
    s_mov_b32 s{SG_SL}, {(na + 2 + 4) % 5}
    s_mov_b32 s{SG_K}, {item_base(na)}
    s_mov_b32 s{SG_V}, {item_base(na + 1)}
    """)
    g0_bs(a)
    a("g0_p1done:")
    stamp(a, 3)
    a(f"s_lshl_b32 s14, s{S_WAVE}, 12\ns_add_u32 s14, s14, {item_base(0)}")
    xfrag_addrs(a, B_X0, B_X1, t0, t1, 14)
    a(f"""
    v_lshlrev_b32 v{B_E0}, 4, v{V_LANE}
    v_add_u32 v{B_E0}, {item_base(0) + 16384}, v{B_E0}
    """)
    for i in range(56):
        a(f"v_mov_b32 v{ACC+i}, 0")
    a("s_waitcnt vmcnt(0)")
    flag_store(a, 9, WS_F1, t0, t1)
    stamp(a, 4)
    a(f"s_cmp_lt_u32 s{S_LOC}, 16\ns_cbranch_scc1 g0_t1\ns_barrier\ng0_t1:")
    attn_setup(a)
    a(f"s_cmp_lt_u32 s{S_LOC}, 16\ns_cbranch_scc1 g0_t2")
    a(f"s_cmp_lg_u32 s{S_WAVE}, 0\ns_cbranch_scc1 g0_nopoll")
    if Cfg.HELP:
        ab_poll_addr(a, 2, 56, partner=True)
        a(f"s_sub_u32 s56, s56, {128 << FS}")
        poll_blocking(a, 2, 56, t1, "pab")
    else:
        ab_poll_addr(a, t0, 56)
        poll_blocking(a, t0, 56, t1, "pab")
    a("g0_nopoll:\ns_barrier\ng0_t2:")
    def reads(ks, buf):
        b = FR + 36 * buf
        f = [f"ds_read_b128 {R(b + 4*T)}, v{B_X1 if ks else B_X0} offset:{2048*T}" for T in range(2)]
        f += [f"ds_read_b128 {R(b + 8 + 4*t)}, v{B_E0} offset:{7168*ks + 1024*t}" for t in range(7)]
        return f
    def mfmas(buf):
        b = FR + 36 * buf
        order = [(t, T) for t in range(7) for T in range(2)]
        if Cfg.MORD == 1: order = [(t, T) for T in range(2) for t in range(7)]
        if Cfg.MORD == 2: order = [(t, (T if t % 2 == 0 else 1 - T)) for t in range(7) for T in range(2)]
        return [f"v_mfma_f32_16x16x32_bf16 {R(ACC + (t*2+T)*4)}, {R(b + 8 + 4*t)}, {R(b + 4*T)}, {R(ACC + (t*2+T)*4)}"
                for t, T in order]
    AR = [B_X0, B_X1, B_E0]
    AR3 = ([B_X0], [B_X1], [B_E0])
    a("s_mov_b32 s8, 4\ns_barrier")
    stamp(a, 5)
    for f in reads(0, 0): a(f)
    gemm_loop(a, "bb1", f"s{SG_N1}", SLOT, 5, reads, mfmas, AR3, 8, 10, 11)
    for f in qload_ops(): a(f)
    gemm_loop(a, "bb1b", 1, SLOT, 5, reads, mfmas, AR3, 8, 10, 11, strict=True)
    stamp(a, 6)
    for r in AR:
        a(f"v_add_u32 v{r}, s{SG_D}, v{r}")
    a(f"s_mov_b32 s8, s{SG_SL}\ns_waitcnt vmcnt(0)")
    g0_attention(a)
    stamp(a, 7)
    a("s_barrier")
    for f in reads(0, 0): a(f)
    gemm_loop(a, "bb2", Cfg.FDEL, SLOT, 5, reads, mfmas, AR3, 8, 10, 11)
    a("s_waitcnt vmcnt(0)")
    flag_store(a, SA_F, WS_F2, t0, t1)
    gemm_loop(a, "bb3", f"s{SG_N2}", SLOT, 5, reads, mfmas, AR3, 8, 10, 11)
    ladder_step(a, mfmas(0), reads(0, 0), reads(1, 1), [])
    ladder_step(a, mfmas(1), reads(1, 1), [], [])
    stamp(a, 8)
    a(f"""
    s_waitcnt lgkmcnt(0)
    s_lshl_b32 s9, s{S_MB}, 2
    s_add_u32 s9, s9, s{S_NB}
    s_lshl_b32 s9, s9, 4
    s_lshl_b32 s10, s{S_KQ}, 2
    s_add_u32 s10, s10, s9
    s_add_u32 s10, s10, s{S_WAVE}
    s_lshl_b32 s10, s10, 13
    s_add_u32 s10, s10, {WS_PQ}
    s_add_u32 s11, s10, 4096
    v_lshlrev_b32 v{t0}, 4, v{V_LANE}
    """)
    PK = 24
    OWNB = item_base(17)
    if Cfg.OWN: a(f"s_cmp_lg_u32 s{S_WAVE}, s{S_KQ}\ns_cselect_b64 vcc, -1, 0")
    for T in range(2):
        def val(v): return ACC + ((v // 4)*2 + T)*4 + v % 4
        for i in range(4):
            o = PK + 4*(T*4 + i)
            for d in range(3):
                a(f"v_cvt_pk_bf16_f32 v{o+d}, v{val(7*i+2*d)}, v{val(7*i+2*d+1)}")
            a(f"v_cvt_pk_bf16_f32 v{o+3}, v{val(7*i+6)}, s{S_TAGF}")
            st_ = f"buffer_store_dwordx4 {R(o)}, v{t0}, {S4(SRD_WS)}, s{10+T} offen offset:{1024*i}{SC}"
            if Cfg.OWN:
                l = a.newlabel("pub")
                a(f"s_cbranch_vccz {l}\n{st_}\n{l}:")
            else: a(st_)
    a("s_barrier")
    if Cfg.OWN:
        a(f"s_cbranch_vccnz own_done\nv_add_u32 v{t1}, {OWNB}, v{t0}")
        for u in range(8): a(f"ds_write_b128 v{t1}, {R(PK + 4*u)} offset:{1024*u}")
        a("s_waitcnt lgkmcnt(0)\nown_done:")
    DA = 104
    WA = 4
    OA = 12
    a(f"""
    v_lshrrev_b32 v{WA}, 4, v{V_LANE}
    v_lshlrev_b32 v{WA}, 3, v{WA}
    v_bfe_u32 v{t1}, v{V_LANE}, 2, 2
    v_add_u32 v{WA}, v{WA}, v{t1}
    v_lshlrev_b32 v{WA}, 7, v{WA}
    v_bfe_u32 v{t1}, v{V_LANE}, 3, 2
    v_lshl_add_u32 v{WA}, v{t1}, 5, v{WA}
    v_and_b32 v{t1}, 3, v{V_LANE}
    v_lshl_add_u32 v{WA}, v{t1}, 3, v{WA}
    v_add_u32 v{WA}, {item_base(18)}, v{WA}
    s_and_b32 s13, s{S_WAVE}, 1
    s_lshl_b32 s13, s13, 6
    v_xor_b32 v{WA}, s13, v{WA}
    v_xor_b32 v{WA+1}, 32, v{WA}
    s_lshr_b32 s15, s{S_WAVE}, 1
    s_lshl_b32 s14, s15, 11
    s_add_u32 s14, s14, {item_base(20)}
    v_add_u32 v{OA}, s14, v{t0}
    s_mov_b32 s11, 16384
    s_lshl_b32 s12, s{S_RB64}, 6
    s_lshl_b32 s15, s15, 5
    s_add_u32 s12, s12, s15
    s_mul_i32 s12, s12, 1792
    s_lshl_b32 s15, s{S_CT}, 7
    s_add_u32 s12, s12, s15
    s_add_u32 s12, s12, s13
    s_add_u32 s13, s12, {16*1792}
    v_and_b32 v{t0}, 15, v{V_LANE}
    v_mul_u32_u24 v{t0}, 1792, v{t0}
    v_lshrrev_b32 v{t1}, 5, v{V_LANE}
    v_lshl_add_u32 v{t0}, v{t1}, 4, v{t0}
    v_bfe_u32 v{t1}, v{V_LANE}, 4, 1
    v_lshl_add_u32 v{t0}, v{t1}, 5, v{t0}
    """)
    for i in range(16): a(f"v_mov_b32 v{DA+i}, 0")
    stamp(a, 9)
    a(f"""
    s_barrier
    s_cmp_ge_u32 s{S_LOC}, 28
    s_cbranch_scc1 g0_done
    """)
    WF = 128
    def wread(hh, buf):
        b = WF + 16 * buf
        f = [f"ds_read_b64_tr_b16 {R(b + 2*jj, 2)}, v{WA} offset:{4096*hh + 512*jj}" for jj in range(2)]
        f += [f"ds_read_b128 {R(b + 8 + 4*T)}, v{OA} offset:{4096*hh + 1024*T}" for T in range(2)]
        f += [f"ds_read_b64_tr_b16 {R(b + 4 + 2*jj, 2)}, v{WA+1} offset:{4096*hh + 512*jj}" for jj in range(2)]
        return f
    def mf(buf):
        b = WF + 16 * buf
        return [f"v_mfma_f32_16x16x32_bf16 {R(DA + 8*T + 4*tau)}, {R(b + 4*tau)}, {R(b + 8 + 4*T)}, {R(DA + 8*T + 4*tau)}" for tau in range(2) for T in range(2)]
    for f in wread(0, 0) + wread(1, 1): a(f)
    dW = item_base(19) - item_base(18) - 16384
    dO = item_base(21) - item_base(20) - 16384
    a(f"s_mov_b32 s10, 0\na3_loop:")
    ladder_step(a, mf(0) + mf(1), wread(0, 0) + wread(1, 1), wread(2, 2) + wread(3, 3), [])
    a(f"s_cmp_eq_u32 s10, 1\ns_cselect_b32 s14, {dW & 0xffffffff}, s11\ns_cselect_b32 s15, {dO & 0xffffffff}, s11")
    a(f"v_add_u32 v{WA}, s14, v{WA}\nv_add_u32 v{WA+1}, s14, v{WA+1}\nv_add_u32 v{OA}, s15, v{OA}")
    ladder_step(a, mf(2) + mf(3), wread(2, 2) + wread(3, 3), wread(0, 0) + wread(1, 1), [])
    a("s_add_u32 s10, s10, 1\ns_cmp_lt_u32 s10, 4\ns_cbranch_scc1 a3_loop")
    a("s_nop 7")
    for n in range(4):
        d = DA + 4*n
        a(f"v_cvt_pk_bf16_f32 v{60+2*n}, v{d}, v{d+1}\nv_cvt_pk_bf16_f32 v{60+2*n+1}, v{d+2}, v{d+3}")
    a(f"""
    s_nop 1
    v_permlane16_swap_b32 v60, v62
    v_permlane16_swap_b32 v61, v63
    v_permlane16_swap_b32 v64, v66
    v_permlane16_swap_b32 v65, v67
    buffer_store_dwordx4 v[60:63], v{t0}, {S4(SRD_OUT)}, s12 offen
    buffer_store_dwordx4 v[64:67], v{t0}, {S4(SRD_OUT)}, s13 offen
    """)
    a("g0_done:")
    stamp(a, 10)
    if Cfg.stamps: a("s_waitcnt vmcnt(0)")
    stamp(a, 11)
    stamp(a, 15, True)
    dump_stamps(a, 0)
    if Cfg.DBGOUT >= 0:
        a(f"""
        s_cmp_lg_u32 s2, {Cfg.DBGOUT}
        s_cbranch_scc1 dbg_done
        s_cmp_lg_u32 s{S_WAVE}, 0
        s_cbranch_scc1 dbg_done
        s_load_dwordx2 s[40:41], s[0:1], 72
        s_waitcnt lgkmcnt(0)
        s_and_b32 s41, s41, 0xffff
        s_mov_b32 s42, 256
        s_mov_b32 s43, 0x20000
        v_mov_b32 v2, 0
        """)
        for i in range(12):
            a(f"s_sub_u32 s14, s{S_ST+2*i}, s{S_ST}\nv_mov_b32 v3, s14\nbuffer_store_dword v3, v2, s[40:43], 0 offen offset:{4*i}")
        a(f"s_sub_u32 s14, s{S_ST+30}, s{S_ST+28}\nv_mov_b32 v3, s14\nbuffer_store_dword v3, v2, s[40:43], 0 offen offset:48")
        a("dbg_done:")
    a("s_endpgm")

def dma(vm, tag, m0base, m0imm, vaddr, srd_, soff, lanes=64, sc=""):
    pre, post = "s_nop 0", ""
    if lanes == 16: pre, post = "s_mov_b64 exec, 0xffff", "\ns_mov_b64 exec, -1"
    if lanes == 32: pre, post = "s_mov_b32 exec_hi, 0", "\ns_mov_b32 exec_hi, -1"
    vm.op(tag, f"s_add_u32 m0, s{m0base}, {m0imm}\n{pre}\nbuffer_load_dwordx4 v{vaddr}, {S4(srd_)}, s{soff} offen{sc} lds{post}")

def x_dma_addrs(a, vXd, srow, rowbytes, permute, t0, t1, t2):
    if not permute:
        a(f"v_lshrrev_b32 v{t0}, 3, v{V_LANE}")
        o1, o2 = 8, 16
    else:
        a(f"""v_lshrrev_b32 v{t0}, 5, v{V_LANE}
        v_bfe_u32 v{t1}, v{V_LANE}, 3, 2
        v_lshl_add_u32 v{t0}, v{t0}, 3, v{t1}""")
        o1, o2 = 16, 4
    a(f"""
    v_add_u32 v{t0}, s{srow}, v{t0}
    v_mul_u32_u24 v{t0}, {rowbytes}, v{t0}
    v_and_b32 v{t1}, 7, v{V_LANE}
    v_lshrrev_b32 v{t2}, 4, v{V_LANE}
    v_xor_b32 v{t1}, v{t1}, v{t2}
    v_lshl_add_u32 v{vXd}, v{t1}, 4, v{t0}
    v_xor_b32 v{t1}, 4, v{t1}
    v_lshl_add_u32 v{vXd+1}, v{t1}, 4, v{t0}
    v_add_u32 v{vXd+1}, {o1*rowbytes}, v{vXd+1}
    v_add_u32 v{vXd+2}, {o2*rowbytes}, v{vXd}
    v_add_u32 v{vXd+3}, {o2*rowbytes}, v{vXd+1}
    """)

V_TR = 100
def g1bar(a, b):
    a("s_barrier")
    if Cfg.stamps:
        if b > 0: a(f"s_waitcnt lgkmcnt(0)\nv_writelane_b32 v{V_TR}, s88, {b-1}")
        a("s_memrealtime s[88:89]")

class Stream:
    def __init__(self, a, vm):
        self.a, self.vm, self.ops, self.pos = a, vm, [], 0
        self.hook = None
    def add(self, tag, need, avail, emits):
        for e in emits: self.ops.append((tag, need, avail, e))
    def run_to(self, b, la, maxops=999):
        last_needed = max([i for i, o in enumerate(self.ops) if o[1] <= b] + [-1])
        while self.pos < len(self.ops):
            tag, need, avail, e = self.ops[self.pos]
            if avail >= b:
                assert self.pos > last_needed, (b, tag)
                break
            if self.pos > last_needed + la: break
            if self.pos > last_needed and maxops <= 0: break
            e(); self.pos += 1; maxops -= 1
        if self.hook: self.hook(); self.hook = None
        tags = [o[0] for o in self.ops[:last_needed + 1]]
        pend = [t for t in self.vm.q if t in set(tags)]
        if pend: self.vm.wait(pend[-1])

G_XD, G_WD, G_CD, G_L16, G_PK, G_PO, G_PT, G_VD, G_WO = 4, 8, 24, 28, 29, 30, 31, 32, 33
G_TA, G_DUM, G_PA = 36, 38, 39
def g1_bbig_setup(a):
    t0, t1, t2 = 17, 18, 19
    a(f"""
    s_lshl_b32 s15, s{S_MB}, 7
    s_lshl_b32 s14, s{S_WAVE}, 5
    s_add_u32 s15, s15, s14
    """)
    x_dma_addrs(a, G_CD, 15, 4096, False, t0, t1, t2)
    a(f"s_cmp_lt_u32 s{S_KQ}, 2")
    srd_sel(a, SRD_C, P_CR, P_CI, 2048 * 4096)
    a(f"""
    v_lshlrev_b32 v{G_L16}, 4, v{V_LANE}
    s_and_b32 s14, s{S_KQ}, 1
    s_lshl_b32 s7, s14, 11
    s_mul_i32 s6, s14, {32*7168}
    s_lshr_b32 s15, s{S_KQ}, 1
    s_lshl_b32 s15, s15, 2
    s_add_u32 s15, s15, s{S_NB}
    s_mul_i32 s15, s15, {AT_NB}
    s_add_u32 s6, s6, s15
    s_mul_i32 s15, s{S_WAVE}, 3584
    s_add_u32 s6, s6, s15
    s_add_u32 s6, s6, {WS_AT}
    s_add_u32 s61, s15, 16384
    s_lshl_b32 s60, s{S_WAVE}, 12
    s_lshl_b32 s62, s{S_WAVE}, 10
    s_and_b32 s11, s{S_LOC}, 7
    s_and_b32 s14, s{S_NB}, 1
    s_lshl_b32 s14, s14, 2
    s_add_u32 s11, s11, s14
    s_cmp_lt_u32 s{S_NB}, 2
    s_cselect_b32 s14, 2, 0
    s_add_u32 s11, s11, s14
    s_and_b32 s30, s{S_XCD}, {Cfg.SWAP}
    s_lshl_b32 s30, s30, 3
    s_xor_b32 s31, s30, 8
    {"s_and_b32 s11, s%d, 7" % S_LOC if Cfg.NOROT else ""}
    """)

def touch_setup(a):
    t0, t1, t2 = 17, 18, 19
    a(f"""
    s_lshl_b32 s15, s{S_MB}, 7
    s_lshl_b32 s14, s{S_WAVE}, 5
    s_add_u32 s15, s15, s14
    v_lshrrev_b32 v{t0}, 1, v{V_LANE}
    v_add_u32 v{t0}, s15, v{t0}
    v_lshlrev_b32 v{t0}, 12, v{t0}
    v_and_b32 v{t1}, 1, v{V_LANE}
    v_add_u32 v{t1}, s11, v{t1}
    v_and_b32 v{t2}, 7, v{t1}
    v_lshl_add_u32 v{G_TA}, v{t2}, 7, v{t0}
    v_add_u32 v{t1}, 2, v{t1}
    v_and_b32 v{t2}, 7, v{t1}
    v_lshl_add_u32 v{G_TA+1}, v{t2}, 7, v{t0}
    """)
def touch_ops(a, vm, off=0):
    nt = " nt" if Cfg.NT_TOUCH else ""
    return [(lambda i=i: vm.op("touch", f"buffer_load_dword v{G_DUM}, v{G_TA+i}, {S4(SRD_C)}, s7 offen offset:{off}{nt}")) for i in range(2)]

def stage_item(s): return s if s < Cfg.NA else s + 2
def x_ops(a, vm, s, nt=None):
    base = item_base(stage_item(s))
    if nt is None: nt = bool(Cfg.NT_TOUCH and (s < 2 or (s in (8, 9) and Cfg.NA == 8)))
    def mk(i):
        def e():
            if i == 0:
                a(f"s_add_u32 s14, s11, {s}\ns_and_b32 s14, s14, 7\ns_or_b32 s14, s14, s{30 + (s >> 3)}\ns_lshl_b32 s0, s14, 7\ns_add_u32 s0, s0, s7")
            dma(vm, ("x", s), 60, base + i*1024, G_CD + i, SRD_C, 0, sc=(" nt" if nt else ""))
        return e
    return [mk(i) for i in range(4)]
def e_ops(a, vm, s):
    base = item_base(stage_item(s))
    ent = " nt" if (Cfg.LASTNT and (s & 7) == 7) else ""
    def mk(i):
        def e():
            if i == 0:
                a(f"s_add_u32 s14, s11, {s}\ns_and_b32 s14, s14, 7\ns_or_b32 s14, s14, s{30 + (s >> 3)}\ns_mul_i32 s1, s14, 14336\ns_add_u32 s1, s1, s6")
            pre, post = ("s_nop 0", "") if i < 3 else ("s_mov_b32 exec_hi, 0", "\ns_mov_b32 exec_hi, -1")
            vm.op(("e", s), f"s_add_u32 m0, s61, {base}\n{pre}\nbuffer_load_dwordx4 v{G_L16}, {S4(SRD_WS)}, s1 offen offset:{1024*i}{SC}{ent} lds{post}")
        return e
    return [mk(i) for i in range(4)]

X_AVAIL = [4, 5, 6, 7, 7]

def g1_p1(a, typ):
    vXd, vWd = G_XD, G_WD
    t0, t1, t2, t3 = 17, 18, 19, 20
    sX, sW, sC, sT, sM0x, sM0w = 9, 10, 8, 11, 12, 13
    stepW = 64*2688 if typ == 0 else 128
    def sbase(c): return (c % 4) * 37888 if typ == 0 else ((c + 2) % 5) * SLOT
    nslot = 4 if typ == 0 else 5
    ntp = " nt" if Cfg.NT_P1 in (1, 2, 4) else ""
    def ntc(c): return " nt" if (Cfg.NT_P1 == 1 or (Cfg.NT_P1 == 2 and c < 2) or (Cfg.NT_P1 == 3 and c >= 5) or (Cfg.NT_P1 == 4 and (c >= 5 or c < 2))) else ""
    a(f"""
    s_lshl_b32 s{sT}, s6, 7
    s_lshl_b32 s14, s{S_WAVE}, 5
    s_add_u32 s{sT}, s{sT}, s14
    """)
    x_dma_addrs(a, vXd, sT, 896, typ == 1, t0, t1, t2)
    a(f"s_lshl_b32 s{sM0x}, s{S_WAVE}, 12\ns_lshl_b32 s{sX}, s{sC}, 7\ns_waitcnt lgkmcnt(0)")
    srd(a, SRD_X, P_AX if typ == 0 else P_BX, 2048 * 896)
    vm = VM(a)
    if typ == 0 and Cfg.A1LATE:
        epoch_load(a)
    stamp(a, 1)
    for i in range(4):
        dma(vm, ("p", 0), sM0x, sbase(0) + i*1024, vXd+i, SRD_X, sX, sc=ntp)
    if typ == 0:
        srd(a, SRD_W, P_WQKV, 448 * 2688)
        a(f"""
        s_mul_i32 s{sT}, s{S_WAVE}, {16*2688}
        s_mul_i32 s14, s7, 336
        s_add_u32 s{sT}, s{sT}, s14
        """)
        nw, wbytes = 6, 5376
        def waddr(i):
            a(f"""
            v_add_u32 v{t0}, {64*i}, v{V_LANE}
            v_mul_u32_u24 v{t1}, 3121, v{t0}
            v_lshrrev_b32 v{t1}, 16, v{t1}
            v_mul_u32_u24 v{t2}, 21, v{t1}
            v_sub_u32 v{t0}, v{t0}, v{t2}
            v_and_b32 v{t2}, 8, v{t1}
            v_and_b32 v{t3}, 1, v{t1}
            v_lshl_add_u32 v{t2}, v{t3}, 2, v{t2}
            v_bfe_u32 v{t3}, v{t1}, 1, 2
            v_add_u32 v{t2}, v{t2}, v{t3}
            v_mul_u32_u24 v{t2}, 2688, v{t2}
            v_lshl_add_u32 v{t2}, v{t0}, 4, v{t2}
            v_add_u32 v{vWd+i}, s{sT}, v{t2}
            """)
    else:
        a("s_cmp_lt_u32 s7, 4")
        srd_sel(a, SRD_W, P_DR, P_DI, 448 * 896)
        a(f"""
        s_and_b32 s{sT}, s7, 3
        s_mul_i32 s{sT}, s{sT}, 112
        s_mul_i32 s15, s{S_WAVE}, 28
        """)
        nw, wbytes = 4, 3584
        def waddr(i):
            a(f"""
            v_lshrrev_b32 v{t0}, 3, v{V_LANE}
            v_add3_u32 v{t0}, v{t0}, s15, {8*i}
            v_bfe_u32 v{t1}, v{t0}, 2, 2
            v_mul_u32_u24 v{t1}, 28, v{t1}
            v_lshrrev_b32 v{t2}, 4, v{t0}
            v_lshl_add_u32 v{t1}, v{t2}, 2, v{t1}
            v_and_b32 v{t2}, 3, v{t0}
            v_add3_u32 v{t1}, v{t1}, v{t2}, s{sT}
            v_mul_u32_u24 v{t1}, 896, v{t1}
            v_bfe_u32 v{t2}, v{t0}, 1, 3
            v_and_b32 v{t3}, 7, v{V_LANE}
            v_xor_b32 v{t2}, v{t2}, v{t3}
            v_lshl_add_u32 v{vWd+i}, v{t2}, 4, v{t1}
            """)
    a(f"""
    s_mul_i32 s{sM0w}, s{S_WAVE}, {wbytes}
    s_add_u32 s{sM0w}, s{sM0w}, 16384
    s_mul_i32 s{sW}, s{sC}, {stepW}
    """)
    def wl(i): return 64 if i < nw - 1 else (16 if typ == 0 else 32)
    for i in range(nw):
        waddr(i)
        dma(vm, ("p", 0), sM0w, sbase(0) + i*1024, vWd+i, SRD_W, sW, lanes=wl(i), sc=ntp)
    st = Stream(a, vm)
    st.add(("p", 0), 0, -1, [])
    def pops(c):
        ops = []
        def mkx(i):
            def e():
                if i == 0:
                    a(f"s_add_u32 s{sC}, s{sC}, 1\ns_cmp_eq_u32 s{sC}, 7\ns_cselect_b32 s{sC}, 0, s{sC}\ns_lshl_b32 s{sX}, s{sC}, 7\ns_mul_i32 s{sW}, s{sC}, {stepW}")
                dma(vm, ("p", c), sM0x, sbase(c) + i*1024, vXd+i, SRD_X, sX, sc=ntc(c))
            return e
        def mkw(i):
            return lambda: dma(vm, ("p", c), sM0w, sbase(c) + i*1024, vWd+i, SRD_W, sW, lanes=wl(i), sc=ntc(c))
        return [mkx(i) for i in range(4)] + [mkw(i) for i in range(nw)]
    tpos = Cfg.TPOS_A if typ == 0 else 77
    for c in range(1, 7):
        st.add(("p", c), c, (c - nslot + 2) if c >= nslot else -1, pops(c))
        if tpos == c: st.add("touch", c + 1 if c < 6 else 99, -1, touch_ops(a, vm))
    st.run_to(0, Cfg.LA0)
    jobs2(a)
    g1_bbig_setup(a)
    touch_setup(a)
    if tpos == 0:
        for e in touch_ops(a, vm): e()
    if not (typ == 0 and Cfg.A1LATE): epoch_load(a)
    srd(a, SRD_WS, P_WS, WS_SIZE)
    srd(a, SRD_OUT, P_OUT, 2048 * 1792)
    stamp(a, 2)
    vm.wait(("p", 0))
    g1bar(a, 0)
    for b in range(1, 7):
        st.run_to(b, Cfg.LA1 if b > 1 else Cfg.LAB1)
        g1bar(a, b)
    st.run_to(7, 99)
    assert st.pos == len(st.ops)
    return list(vm.q)

def epoch_load(a):
    a(f"""
    s_add_u32 s14, s{P_WS}, {WS_EPOCH}
    s_addc_u32 s15, s{P_WS+1}, 0
    s_load_dword s39, s[14:15], 0
    s_waitcnt lgkmcnt(0)
    s_mul_i32 s{S_TAG}, s39, 0x19660d
    s_add_u32 s{S_TAG}, s{S_TAG}, 0x3c6ef35f
    s_and_b32 s14, s{S_TAG}, 0xfff
    s_or_b32 s14, s14, 0x4000
    s_lshr_b32 s15, s39, 16
    s_cmp_eq_u32 s14, s15
    s_cselect_b32 s15, 0x1000, 0
    s_or_b32 s14, s14, s15
    s_lshl_b32 s{S_TAGF}, s14, 16
    """)

def g1_common_setup(a):
    t0, t1, t2 = 17, 18, 19
    a(f"""
    v_and_b32 v{t0}, 31, v{V_LANE}
    v_lshlrev_b32 v{G_PO}, {FS}, v{t0}
    s_lshl_b32 s13, s{S_RB64}, {FS + 5}
    s_add_u32 s13, s13, {WS_F2}
    v_lshrrev_b32 v{t0}, 3, v{V_LANE}
    v_mul_u32_u24 v{t0}, 896, v{t0}
    v_and_b32 v{t1}, 7, v{V_LANE}
    v_bfe_u32 v{t2}, v{V_LANE}, 4, 1
    v_lshlrev_b32 v{t2}, 1, v{t2}
    v_xor_b32 v{t1}, v{t1}, v{t2}
    v_lshl_add_u32 v{G_WO}, v{t1}, 4, v{t0}
    v_xor_b32 v{t1}, 4, v{t1}
    v_lshl_add_u32 v{G_WO+1}, v{t1}, 4, v{t0}
    v_mov_b32 v{t2}, 0x7ffffff0
    v_cmp_gt_u32 vcc, 32, v{V_LANE}
    s_mul_i32 s9, s{S_WAVE}, {28*896}
    s_lshl_b32 s14, s{S_CT}, 7
    v_cndmask_b32 v{G_WO+2}, v{t2}, v{G_WO+1}, vcc
    s_add_u32 s9, s9, s14
    """)
    srd(a, SRD_W, P_WO, 448 * 896)

def g1_kv_setup(a):
    t0, t1, t2 = 17, 18, 19
    for kind in range(3):
        a(f"""
        s_add_u32 s14, s{S_H}, {16*kind}
        s_mul_i32 s15, s14, 43
        s_lshr_b32 s15, s15, 8
        s_mul_i32 s12, s15, 6
        s_sub_u32 s14, s14, s12
        s_cmp_ge_u32 s14, 3
        s_cselect_b32 s14, 1, 0
        s_lshl_b32 s15, s15, 6
        s_add_u32 s{24+kind}, s15, s14
        """)
    a(f"""
    v_mov_b32 v{t0}, s26
    v_mov_b32 v{t1}, s25
    v_cmp_gt_u32 vcc, 16, v{V_LANE}
    v_mov_b32 v{t2}, s24
    s_nop 0
    v_cndmask_b32 v{t0}, v{t0}, v{t1}, vcc
    v_cmp_gt_u32 vcc, 8, v{V_LANE}
    v_bfe_u32 v{t1}, v{V_LANE}, 1, 2
    v_min_u32 v{t1}, 2, v{t1}
    v_cndmask_b32 v{t0}, v{t0}, v{t2}, vcc
    v_sub_u32 v{t1}, s{S_J}, v{t1}
    v_max_i32 v{t1}, 0, v{t1}
    v_lshl_add_u32 v{t0}, v{t1}, 2, v{t0}
    v_and_b32 v{t1}, 1, v{V_LANE}
    v_lshl_add_u32 v{t0}, v{t1}, 1, v{t0}
    v_lshlrev_b32 v{G_PK}, {FS}, v{t0}
    s_mov_b32 s12, {WS_F1}
    v_lshrrev_b32 v{t0}, 4, v{V_LANE}
    v_lshlrev_b32 v{t1}, 2, v{t0}
    v_sub_u32 v{t1}, v{V_LANE}, v{t1}
    v_and_b32 v{t1}, 15, v{t1}
    v_lshlrev_b32 v{t1}, 4, v{t1}
    v_lshl_add_u32 v{G_VD}, v{t0}, 8, v{t1}
    s_lshl_b32 s8, s{S_H}, 17
    s_add_u32 s8, s8, {WS_QKV + 16*131072}
    s_lshl_b32 s10, s{S_J}, 3
    s_add_u32 s10, s10, s{S_WAVE}
    s_sub_u32 s10, s10, 16
    """)

def g1_phase2(a, typ):
    NA = Cfg.NA = NAof(typ)
    t0, t1, t2, t3 = 17, 18, 19, 20
    vm = VM(a)
    stamp(a, 3)
    g1_common_setup(a)
    g1_kv_setup(a)
    nt = bool(Cfg.NT_TOUCH)
    def async_check(vaddr, soff, name):
        l = a.newlabel(name)
        a(f"v_cmp_ne_u32 vcc, s{S_TAG}, v{G_PT}\ns_cbranch_vccz {l}")
        poll_blocking(a, vaddr, soff, G_PT, name + "b")
        a(f"{l}:")
    if typ == 0: ab_poll_addr(a, G_PA, 34)
    def xpre():
        for st_ in range(Cfg.NXPRE):
            for e in x_ops(a, vm, st_): e()
    if typ == 0 and Cfg.XA_AT == 6: xpre()
    g1bar(a, 7)
    stamp(a, 4)
    if typ == 1 or not Cfg.NOBP: a("s_barrier")
    if typ == 0:
        vm.op("pa", f"buffer_load_dword v{G_PT}, v{G_PA}, {S4(SRD_WS)}, s34 offen sc1")
    if not (typ == 0 and Cfg.XA_AT == 6): xpre()
    if typ == 0:
        vm.wait("pa")
        async_check(G_PA, 34, "pa")
    else:
        a("s_barrier")
        if Cfg.HELP:
            a(f"""
            s_and_b32 s14, s{S_LOC}, 7
            s_add_u32 s14, s14, s30
            s_mul_i32 s14, s14, 14336
            s_add_u32 s14, s14, s6
            s_sub_u32 s14, s14, {2*AT_NB}
            v_lshlrev_b32 v{t0}, 7, v{V_LANE}
            s_mov_b64 exec, 0xfffffff
            buffer_load_dword v{G_DUM}, v{t0}, {S4(SRD_WS)}, s14 offen sc1
            s_mov_b64 exec, -1
            """)
    if Cfg.stamps: a(f"s_waitcnt lgkmcnt(0)\nv_writelane_b32 v{V_TR}, s88, 7\ns_memrealtime s[88:89]")
    vm.q = []
    stamp(a, 5)
    st = Stream(a, vm)
    def need(s): return 9 + s if s < NA else 10 + s
    def free_after_item(n):
        if n < NA - 1: return 11 + n
        if n == NA - 1: return 9 + NA
        if n < NA + 2: return 10 + NA
        return 12 + (n - 2)
    def avail(n):
        if n >= 5: return free_after_item(n - 5)
        return 9 if (typ == 0 and Cfg.NOBP and n >= 3) else -1
    def kv_ops(which):
        base = item_base(NA + which)
        def mk(i):
            def e():
                a(f"""s_add_u32 s14, s10, {4*i}
                s_max_i32 s14, s14, 0
                s_lshl_b32 s14, s14, 10
                s_add_u32 s14, s14, s8""")
                if which: a(f"s_add_u32 s14, s14, {16*131072}")
                dma(vm, "kv", 62, base + 4096*i, G_VD if which else G_L16, SRD_WS, 14, sc=SC + (" nt" if Cfg.KVNT else ""))
            return e
        return [mk(i) for i in range(6)]
    def wo_ops(half):
        base = item_base(18 + half)
        def mk(i, qd):
            def e():
                a(f"s_add_u32 s14, s9, {((8*half + 4*i)*28 + 8*qd)*896}")
                dma(vm, "wo", 60, base + 16384*i + 1024*qd, G_WO + (2 if qd == 3 else qd % 2), SRD_W, 14)
            return e
        return [mk(i, qd) for i in range(2) for qd in range(4)]
    def touchB():
        if Cfg.TLB2:
            l = a.newlabel("tlb2")
            a(f"""
            s_cmp_lg_u32 s{S_WAVE}, 0
            s_cbranch_scc1 {l}
            v_lshlrev_b32 v{t0}, {Cfg.TLBS}, v{V_LANE}
            s_mov_b32 s14, {WS_O}
            buffer_load_dword v{G_DUM}, v{t0}, {S4(SRD_OUT)}, 0 offen sc1
            s_mov_b64 exec, {(1 << ((WS_STAMP - WS_O) >> Cfg.TLBS)) - 1}
            buffer_load_dword v{G_DUM}, v{t0}, {S4(SRD_WS)}, s14 offen sc1
            s_mov_b64 exec, -1
            {l}:
            """)
        if not Cfg.TCH: return
        if NA != 8:
            a("s_lshl_b32 s14, s31, 7\ns_add_u32 s14, s14, s7")
            vm.op("touch", f"buffer_load_dword v{G_DUM}, v{G_TA}, {S4(SRD_C)}, s14 offen")
        a(f"""
        s_and_b32 s14, s11, 7
        s_add_u32 s14, s14, s31
        s_mul_i32 s14, s14, 14336
        s_add_u32 s14, s14, s6
        v_lshlrev_b32 v{t0}, 7, v{V_LANE}
        s_mov_b64 exec, 0xfffffff
        """)
        vm.op("touch", f"buffer_load_dword v{G_DUM}, v{t0}, {S4(SRD_WS)}, s14 offen sc1")
        a(f"""
        s_lshl_b32 s14, s{S_LOC}, 2
        s_add_u32 s14, s14, s{S_WAVE}
        s_mul_i32 s14, s14, 3200
        s_mov_b64 exec, 0x1ffffff
        v_add_u32 v{t0}, s14, v{t0}
        """)
        if Cfg.WOT: vm.op("touch", f"buffer_load_dword v{G_DUM}, v{t0}, {S4(SRD_W)}, 0 offen{' nt' if Cfg.WOT == 2 else ''}")
        a("s_mov_b64 exec, -1")
    def epoch_bump():
        a(f"""
        s_cmp_lg_u32 s2, 0
        s_cbranch_scc1 eb_done
        s_cmp_lg_u32 s{S_WAVE}, 0
        s_cbranch_scc1 eb_done
        v_lshlrev_b32 v{t0}, {FS + 2}, v{V_LANE}
        s_mov_b32 s39, 0
        eb_loop:
        """)
        for i in range(4):
            a(f"s_mov_b32 s14, {WS_F1 + (256 << FS)*i}\nbuffer_load_dword v{40+i}, v{t0}, {S4(SRD_WS)}, s14 offen sc1")
        a(f"""
        s_add_u32 s39, s39, 1
        s_waitcnt vmcnt(0)
        v_xor_b32 v40, s{S_TAG}, v40
        v_xor_b32 v41, s{S_TAG}, v41
        v_xor_b32 v42, s{S_TAG}, v42
        v_xor_b32 v43, s{S_TAG}, v43
        v_or_b32 v40, v40, v41
        v_or3_b32 v40, v40, v42, v43
        v_cmp_ne_u32 vcc, 0, v40
        s_cmp_ge_u32 s39, {POLL_LIMIT}
        s_cbranch_scc1 eb_st
        s_cbranch_vccnz eb_loop
        eb_st:
        s_mov_b32 s14, {WS_EPOCH}
        v_mov_b32 v{t0}, 0
        v_mov_b32 v{t1}, s{S_TAG}
        s_mov_b64 exec, 1
        buffer_store_dword v{t1}, v{t0}, {S4(SRD_WS)}, s14 offen sc1
        s_mov_b64 exec, -1
        eb_done:
        """)
    kvb = 9 + NA - Cfg.KVL
    ob = 10 + Cfg.O_POLL + 1
    for s in range(16):
        n = stage_item(s)
        av = avail(n)
        if Cfg.HOLD and s >= 10: av = max(av, 10 + NA)
        if s == NA:
            st.add("kv", 9 + NA, max(avail(NA), kvb - 1), kv_ops(0))
            st.add("kv", 9 + NA, max(avail(NA + 1), kvb - 1), kv_ops(1))
            st.add("tb", 10 + NA, 9 + NA, [touchB])
        if s >= Cfg.NXPRE: st.add(("x", s), need(s), av, x_ops(a, vm, s))
        st.add(("e", s), need(s), av, e_ops(a, vm, s))
    st.add("wo", 27, avail(18), wo_ops(0))
    st.add("wo", 27, avail(19), wo_ops(1))
    def kv_patch():
        l = a.newlabel("nopatch")
        a(f"""
        s_cmp_ge_u32 s{S_J}, 2
        s_cbranch_scc1 {l}
        v_lshrrev_b32 v{t0}, 4, v{V_LANE}
        v_lshlrev_b32 v{t0}, 12, v{t0}
        v_and_b32 v{t1}, 15, v{V_LANE}
        v_lshl_add_u32 v{t0}, v{t1}, 4, v{t0}
        v_add_u32 v{t0}, s62, v{t0}
        v_add_u32 v{t0}, {item_base(NA)}, v{t0}
        v_mov_b32 v{t1}, 0xf14a
        s_cmp_eq_u32 s{S_J}, 0
        s_cselect_b32 exec_hi, -1, 0
        ds_write_b16 v{t0}, v{t1} offset:{3*256 + 8}
        s_mov_b32 exec_hi, -1
        s_waitcnt lgkmcnt(0)
        {l}:
        """)
    for b in range(9, 27):
        if b == kvb - 1: vm.op("pk", f"buffer_load_dword v{G_PT}, v{G_PK}, {S4(SRD_WS)}, s12 offen sc1")
        if b == ob - 1: vm.op("po", f"buffer_load_dword v{G_PT}, v{G_PO}, {S4(SRD_WS)}, s13 offen sc1")
        if b == kvb:
            vm.wait("pk"); async_check(G_PK, 12, "pk")
        if b == ob:
            vm.wait("po"); async_check(G_PO, 13, "po")
            if Cfg.OTCH:
                a(f"""
                s_lshl_b32 s14, s{S_CT}, 2
                s_add_u32 s14, s14, s{S_WAVE}
                s_mul_i32 s14, s14, 19
                v_add_u32 v{t0}, s14, v{V_LANE}
                v_min_u32 v{t0}, 511, v{t0}
                v_lshrrev_b32 v{t1}, 5, v{t0}
                v_lshlrev_b32 v{t1}, 17, v{t1}
                v_and_b32 v{t0}, 31, v{t0}
                v_lshl_add_u32 v{t0}, v{t0}, 7, v{t1}
                s_lshl_b32 s14, s{S_RB64}, 12
                s_add_u32 s14, s14, {WS_O}
                s_mov_b64 exec, 0x7ffff
                """)
                vm.op("ot", f"buffer_load_dword v{G_DUM}, v{t0}, {S4(SRD_WS)}, s14 offen sc1\ns_mov_b64 exec, -1")
        la = Cfg.LA + Cfg.LAR * (b - 9)
        if b == 26: la = 99
        if b == 10 + NA and typ == 0: st.hook = epoch_bump
        st.run_to(b, la)
        if b == 9 + NA: kv_patch()
        g1bar(a, b)
        if b == 9: stamp(a, 6)
        if b == 9 + NA: stamp(a, 7)
    assert st.pos == len(st.ops)

def g1_program(a):
    t0, t1, t2, t3 = 17, 18, 19, 20
    a(f"s_cmp_ge_u32 s{S_LOC}, 16\ns_cbranch_scc1 g1_p1b")
    g1_p1(a, 0)
    g1_phase2(a, 0)
    a("s_branch g1_join\ng1_p1b:")
    g1_p1(a, 1)
    g1_phase2(a, 1)
    a("g1_join:")
    d21 = item_base(21) - item_base(20)
    a(f"s_lshl_b32 s10, s{S_RB64}, 12\ns_add_u32 s10, s10, s62\ns_add_u32 s10, s10, {WS_O}\ns_mov_b32 s8, s{S_CT}\ns_add_u32 s9, s62, {item_base(20)}\ns_mov_b32 s12, 0\ng1_ol:")
    a(f"""
    s_and_b32 s14, s8, 7
    s_lshl_b32 s15, s14, 12
    s_add_u32 m0, s15, s9
    s_lshl_b32 s14, s14, 17
    s_add_u32 s14, s14, s10
    buffer_load_dwordx4 v{G_L16}, {S4(SRD_WS)}, s14 offen{SC} lds
    s_add_u32 s8, s8, 1
    s_add_u32 s12, s12, 1
    s_cmp_eq_u32 s12, 8
    s_cselect_b32 s14, {d21 & 0xffffffff}, 0
    s_cselect_b32 s15, {8*131072}, 0
    s_add_u32 s9, s9, s14
    s_add_u32 s10, s10, s15
    s_cmp_lt_u32 s12, 16
    s_cbranch_scc1 g1_ol
    """)
    vPa, vOut = 4, 5
    a(f"""
    s_lshl_b32 s9, s{S_MB}, 2
    s_add_u32 s9, s9, s{S_NB}
    s_lshl_b32 s9, s9, 4
    s_add_u32 s9, s9, s{S_KQ}
    s_lshl_b32 s8, s9, 13
    s_add_u32 s8, s8, {WS_PQ}
    s_lshl_b32 s14, s{S_WAVE}, 11
    s_add_u32 s8, s8, s14
    s_xor_b32 s9, s{S_KQ}, 1
    s_xor_b32 s10, s{S_KQ}, 2
    s_xor_b32 s11, s{S_KQ}, 3
    s_lshl_b32 s9, s9, 15
    s_lshl_b32 s10, s10, 15
    s_lshl_b32 s11, s11, 15
    s_add_u32 s9, s9, s8
    s_add_u32 s10, s10, s8
    s_add_u32 s11, s11, s8
    s_add_u32 s14, s14, {item_base(17)}
    v_add_u32 v{vPa}, s14, v{G_L16}
    s_lshl_b32 s14, s{S_KQ}, 15
    s_add_u32 s8, s8, s14
    s_cmp_lt_u32 s{S_KQ}, 2
    s_cselect_b32 s61, 0, 0x80008000
    s_lshl_b32 s12, s{S_MB}, 7
    s_lshl_b32 s14, s{S_KQ}, 5
    s_add_u32 s12, s12, s14
    s_lshr_b32 s14, s{S_WAVE}, 1
    s_lshl_b32 s14, s14, 4
    s_add_u32 s12, s12, s14
    s_mul_i32 s12, s12, 1792
    s_mul_i32 s14, s{S_NB}, 224
    s_add_u32 s12, s12, s14
    s_and_b32 s14, s{S_WAVE}, 1
    s_mul_i32 s14, s14, 28
    s_add_u32 s12, s12, s14
    s_add_u32 s12, s12, 896
    v_and_b32 v{t0}, 15, v{V_LANE}
    v_mul_u32_u24 v{t0}, 1792, v{t0}
    v_lshrrev_b32 v{t1}, 4, v{V_LANE}
    v_mul_u32_u24 v{t1}, 56, v{t1}
    v_add_u32 v{vOut}, v{t0}, v{t1}
    s_mov_b32 s60, 0xffff0000
    """)
    D = 40
    Q0 = 1 if Cfg.OWN else 0
    NPL = 2 * (4 - Q0)
    def ploads():
        for q in range(Q0, 4):
            for i in range(2):
                a(f"buffer_load_dwordx4 {R(D + 8*q + 4*i)}, v{G_L16}, {S4(SRD_WS)}, s{8+q} offen offset:{1024*i}{SC}")
    if Cfg.SPLITO:
        a("s_waitcnt vmcnt(8)")
        g1bar(a, 27)
        ploads()
        a(f"s_waitcnt vmcnt({NPL})\ns_barrier")
    else:
        ploads()
        a(f"s_waitcnt vmcnt({NPL})")
        g1bar(a, 27)
    if Cfg.stamps: a(f"s_waitcnt lgkmcnt(0)\nv_writelane_b32 v{V_TR}, s88, 27")
    stamp(a, 8)
    if Cfg.OWN: a(f"ds_read_b128 {R(D)}, v{vPa}\nds_read_b128 {R(D+4)}, v{vPa} offset:1024")
    a("s_mov_b32 s39, 0\ns_branch g1_pp1\ng1_pp:")
    ploads()
    a(f"g1_pp1:\ns_add_u32 s39, s39, 1\ns_waitcnt vmcnt(0) lgkmcnt(0)")
    a(f"v_xor_b32 v{t0}, s{S_TAGF}, v{D+3}")
    for n in range(1, 8):
        a(f"v_xor_b32 v{t1}, s{S_TAGF}, v{D+4*n+3}\nv_or_b32 v{t0}, v{t0}, v{t1}")
    a(f"""
    v_cmp_le_u32 vcc, 0x10000, v{t0}
    s_cmp_ge_u32 s39, {POLL_LIMIT}
    s_cbranch_scc1 g1_ppx
    s_cbranch_vccz g1_ppx
    s_sleep {Cfg.SLEEP}
    s_branch g1_pp
    g1_ppx:
    """)
    stamp(a, 9)
    SUM = 104
    lo = 80
    for i in range(2):
        for d in range(4):
            r = [D + 8*q + 4*i + d for q in range(4)]
            for half in range(2 if d < 3 else 1):
                for q in range(4):
                    a(f"v_lshlrev_b32 v{lo+q}, 16, v{r[q]}" if half == 0 else f"v_and_b32 v{lo+q}, s60, v{r[q]}")
                a(f"v_add_f32 v{lo}, v{lo}, v{lo+1}\nv_add_f32 v{lo+2}, v{lo+2}, v{lo+3}\nv_sub_f32 v{SUM + 7*i + 2*d + half}, v{lo}, v{lo+2}")
    for n in range(7):
        a(f"v_cvt_pk_bf16_f32 v{88+n}, v{SUM+2*n}, v{SUM+2*n+1}\nv_xor_b32 v{88+n}, s61, v{88+n}")
    a(f"""
    buffer_store_dwordx4 {R(88)}, v{vOut}, {S4(SRD_OUT)}, s12 offen{OSC()}
    buffer_store_dwordx3 {R(92,3)}, v{vOut}, {S4(SRD_OUT)}, s12 offen offset:16{OSC()}
    g1_done:
    """)
    stamp(a, 10)
    if Cfg.stamps: a("s_waitcnt vmcnt(0)")
    stamp(a, 11)
    stamp(a, 15, True)
    dump_stamps(a, 1)
    if Cfg.stamps:
        a(f"""
        s_lshl_b32 s14, s2, 2
        s_add_u32 s14, s14, s{S_WAVE}
        s_lshl_b32 s14, s14, 8
        s_add_u32 s14, s14, {WS_STAMP + 0x40000}
        v_lshlrev_b32 v2, 2, v{V_LANE}
        buffer_store_dword v{V_TR}, v2, {S4(SRD_WS)}, s14 offen
        """)
    a("s_endpgm")

def build():
    a = Asm()
    kernel_begin(a, K)
    a(f"""
    s_cmp_ge_u32 s2, 256
    s_cbranch_scc1 k_end
    s_load_dwordx16 s[16:31], s[0:1], 0
    s_load_dwordx4 s[32:35], s[0:1], 64
    s_load_dwordx2 s[36:37], s[0:1], 80
    v_and_b32 v{V_LANE}, 63, v0
    v_lshrrev_b32 v2, 6, v0
    s_and_b32 s{S_XCD}, s2, 7
    v_readfirstlane_b32 s15, v2
    s_lshr_b32 s{S_LOC}, s2, 3
    """)
    stamp(a, 0); stamp(a, 14, True)
    a(f"""
    s_and_b32 s6, s{S_XCD}, 3
    s_lshl_b32 s6, s6, 2
    s_and_b32 s14, s{S_LOC}, 3
    s_add_u32 s6, s6, s14
    s_lshr_b32 s7, s{S_XCD}, 2
    s_lshl_b32 s7, s7, 2
    s_bfe_u32 s13, s{S_LOC}, 0x20002
    s_add_u32 s7, s7, s13
    s_add_u32 s8, s14, s13
    s_lshl_b32 s8, s8, 1
    s_cmp_ge_u32 s8, 7
    s_cselect_b32 s14, 7, 0
    s_sub_u32 s8, s8, s14
    s_and_b32 s{S_WAVE}, s15, 3
    s_cmp_lt_u32 s15, 4
    s_cbranch_scc1 g0_entry
    """)
    if Cfg.PRIO0 == 2: a("s_setprio 1")
    g1_program(a)
    a("g0_entry:")
    if Cfg.CODEW:
        a(f"""
        s_cmp_lg_u32 s{S_WAVE}, 0
        s_cbranch_scc1 cw_done
        s_getpc_b64 s[40:41]
        cw_pc:
        s_sub_u32 s40, s40, cw_pc-{K}
        s_subb_u32 s41, s41, 0
        s_lshl_b32 s14, s{S_LOC}, 10
        v_lshlrev_b32 v2, 7, v{V_LANE}
        v_add_u32 v2, s14, v2
        v_min_u32 v2, k_end-{K}, v2
        s_mov_b64 exec, 0xff
        global_load_dword v3, v2, s[40:41]
        s_mov_b64 exec, -1
        cw_done:
        """)
    if Cfg.PRIO0 == 1: a("s_setprio 1")
    jobs2(a)
    a("s_waitcnt lgkmcnt(0)")
    srd(a, SRD_WS, P_WS, WS_SIZE)
    srd(a, SRD_OUT, P_OUT, 2048 * 1792)
    epoch_load(a)
    if Cfg.TLBW:
        a(f"s_cmp_lt_u32 s{S_KQ}, 2")
        srd_sel(a, SRD_X, P_CR, P_CI, 2048 * 4096)
        srd(a, SRD_W, P_WO, 448 * 896)
        a(f"""
        v_lshlrev_b32 v2, {Cfg.TLBS}, v{V_LANE}
        s_cmp_lg_u32 s{S_WAVE}, 0
        s_cbranch_scc1 tlb_done
        buffer_load_dword v3, v2, {S4(SRD_WS)}, 0 offen sc1
        buffer_load_dword v3, v2, {S4(SRD_X)}, 0 offen
        buffer_load_dword v3, v2, {S4(SRD_OUT)}, 0 offen sc1
        buffer_load_dword v3, v2, {S4(SRD_W)}, 0 offen
        tlb_done:
        """)
    g0_program(a)
    a("k_end:\ns_endpgm")
    txt = a.text()
    return file_text_single(txt)

DOC2 = '; Fused single-launch kernel (generated by my own script): 256 workgroups x 8 waves, one per CU.\n;   hand-offs: sc1 stores -> vmcnt(0) -> sc1 flag holding a per-launch tag derived from an epoch word in d_ws; bounded polls\n'
def file_text_single(body):
    h = HEADER_DOC + DOC2 + f"; @launch grid=(256,1,1) block=(512,1,1) lds={LDS_TOTAL}\n"
    return h + '.amdgcn_target "amdgcn-amd-amdhsa--gfx950"\n.text\n' + body + '.section .rodata,"a"\n' + descriptor(K, 256)

if __name__ == "__main__":
    out = sys.argv[1] if len(sys.argv) > 1 else "k3.s"
    Cfg.stamps = "stamps" in sys.argv
    for arg in sys.argv[2:]:
        if "=" in arg:
            k, v = arg.split("="); setattr(Cfg, k, int(v))
    open(out, "w").write(build())
```
